```python
import torch

def _softmax(x, axis=-1):
    return torch.softmax(x, dim=axis)
def _gelu(x):
    return torch.nn.functional.gelu(x, approximate="tanh")
def _silu(x):
    return torch.nn.functional.silu(x)
def _sigmoid(x):
    return torch.sigmoid(x)
def _layernorm(x, axis=-1, eps=1e-5):
    m = x.mean(dim=axis, keepdim=True)
    v = x.var(dim=axis, keepdim=True, unbiased=False)
    return (x - m) / torch.sqrt(v + eps)
def _scatter_add(tgt, idx, src, axis=0):
    return tgt.clone().index_add_(axis, idx, src)
def _segment_sum(src, seg, n):
    out = torch.zeros((n,) + src.shape[1:], dtype=src.dtype)
    return out.index_add_(0, seg, src)
def _pad(x, pw):
    flat = tuple(v for pair in reversed(pw) for v in pair)
    return torch.nn.functional.pad(x, flat)

kernel_name = 'sequential_preLN__sliding_local_dilated__dense_activation_silu__prompt'

def setup_inputs():

    _w = (lambda a: (lambda t: t.to(torch.bfloat16) if t.is_floating_point() else t)(torch.as_tensor(a)))
    def _A_setup():
        B, S, D = 1, 2048, 640
        return {
            "x": _w((lambda *s: torch.randn(*s, dtype=torch.bfloat16) * 0.05)(B, S, D)),
            "wqkv": _w((lambda *s: torch.randn(*s, dtype=torch.bfloat16) * 0.05)(D, 3 * D)),
            "wo": _w((lambda *s: torch.randn(*s, dtype=torch.bfloat16) * 0.05)(D, D)),
        }
    _A_in = _A_setup()

    def _B_setup():
        B, S, D, F = 1, 2048, 640, 1728
        return {
            "x": _w((lambda *s: torch.randn(*s, dtype=torch.bfloat16) * 0.05)(B, S, D)),
            "w1": _w((lambda *s: torch.randn(*s, dtype=torch.bfloat16) * 3.2)(D, F) * (D ** -0.5)),
            "w2": _w((lambda *s: torch.randn(*s, dtype=torch.bfloat16) * 0.4)(F, D) * (F ** -0.5)),
        }
    _B_in = _B_setup()

    return {
        "A_x": _A_in["x"],
        "A_wqkv": _A_in["wqkv"],
        "A_wo": _A_in["wo"],
        "B_x": _B_in["x"],
        "B_w1": _B_in["w1"],
        "B_w2": _B_in["w2"],
    }

def reference(A_x, A_wqkv, A_wo, B_x, B_w1, B_w2):
    def _A_ref(x, wqkv, wo):
        B, S, D = x.shape
        H = 32; Dh = D // H
        W, dil = 8, 2
        qkv = (lambda x, *d: x.permute(*d))((x @ wqkv).reshape(B, S, 3, H, Dh), 2, 0, 3, 1, 4)
        q, k, v = qkv[0], qkv[1], qkv[2]
        scale = Dh ** -0.5
        pos = torch.arange(S)
        off = torch.arange(W) * dil
        idx = pos[:, None] - off[None, :]
        mask = idx >= 0
        idx_c = torch.where(mask, idx, 0).reshape(-1)
        kg = k[:, :, idx_c, :].reshape(B, H, S, W, Dh)
        vg = v[:, :, idx_c, :].reshape(B, H, S, W, Dh)
        logits = torch.einsum("bhsd,bhswd->bhsw", q, kg) * scale
        logits = torch.where(mask[None, None, :, :], logits, -1e9)
        attn = _softmax(logits, axis=-1)
        o = torch.einsum("bhsw,bhswd->bhsd", attn, vg)
        return (lambda x, *d: x.permute(*d))(o, 0, 2, 1, 3).reshape(B, S, D) @ wo

    def _B_ref(x, w1, w2):
        h = torch.einsum("bsd,df->bsf", x, w1)
        h = _silu(h)
        out = torch.einsum("bsf,fd->bsd", h, w2)
        return out

    x = A_x
    h = x + _A_ref(_layernorm(x, axis=-1), A_wqkv, A_wo)
    h2 = h + _B_ref(_layernorm(h, axis=-1), B_w1, B_w2)
    return h2
```

```python
import re
TRANS = ("v_exp_", "v_log_", "v_rcp_", "v_rsq_", "v_sqrt_", "v_sin_", "v_cos_")
def regs(tok):
    tok = tok.strip()
    tok = tok.lstrip("-").replace("abs(", "").replace(")", "").replace("|", "")
    m = re.fullmatch(r"([vsa])(\d+)", tok)
    if m: return {(m.group(1), int(m.group(2)))}
    m = re.fullmatch(r"([vsa])\[(\d+):(\d+)\]", tok)
    if m: return {(m.group(1), i) for i in range(int(m.group(2)), int(m.group(3)) + 1)}
    if tok == "vcc": return {("s", 106), ("s", 107)}
    if tok == "exec": return {("s", 126), ("s", 127)}
    if tok == "m0": return {("s", 124)}
    return set()
class I:
    def __init__(self, text):
        self.text = text
        t = text.split(";")[0].strip()
        self.label = t.endswith(":") or t.startswith(".") or not t
        if self.label:
            self.op = ""; self.ops = []; self.w = set(); self.r = set(); return
        p = t.split(None, 1)
        self.op = p[0]
        rest = p[1] if len(p) > 1 else ""
        parts = [x.strip() for x in rest.split(",")]
        self.mods = ""
        rest2 = re.sub(r"(op_sel_hi|op_sel|neg_lo|neg_hi):\[[^\]]*\]", "", rest)
        parts = [x.strip() for x in rest2.split(",")]
        if parts:
            last = parts[-1].split()
            if last:
                parts[-1] = last[0]; self.mods = " ".join(last[1:])
        self.ops = parts
        op = self.op
        self.valu = op.startswith("v_") and not op.startswith("v_mfma")
        self.mfma = op.startswith("v_mfma")
        self.trans = op.startswith(TRANS)
        self.dot = op.startswith("v_dot")
        self.dpp = "row_" in rest or "quad_perm" in rest or "_dpp" in op
        self.perml = op.startswith("v_permlane")
        self.vmem = op.startswith("buffer_") or op.startswith("global_")
        self.ds = op.startswith("ds_")
        self.salu = op.startswith("s_")
        self.ldsdma = self.vmem and (" lds" in (" " + self.mods))
        R = [regs(x) for x in parts]
        self.w = set(); self.r = set(); self.sdata = set(); self.srcc = set()
        if self.valu or self.mfma:
            if op.startswith("v_cmp"):
                self.w = R[0]; self.r = set().union(*R[1:])
                if op.startswith("v_cmpx"): self.w |= regs("exec")
            elif self.perml and "swap" in op:
                self.w = R[0] | R[1]; self.r = R[0] | R[1]
            elif op.startswith(("v_add_co", "v_sub_co", "v_addc_co", "v_subb_co")):
                self.w = R[0] | R[1]; self.r = set().union(*R[2:])
            else:
                self.w = R[0]; self.r = set().union(*R[1:]) if len(R) > 1 else set()
                if op.startswith(("v_fmac", "v_dot2c", "v_pk_fmac")) or self.dpp or op.startswith("v_writelane"):
                    self.r |= R[0]
                if self.dot:
                    self.srcc = R[0] if op.startswith("v_dot2c") else R[3]
                    self.srcab = R[1] | R[2]
            if self.mfma:
                self.srcc = R[3]; self.srcab = R[1] | R[2]
                self.passes = 8 if "32x32" in op else 4
        elif self.vmem:
            if self.ldsdma:
                self.r = set().union(*R) | regs("m0")
            elif "load" in op:
                self.w = R[0]; self.r = set().union(*R[1:])
            else:
                self.r = set().union(*R)
                if "x4" in op or "x3" in op: self.sdata = R[0] if op.startswith("buffer_") else R[1]
                if "atomic" in op and "sc0" in self.mods: self.w = R[0]
        elif self.ds:
            if "read" in op or "permute" in op or "swizzle" in op or "rtn" in op:
                self.w = R[0]; self.r = set().union(*R[1:])
            else:
                self.r = set().union(*R)
        elif self.salu:
            if op.startswith(("s_cmp", "s_cbranch", "s_branch", "s_waitcnt", "s_barrier", "s_nop", "s_endpgm", "s_setprio", "s_sleep")):
                self.r = set().union(*R) if R else set()
            else:
                self.w = R[0]; self.r = set().union(*R[1:]) if len(R) > 1 else set()
                if "saveexec" in op: self.w = self.w | regs("exec")
    def states(self):
        if self.label: return 0
        if self.op == "s_nop": return int(self.ops[0], 0) + 1
        return 1
def vg(s): return {x for x in s if x[0] in "va"}
def sg(s): return {x for x in s if x[0] == "s"}
def need(p, c):
    n = 0
    if p.valu:
        wv = vg(p.w); ws = sg(p.w)
        if c.valu and c.dpp and wv & c.r: n = max(n, 2)
        if c.perml and wv & c.r: n = max(n, 2)
        if c.op.startswith(("v_readfirstlane", "v_readlane")) and wv & c.r: n = max(n, 1)
        if c.mfma and wv & c.r: n = max(n, 2)
        if p.trans and c.valu and wv & c.r: n = max(n, 1)
        if ws:
            if c.valu and (ws & c.r or (c.op.startswith("v_cndmask") and ws & c.r)): n = max(n, 2)
            if c.vmem and ws & c.r: n = max(n, 5)
            if c.op.startswith(("v_readlane", "v_writelane")) and ws & c.r: n = max(n, 4)
            if ("s", 126) in ws and (c.mfma or c.perml or c.op.startswith(("v_readfirstlane", "v_readlane"))): n = max(n, 4)
            if ("s", 126) in ws and c.valu and c.dpp: n = max(n, 5)
        if p.dot and (c.valu or c.mfma or c.vmem or c.ds):
            if c.op == p.op:
                if wv & c.srcab: n = max(n, 3)
            elif wv & (c.r | c.w): n = max(n, 3)
        if ("op_sel" in p.text and not p.op.startswith("v_pk_") or "sdwa" in p.op) and c.valu and wv & (c.r | c.w): n = max(n, 1)
    if p.mfma:
        P = p.passes
        if c.mfma:
            if p.w & c.srcab: n = max(n, {4: 8, 8: 12}[P])
            if p.w & c.srcc and not (p.w == c.srcc and c.passes == P): n = max(n, {4: 6, 8: 10}[P])
        elif (c.valu or c.vmem or c.ds) and p.w & (c.r | c.w): n = max(n, {4: 8, 8: 12}[P])
        if c.valu and p.srcc & c.w: n = max(n, {4: 3, 8: 7}[P])
    if p.vmem and p.sdata and (c.valu or c.ds or c.vmem or c.mfma) and p.sdata & c.w: n = max(n, 2)
    if p.salu and ("s", 124) in p.w and c.vmem and c.ldsdma: n = max(n, 1)
    return n
def fix(lines):
    out = []; hist = []
    nins = 0
    for ln in lines:
        c = I(ln.strip())
        if not c.label:
            d = 0; req = 0
            for p in reversed(hist):
                if d >= 12: break
                r = need(p, c) - d
                if r > req: req = r
                d += p.states()
            if req > 0:
                nop = I(f"s_nop {req-1}")
                out.append("    " + nop.text); hist.append(nop); nins += 1
            hist.append(c)
            if len(hist) > 40: hist = hist[-20:]
        out.append(ln)
    return out, nins
```

```python
import sys
sys.path.insert(0, "dev")
import hazard

NAME = "sequential_preLN__sliding_local_dilated__dense_activation_silu__prompt"
S, D, F = 2048, 640, 1728
CS = 2048 * 16
O_BASE = 0
H_BASE = 80 * CS
ST_BASE = 160 * CS
G_BASE = 0x600000
FL_BASE = 0xE00000
WS_SIZE = 0x1000000
OOB = 0x80000000
LDS = 163840
SX, SWQ, SWO, SW1, SW2, SOUT, SDBG, SWS = 24, 28, 32, 36, 40, 44, 48, 52
def srd(n): return f"s[{n}:{n+3}]"
def vr(a, n=1): return f"v{a}" if n == 1 else f"v[{a}:{a+n-1}]"

class G:
    NL = 0
    def __init__(self, name, persist, dbg=False):
        self.name = name; self.L = []; self.n = 0; self.persist = persist; self.dbg = dbg
        self.sc = " sc1" if persist else ""
        self.vm = []
    def a(self, s):
        for line in s.split("\n"):
            line = line.strip()
            if line: self.L.append(line if line.endswith(":") else "    " + line)
    def lab(self, b="L"):
        G.NL += 1; return f"{b}_{G.NL}"
    def vissue(self, tag): self.vm.append(tag)
    def vwait(self, tags):
        if not isinstance(tags, (list, tuple, set)): tags = [tags]
        last = -1
        for i, t in enumerate(self.vm):
            if t in tags: last = i
        if last < 0: return
        n = len(self.vm) - 1 - last
        assert n <= 63, n
        self.a(f"s_waitcnt vmcnt({n})")
        self.vm = self.vm[last + 1:]
    def vreset(self): self.vm = []

    def prologue(self, nwg):
        a = self.a
        a("s_load_dwordx16 s[4:19], s[0:1], 0")
        a("s_load_dwordx2 s[20:21], s[0:1], 64")
        a(f"s_cmp_ge_u32 s2, {nwg}")
        a(f"s_cbranch_scc1 Lend_{self.name}")
        a("v_and_b32 v1, 63, v0")
        a("v_lshrrev_b32 v2, 6, v0")
        a("v_readfirstlane_b32 s22, v2")
        a("s_and_b32 s56, s2, 7")
        a("s_lshr_b32 s57, s2, 3")
        a("s_and_b32 s23, s22, 3")
        a("s_waitcnt lgkmcnt(0)")
        for d, b, n in ((SX, 4, S*D*2), (SWQ, 6, D*3*D*2), (SWO, 8, D*D*2), (SW1, 12, D*F*2), (SW2, 14, F*D*2),
                        (SOUT, 16, S*D*2), (SDBG, 18, 256), (SWS, 20, WS_SIZE)):
            a(f"s_mov_b32 s{d}, s{b}\ns_mov_b32 s{d+1}, s{b+1}\ns_mov_b32 s{d+2}, {n}\ns_mov_b32 s{d+3}, 0x00020000")
    def end(self):
        self.a(f"Lend_{self.name}:\ns_endpgm")

    def mk3(self, r):
        self.a(f"v_add_u32 v{r+1}, 0x10000, v{r}\nv_add_u32 v{r+2}, 0x20000, v{r}")
    def ad(self, r, off):
        return f"v{r + (off >> 16)} offset:{off & 0xffff}"

    P1_RING = 0; P1_SLOT = 15360; P1_X = 61440; P1_XS = 1312; P1_QKV = 81920; P1_QS = 488
    def ln_group(self, X, vrow):
        a = self.a
        a("v_mov_b32 v2, 0\nv_mov_b32 v3, 0\nv_mov_b32 v4, 0\nv_mov_b32 v5, 0")
        for i in range(0, 20, 2):
            a(f"v_dot2c_f32_bf16 v2, v{X+i}, v12\nv_dot2c_f32_bf16 v3, v{X+i}, v{X+i}")
            a(f"v_dot2c_f32_bf16 v4, v{X+i+1}, v12\nv_dot2c_f32_bf16 v5, v{X+i+1}, v{X+i+1}")
        a("v_add_f32 v2, v2, v4\nv_add_f32 v3, v3, v5")
        for sh in (8, 4, 2, 1):
            a(f"v_add_f32_dpp v2, v2, v2 row_ror:{sh} row_mask:0xf bank_mask:0xf")
            a(f"v_add_f32_dpp v3, v3, v3 row_ror:{sh} row_mask:0xf bank_mask:0xf")
        a(f"v_mul_f32 v2, {1.0/640!r}, v2")
        a(f"v_mul_f32 v3, {1.0/640!r}, v3")
        a("v_fma_f32 v3, -v2, v2, v3")
        a("v_max_f32 v3, 0, v3")
        a("v_add_f32 v3, 1e-5, v3")
        a("v_rsq_f32 v4, v3")
        a("v_mul_f32 v6, -v2, v4")
        for i in range(0, 20, 2):
            a(f"v_lshlrev_b32 v8, 16, v{X+i}\nv_and_b32 v9, 0xffff0000, v{X+i}")
            a(f"v_lshlrev_b32 v10, 16, v{X+i+1}\nv_and_b32 v11, 0xffff0000, v{X+i+1}")
            a("v_pk_fma_f32 v[8:9], v[8:9], v[4:5], v[6:7] op_sel_hi:[1,0,0]")
            a("v_pk_fma_f32 v[10:11], v[10:11], v[4:5], v[6:7] op_sel_hi:[1,0,0]")
            a(f"v_cvt_pk_bf16_f32 v{X+i}, v8, v9\nv_cvt_pk_bf16_f32 v{X+i+1}, v10, v11")
        a(f"v_mul_u32_u24 v2, {self.P1_XS}, v{vrow}")
        a("v_add_u32 v2, v2, v13")
        a(f"v_cmp_gt_u32 vcc, 78, v{vrow}")
        a("s_and_saveexec_b64 s[62:63], vcc")
        for i in range(5):
            a(f"ds_write_b128 v2, v[{X+4*i}:{X+4*i+3}] offset:{256*i}")
        a("s_mov_b64 exec, s[62:63]")

    def p1(self):
        a = self.a
        Lld = self.lab("P1ld"); Latt = self.lab("P1att")
        a("s_and_b32 s58, s56, 1\ns_lshl_b32 s58, s58, 2\ns_and_b32 s3, s57, 3\ns_add_u32 s58, s58, s3")
        a("s_lshr_b32 s59, s56, 1\ns_lshl_b32 s59, s59, 3\ns_lshr_b32 s3, s57, 2\ns_add_u32 s59, s59, s3")
        a("v_mov_b32 v12, 0x3f803f80")
        a("v_and_b32 v13, 15, v1\nv_lshlrev_b32 v13, 4, v13")
        a("v_lshrrev_b32 v14, 4, v1")
        a("s_lshl_b32 s3, s23, 2\nv_add_u32 v14, s3, v14")
        a("s_lshl_b32 s60, s59, 6\ns_sub_u32 s60, s60, 14")
        a("s_cmp_ge_u32 s22, 4")
        a(f"s_cbranch_scc1 {Lld}")
        self.vreset()
        XR = 20
        for g in range(3):
            a(f"v_add_u32 v{15+g}, {16*g}, v14")
            a(f"v_add_u32 v2, s60, v{15+g}\nv_mul_i32_i24 v2, 1280, v2\nv_add_u32 v2, v2, v13")
            for i in range(5):
                a(f"buffer_load_dwordx4 v[{XR+20*g+4*i}:{XR+20*g+4*i+3}], v2, {srd(SX)}, 0 offen offset:{256*i}")
                self.vissue(("x", g))
        a(f"v_add_u32 v13, {self.P1_X}, v13")
        for g in range(3):
            self.vwait([("x", g)])
            self.ln_group(XR + 20*g, 15 + g)
        a("v_lshrrev_b32 v2, 2, v1\nv_mul_u32_u24 v2, 480, v2\nv_and_b32 v3, 3, v1\nv_lshl_add_u32 v2, v3, 3, v2")
        a("s_lshl_b32 s3, s23, 7\nv_add_u32 v2, s3, v2")
        a(f"v_and_b32 v3, 15, v1\nv_mul_u32_u24 v4, {self.P1_XS}, v3\nv_lshrrev_b32 v3, 4, v1\nv_lshl_add_u32 v4, v3, 4, v4")
        a(f"v_add_u32 v4, {self.P1_X - 2*self.P1_XS}, v4\nv_add_u32 v5, {3*16*self.P1_XS}, v4")
        ACC = 100; FB = [20, 56]
        a("s_waitcnt lgkmcnt(0)")
        def reads(s):
            fb = FB[s % 2]; sl = self.P1_RING + (s % 4) * self.P1_SLOT; r = []
            order = []
            for t in range(5):
                order.append(f"ds_read_b128 v[{fb+16+4*t}:{fb+19+4*t}], v{4 + (t >= 3)} offset:{(t % 3)*16*self.P1_XS + 64*s}")
            for j in range(4):
                for rd in range(2):
                    order.append(f"ds_read_b64_tr_b16 v[{fb+4*j+2*rd}:{fb+4*j+2*rd+1}], v2 offset:{sl + 32*j + 7680*rd}")
            return order
        def mfmas(s):
            fb = FB[s % 2]; r = []
            for j in range(4):
                for t in range(5):
                    c = ACC + (j*5+t)*4
                    cs = "0" if s == 0 else f"v[{c}:{c+3}]"
                    r.append(f"v_mfma_f32_16x16x32_bf16 v[{c}:{c+3}], v[{fb+4*j}:{fb+4*j+3}], v[{fb+16+4*t}:{fb+19+4*t}], {cs}")
            return r
        for s in range(20):
            a("s_barrier")
            rd = reads(s); mf = mfmas(s-1) if s else []
            for i in range(max(len(rd), len(mf))):
                if i < len(rd): a(rd[i])
                if i < len(mf): a(mf[i])
            a("s_waitcnt lgkmcnt(0)")
        a("s_barrier")
        for m in mfmas(19): a(m)
        a(f"v_and_b32 v3, 15, v1\nv_mul_u32_u24 v2, {self.P1_QS}, v3\nv_lshrrev_b32 v3, 4, v1\nv_lshl_add_u32 v2, v3, 3, v2")
        a(f"s_lshl_b32 s3, s23, 7\ns_add_u32 s3, s3, {self.P1_QKV}\nv_add_u32 v2, s3, v2")
        Lsk = self.lab("P1sk")
        for j in range(4):
            if j == 3:
                a(f"s_cmp_eq_u32 s23, 3\ns_cbranch_scc1 {Lsk}")
            for t in range(5):
                c = ACC + (j*5+t)*4
                a(f"v_cvt_pk_bf16_f32 v{c}, v{c}, v{c+1}\nv_cvt_pk_bf16_f32 v{c+1}, v{c+2}, v{c+3}")
                a(f"ds_write_b64 v2, v[{c}:{c+1}] offset:{t*16*self.P1_QS + 32*j}")
        a(f"{Lsk}:")
        a("s_waitcnt lgkmcnt(0)")
        a(f"s_branch {Latt}")
        a(f"{Lld}:")
        self.vreset()
        for g in range(2):
            a(f"v_add_u32 v{15+g}, {48+16*g}, v14")
            a(f"v_add_u32 v2, s60, v{15+g}\nv_mul_i32_i24 v2, 1280, v2\nv_add_u32 v2, v2, v13")
            for i in range(5):
                a(f"buffer_load_dwordx4 v[{XR+20*g+4*i}:{XR+20*g+4*i+3}], v2, {srd(SX)}, 0 offen offset:{256*i}")
                self.vissue(("x", g))
        a(f"v_add_u32 v13, {self.P1_X}, v13")
        a("v_cmp_le_u32 vcc, 30, v1\nv_cndmask_b32 v2, 0, 1, vcc")
        a("v_mul_u32_u24 v3, 30, v2\nv_sub_u32 v3, v1, v3")
        a("v_mul_u32_u24 v4, 26, v3\nv_lshrrev_b32 v4, 8, v4")
        a("v_mul_u32_u24 v5, 10, v4\nv_sub_u32 v5, v3, v5")
        a("v_mul_u32_u24 v18, 3840, v2\nv_mul_u32_u24 v4, 1280, v4\nv_add_u32 v18, v18, v4\nv_lshl_add_u32 v18, v5, 4, v18")
        a("s_and_b32 s3, s23, 1\ns_lshl_b32 s3, s3, 4\ns_lshr_b32 s61, s23, 1\ns_lshl_b32 s61, s61, 2\ns_add_u32 s3, s3, s61")
        a("s_mul_i32 s3, s3, 3840\ns_mul_i32 s61, s58, 160\ns_add_u32 s3, s3, s61\nv_add_u32 v18, s3, v18")
        a(f"s_mul_i32 s64, s23, {4*960}")
        def issue(s):
            a("s_mov_b32 exec_hi, 0x0fffffff")
            for jj in range(4):
                a(f"s_mov_b32 s61, {(s*32 + [0, 2, 8, 10][jj]) * 3840}")
                a(f"s_add_u32 m0, s64, {self.P1_RING + (s % 4)*self.P1_SLOT + jj*960}")
                a(f"buffer_load_dwordx4 v18, {srd(SWQ)}, s61 offen lds")
                self.vissue(("w", s))
            a("s_mov_b32 exec_hi, -1")
        for s in range(4): issue(s)
        for g in range(2):
            self.vwait([("x", g)])
            self.ln_group(XR + 20*g, 15 + g)
        a("s_waitcnt lgkmcnt(0)")
        self.vwait([("w", 0)])
        for s in range(20):
            a("s_barrier")
            if s >= 1 and s + 3 <= 19: issue(s + 3)
            if s + 1 <= 19: self.vwait([("w", s + 1)])
        a("s_barrier")
        if self.persist:
            self.p2_setup(); self.p2_wo_issue()
        a(f"{Latt}:")
        a("s_barrier")
        self.attention()

    def attention(self):
        a = self.a
        QS = self.P1_QS
        a("s_lshr_b32 s3, s22, 2\ns_lshl_b32 s3, s3, 5")
        a("v_and_b32 v2, 31, v1\nv_add_u32 v2, s3, v2")
        a("v_lshrrev_b32 v3, 5, v1")
        a(f"v_mul_u32_u24 v4, {QS}, v2")
        a(f"s_mul_i32 s3, s23, 40\ns_add_u32 s3, s3, {self.P1_QKV + 16*QS}\nv_add_u32 v4, s3, v4")
        a(f"v_mul_u32_u24 v5, {8*QS}, v3\nv_sub_u32 v5, v4, v5\nv_subrev_u32 v5, {6*QS}, v5")
        Q = 20; Kr = 30; V = 70; P = 110; T = 120; AC = 130
        for c in range(5): a(f"ds_read_b64 v[{Q+2*c}:{Q+2*c+1}], v4 offset:{8*c}")
        for jj in range(4):
            for c in range(5): a(f"ds_read_b64 v[{Kr+10*jj+2*c}:{Kr+10*jj+2*c+1}], v5 offset:{(6-2*jj)*QS + 160 + 8*c}")
        a("s_lshl_b32 s3, s59, 6\nv_add_u32 v6, s3, v2")
        a("v_lshlrev_b32 v7, 3, v3\nv_sub_u32 v7, v6, v7")
        for jj in range(4): a(f"v_mov_b32 v{P+jj}, 0")
        a("s_waitcnt lgkmcnt(0)")
        for jj in range(4):
            for c in range(5): a(f"ds_read_b64 v[{V+10*jj+2*c}:{V+10*jj+2*c+1}], v5 offset:{(6-2*jj)*QS + 320 + 8*c}")
        for d in range(10):
            for jj in range(4): a(f"v_dot2c_f32_bf16 v{P+jj}, v{Q+d}, v{Kr+10*jj+d}")
        SCL = 20 ** -0.5 * 1.4426950408889634
        a("v_mov_b32 v8, 0xceac0000")
        for jj in range(4):
            a(f"v_mul_f32 v{P+jj}, {SCL!r}, v{P+jj}")
            a(f"v_cmp_le_i32 vcc, {2*jj}, v7")
            a(f"v_cndmask_b32 v{P+jj}, v8, v{P+jj}, vcc")
        a(f"v_max3_f32 v9, v{P}, v{P+1}, v{P+2}\nv_max_f32 v9, v9, v{P+3}\nv_mov_b32 v10, v9")
        a("v_permlane32_swap_b32 v9, v10\nv_max_f32 v9, v9, v10")
        for jj in range(4): a(f"v_sub_f32 v{P+jj}, v{P+jj}, v9")
        for jj in range(4): a(f"v_exp_f32 v{P+jj}, v{P+jj}")
        a(f"v_add_f32 v9, v{P}, v{P+1}\nv_add_f32 v10, v{P+2}, v{P+3}\nv_add_f32 v9, v9, v10\nv_mov_b32 v10, v9")
        a("v_permlane32_swap_b32 v9, v10\nv_add_f32 v9, v9, v10\nv_rcp_f32 v9, v9")
        for jj in range(4): a(f"v_mul_f32 v{P+jj}, v{P+jj}, v9")
        a(f"v_cvt_pk_bf16_f32 v{P}, v{P}, v{P+1}\nv_cvt_pk_bf16_f32 v{P+1}, v{P+2}, v{P+3}")
        a("s_mov_b32 s60, 0x05040100\ns_mov_b32 s61, 0x07060302")
        a("s_waitcnt lgkmcnt(0)")
        for d in range(10):
            t = T + 4 * (d % 2)
            a(f"v_perm_b32 v{t}, v{V+10+d}, v{V+d}, s60\nv_perm_b32 v{t+1}, v{V+10+d}, v{V+d}, s61")
            a(f"v_perm_b32 v{t+2}, v{V+30+d}, v{V+20+d}, s60\nv_perm_b32 v{t+3}, v{V+30+d}, v{V+20+d}, s61")
            a(f"v_dot2_f32_bf16 v{AC+2*d}, v{t}, v{P}, 0\nv_dot2_f32_bf16 v{AC+2*d+1}, v{t+1}, v{P}, 0")
            a(f"v_dot2_f32_bf16 v{AC+2*d}, v{t+2}, v{P+1}, v{AC+2*d}\nv_dot2_f32_bf16 v{AC+2*d+1}, v{t+3}, v{P+1}, v{AC+2*d+1}")
        pairs = [(d, d + 8) for d in range(8)] + [(16, 18), (17, 19)]
        for x, y in pairs: a(f"v_permlane32_swap_b32 v{AC+x}, v{AC+y}")
        for x, y in pairs: a(f"v_add_f32 v{AC+x}, v{AC+x}, v{AC+y}")
        for d in range(4): a(f"v_cvt_pk_bf16_f32 v{T+d}, v{AC+2*d}, v{AC+2*d+1}")
        a(f"v_cvt_pk_bf16_f32 v{T+4}, v{AC+16}, v{AC+17}")
        a("v_lshlrev_b32 v6, 4, v6")
        a(f"v_mul_u32_u24 v7, {CS}, v3\nv_add_u32 v7, v7, v6")
        a("v_lshl_add_u32 v8, v3, 2, v6")
        a(f"s_mul_i32 s60, s58, 10\ns_lshl_b32 s3, s23, 1\ns_add_u32 s61, s60, s3\ns_mul_i32 s61, s61, {CS}")
        if O_BASE: a(f"s_add_u32 s61, s61, {O_BASE}")
        a(f"buffer_store_dwordx4 v[{T}:{T+3}], v7, {srd(SWS)}, s61 offen{self.sc}")
        a(f"s_lshr_b32 s3, s23, 1\ns_add_u32 s60, s60, s3\ns_add_u32 s60, s60, 8\ns_mul_i32 s60, s60, {CS}")
        a(f"s_and_b32 s3, s23, 1\ns_lshl_b32 s3, s3, 3\ns_add_u32 s60, s60, s3")
        if O_BASE: a(f"s_add_u32 s60, s60, {O_BASE}")
        a(f"buffer_store_dword v{T+4}, v8, {srd(SWS)}, s60 offen{self.sc}")

    def p24_ids(self):
        a = self.a
        a("s_mul_i32 s66, s57, 26\ns_lshr_b32 s66, s66, 8\ns_mul_i32 s3, s66, 10\ns_sub_u32 s67, s57, s3")
        a("s_lshl_b32 s68, s56, 8\ns_mul_i32 s3, s66, 88\ns_add_u32 s68, s68, s3")
        a("s_cmp_eq_u32 s66, 2\ns_cselect_b32 s69, 0, 8\ns_add_u32 s69, s69, 80")
    def w64_addr(self, dst, Drows):
        a = self.a
        a("v_lshrrev_b32 v2, 3, v1\nv_and_b32 v3, 3, v2\nv_lshrrev_b32 v4, 2, v2")
        a(f"v_mul_u32_u24 v4, {Drows}, v4\nv_add_u32 v3, v3, v4\nv_mul_u32_u24 v{dst}, 1280, v3")
        a("v_lshrrev_b32 v2, 4, v1\nv_lshlrev_b32 v2, 1, v2\nv_and_b32 v3, 7, v1\nv_xor_b32 v3, v3, v2")
        a(f"v_lshl_add_u32 v{dst}, v3, 4, v{dst}")
        a(f"s_lshl_b32 s3, s67, 7\nv_add_u32 v{dst}, s3, v{dst}")
    def panel96_addr(self, dst):
        a = self.a
        for n in range(3):
            a(f"v_add_u32 v2, {64*n}, v1\nv_cmp_le_u32 vcc, 96, v2\nv_cndmask_b32 v3, 0, 1, vcc")
            a("v_mul_u32_u24 v4, 96, v3\nv_sub_u32 v2, v2, v4")
            a("s_lshl_b32 s3, s23, 1\nv_add_u32 v3, s3, v3")
            a(f"v_mul_u32_u24 v3, {CS}, v3\nv_add_u32 v4, s68, v2\nv_lshl_add_u32 v3, v4, 4, v3")
            a(f"v_cmp_gt_u32 vcc, s69, v2\nv_mov_b32 v4, {OOB}\nv_cndmask_b32 v{dst+n}, v4, v3, vcc")
    def panel96_issue(self, areg, gbase, s, ldsbase, tag):
        a = self.a
        a(f"s_mov_b32 s61, {gbase + s*8*CS}")
        for n in range(3):
            a(f"s_add_u32 m0, s65, {ldsbase + n*1024}")
            a(f"buffer_load_dwordx4 v{areg+n}, {srd(SWS)}, s61 offen{self.sc} lds")
            self.vissue(tag)
    def c24_addr(self):
        a = self.a
        a("s_lshr_b32 s70, s23, 1\ns_and_b32 s71, s23, 1")
        a("v_lshrrev_b32 v11, 3, v1\nv_and_b32 v11, 3, v11\ns_lshl_b32 s3, s71, 1\nv_xor_b32 v11, s3, v11")
        a("v_lshrrev_b32 v2, 2, v1\nv_lshlrev_b32 v2, 7, v2\nv_and_b32 v3, 3, v1\nv_lshl_add_u32 v2, v3, 3, v2")
        a("v_xor_b32 v3, 1, v11\nv_lshl_add_u32 v5, v3, 5, v2\nv_lshl_add_u32 v2, v11, 5, v2")
        self.mk3(2); self.mk3(5)
        a("v_lshrrev_b32 v8, 4, v1\nv_mul_u32_u24 v8, 1536, v8\nv_and_b32 v11, 15, v1\nv_lshl_add_u32 v8, v11, 4, v8")
        a("s_mul_i32 s3, s70, 768\nv_add_u32 v8, s3, v8")
        self.mk3(8)
    def c24_loop(self, nst, aoff, boff, ACC, FB):
        a = self.a
        def reads(s):
            fb = FB[s % 2]; r = []
            for ks in range(2):
                f = fb + 20*ks
                for t in range(3):
                    r.append(f"ds_read_b128 v[{f+8+4*t}:{f+11+4*t}], {self.ad(8, boff(s) + ks*4*1536 + t*256)}")
                for j in range(2):
                    for rd in range(2):
                        r.append(f"ds_read_b64_tr_b16 v[{f+4*j+2*rd}:{f+4*j+2*rd+1}], {self.ad(2+3*j, aoff(s) + ks*4096 + rd*2048)}")
            return r
        def mfmas(s):
            fb = FB[s % 2]; r = []
            for ks in range(2):
                f = fb + 20*ks
                for j in range(2):
                    for t in range(3):
                        c = ACC + (t*2+j)*4
                        cs = "0" if (s == 0 and ks == 0) else f"v[{c}:{c+3}]"
                        r.append(f"v_mfma_f32_16x16x32_bf16 v[{c}:{c+3}], v[{f+4*j}:{f+4*j+3}], v[{f+8+4*t}:{f+11+4*t}], {cs}")
            return r
        for s in range(nst):
            a("s_barrier")
            rd = reads(s); mf = mfmas(s-1) if s else []
            i = 0
            for m in mf:
                for x in rd[i:i+2]: a(x)
                i += 2
                a(m)
            for x in rd[i:]: a(x)
            a("s_waitcnt lgkmcnt(0)")
        a("s_barrier")
        for m in mfmas(nst-1): a(m)
    def c24_rowaddr(self):
        a = self.a
        a("v_and_b32 v12, 15, v1\ns_mul_i32 s3, s70, 48\nv_add_u32 v12, s3, v12")
        a("v_lshrrev_b32 v13, 4, v1\nv_and_b32 v14, 1, v13\nv_lshlrev_b32 v14, 1, v14\nv_lshrrev_b32 v11, 1, v13\nv_add_u32 v14, v14, v11")
        a("s_lshl_b32 s3, s71, 2\nv_add_u32 v14, s3, v14")
    def c24_addr_rm(self, dst):
        a = self.a
        for t in range(3):
            a(f"v_add_u32 v11, {16*t}, v12\nv_cmp_gt_u32 vcc, s69, v11\nv_add_u32 v11, s68, v11\nv_mul_u32_u24 v11, 1280, v11")
            a(f"v_lshl_add_u32 v11, v14, 4, v11\ns_lshl_b32 s3, s67, 7\nv_add_u32 v11, s3, v11")
            a(f"v_mov_b32 v{dst+t}, {OOB}\nv_cndmask_b32 v{dst+t}, v{dst+t}, v11, vcc")
    def c24_addr_panel(self, dst):
        a = self.a
        for t in range(3):
            a(f"s_lshl_b32 s3, s67, 3\nv_add_u32 v{dst+t}, s3, v14\nv_mul_u32_u24 v{dst+t}, {CS}, v{dst+t}")
            a(f"v_add_u32 v11, {16*t}, v12\nv_cmp_gt_u32 vcc, s69, v11\nv_add_u32 v11, s68, v11")
            a(f"v_lshl_add_u32 v11, v11, 4, v{dst+t}")
            a(f"v_mov_b32 v{dst+t}, {OOB}\nv_cndmask_b32 v{dst+t}, v{dst+t}, v11, vcc")
    def c24_sum(self, ACC, RES, OUT, T):
        a = self.a
        for t in range(3):
            A = ACC + t*8; B = A + 4
            for r in range(4): a(f"v_permlane16_swap_b32 v{A+r}, v{B+r}")
            for d in range(4):
                a(f"v_lshlrev_b32 v{T+2*d}, 16, v{RES+4*t+d}\nv_and_b32 v{T+2*d+1}, 0xffff0000, v{RES+4*t+d}")
            for d in range(4):
                a(f"v_pk_add_f32 v[{T+2*d}:{T+2*d+1}], v[{T+2*d}:{T+2*d+1}], v[{A+2*d}:{A+2*d+1}]")
            for d in range(4):
                a(f"v_cvt_pk_bf16_f32 v{OUT+4*t+d}, v{T+2*d}, v{T+2*d+1}")

    P2_WO = 0; P2_RING = 81920; P2_NS = 6
    HREG = 240
    def p2_setup(self):
        self.p24_ids()
    def p2_wo_issue(self):
        a = self.a
        self.w64_addr(200, 8); self.w64_addr(201, 40)
        a(f"s_mul_i32 s64, s23, {160*1280}\ns_mul_i32 s65, s23, {5*4096}")
        for kk in range(5):
            for io in range(4):
                q = 4*kk + 2*(io % 2); rd = io // 2; hg = q // 10; c = q % 10
                if c < 8: row = 80*hg + 20*(c//2) + 4*rd; reg = 200
                else: row = 80*hg + 20*rd + 16; reg = 201
                a(f"s_add_u32 s61, s64, {row*1280}")
                a(f"s_add_u32 m0, s65, {self.P2_WO + kk*4096 + io*1024}")
                a(f"buffer_load_dwordx4 v{reg}, {srd(SWO)}, s61 offen lds")
                self.vissue("wo")
    def p2(self):
        a = self.a
        Lld = self.lab("P2ld"); Ldone = self.lab("P2done")
        a(f"s_cmp_ge_u32 s57, 30\ns_cbranch_scc1 {Ldone}")
        a(f"s_cmp_ge_u32 s22, 4\ns_cbranch_scc1 {Lld}")
        self.vreset()
        self.p24_ids(); self.c24_addr(); self.c24_rowaddr()
        XR = 220
        self.c24_addr_rm(16)
        for t in range(3):
            a(f"buffer_load_dwordx4 v[{XR+4*t}:{XR+4*t+3}], v{16+t}, {srd(SX)}, 0 offen")
        self.c24_addr_panel(16)
        ACC = 100
        self.c24_loop(10, lambda s: self.P2_WO + s*8192, lambda s: self.P2_RING + (s % self.P2_NS)*12288, ACC, [20, 60])
        a("s_waitcnt vmcnt(0)")
        H = self.HREG
        self.c24_sum(ACC, XR, H, 20)
        a(f"s_mov_b32 s61, {H_BASE}")
        for t in range(3):
            a(f"buffer_store_dwordx4 v[{H+4*t}:{H+4*t+3}], v{16+t}, {srd(SWS)}, s61 offen{self.sc}")
        a("v_mov_b32 v30, 0x3f803f80")
        for t in range(3):
            a(f"v_mov_b32 v{20+2*t}, 0\nv_mov_b32 v{21+2*t}, 0")
        for d in range(4):
            for t in range(3):
                a(f"v_dot2c_f32_bf16 v{20+2*t}, v{H+4*t+d}, v30\nv_dot2c_f32_bf16 v{21+2*t}, v{H+4*t+d}, v{H+4*t+d}")
        for t in range(3): a(f"v_permlane32_swap_b32 v{20+2*t}, v{21+2*t}")
        for t in range(3): a(f"v_add_f32 v{20+2*t}, v{20+2*t}, v{21+2*t}")
        a("v_mov_b32 v25, v24")
        a("v_permlane16_swap_b32 v20, v22\nv_permlane16_swap_b32 v24, v25")
        a("v_add_f32 v20, v20, v22\nv_add_f32 v24, v24, v25")
        a("v_and_b32 v26, 1, v13\nv_lshl_add_u32 v26, v26, 4, v12\nv_add_u32 v27, 32, v12\nv_lshrrev_b32 v28, 1, v13\nv_lshlrev_b32 v28, 2, v28")
        a(f"v_mov_b32 v29, {OOB}")
        for r in (26, 27):
            a(f"v_cmp_gt_u32 vcc, s69, v{r}\nv_add_u32 v{r}, s68, v{r}\nv_lshl_add_u32 v{r}, v{r}, 3, v28\nv_cndmask_b32 v{r}, v29, v{r}, vcc")
        a(f"s_lshl_b32 s61, s67, 1\ns_add_u32 s61, s61, s71\ns_lshl_b32 s61, s61, 14\ns_add_u32 s61, s61, {ST_BASE}")
        a(f"buffer_store_dword v20, v26, {srd(SWS)}, s61 offen{self.sc}")
        a(f"buffer_store_dword v24, v27, {srd(SWS)}, s61 offen{self.sc}")
        a(f"s_branch {Ldone}")
        a(f"{Lld}:")
        self.vreset()
        if not self.persist:
            self.p2_setup(); self.p2_wo_issue()
        self.panel96_addr(202)
        a("s_mul_i32 s65, s23, 3072")
        NS = self.P2_NS
        iss = lambda s: self.panel96_issue(202, O_BASE, s, self.P2_RING + (s % NS)*12288, ("o", s))
        for s in range(NS): iss(s)
        self.vwait([("o", 0)])
        for s in range(10):
            a("s_barrier")
            if s >= 1 and s + NS - 1 <= 9: iss(s + NS - 1)
            if s + 1 <= 9: self.vwait([("o", s + 1)])
        a("s_barrier")
        a(f"{Ldone}:")

    P3_H = 0; P3_HN = 3; P3_W = 49152; P3_WN = 7; P3_CS = LDS - 2048; P3_ST = LDS - 1024
    def p3_ids(self):
        a = self.a
        a("s_cmp_ge_u32 s57, 14\ns_cselect_b32 s3, 1, 0\ns_cselect_b32 s73, 14, 0\ns_sub_u32 s73, s57, s73")
        a("s_lshl_b32 s72, s56, 1\ns_add_u32 s72, s72, s3\ns_lshl_b32 s72, s72, 7")
    def p3_w_setup(self):
        a = self.a
        self.p3_ids()
        a("v_lshrrev_b32 v2, 4, v1\nv_lshlrev_b32 v3, 2, v2\nv_and_b32 v4, 15, v1\nv_xor_b32 v4, v4, v3")
        a("v_mul_u32_u24 v205, 3456, v2\nv_lshl_add_u32 v205, v4, 4, v205")
        a(f"s_lshl_b32 s3, s73, 8\ns_mul_i32 s61, s23, {16*3456}\ns_add_u32 s3, s3, s61\nv_add_u32 v205, s3, v205")
        a("v_lshlrev_b32 v206, 8, v2\nv_lshl_add_u32 v206, v4, 4, v206")
        a("s_lshl_b32 s64, s23, 12\nv_add_u32 v206, s64, v206")
        self.mk3(206)
        for e in range(8): a(f"v_mov_b32 v{210+e}, 0")
    def p3_w_issue(self, s):
        a = self.a
        for n in range(4):
            a(f"s_mov_b32 s61, {(s*64 + 4*n)*3456}")
            a(f"s_add_u32 m0, s64, {self.P3_W + (s % self.P3_WN)*16384 + n*1024}")
            a(f"buffer_load_dwordx4 v205, {srd(SW1)}, s61 offen lds")
            self.vissue(("w1", s))
    def p3_colsum(self, s):
        a = self.a
        for n in range(4):
            a(f"ds_read_b128 v[{20+4*n}:{23+4*n}], {self.ad(206, self.P3_W + (s % self.P3_WN)*16384 + n*1024)}")
        for n in range(4):
            a(f"s_waitcnt lgkmcnt({3-n})")
            for d in range(4):
                r = 20 + 4*n + d
                a(f"v_lshlrev_b32 v2, 16, v{r}\nv_and_b32 v3, 0xffff0000, v{r}\nv_add_f32 v{210+2*d}, v{210+2*d}, v2\nv_add_f32 v{211+2*d}, v{211+2*d}, v3")
    def p3(self):
        a = self.a
        Lld = self.lab("P3ld"); Ldone = self.lab("P3done")
        a(f"s_cmp_ge_u32 s57, 28\ns_cbranch_scc1 {Ldone}")
        a(f"s_cmp_ge_u32 s22, 4\ns_cbranch_scc1 {Lld}")
        self.p3_ids()
        a("s_lshr_b32 s70, s23, 1\ns_and_b32 s71, s23, 1")
        a("v_lshrrev_b32 v11, 2, v1\nv_and_b32 v11, 3, v11")
        a("v_lshrrev_b32 v2, 5, v1\nv_lshl_add_u32 v2, v2, 3, v11\nv_lshlrev_b32 v2, 8, v2")
        a("v_lshrrev_b32 v3, 4, v1\nv_and_b32 v3, 1, v3\nv_lshl_add_u32 v2, v3, 5, v2\nv_and_b32 v3, 3, v1\nv_lshl_add_u32 v2, v3, 3, v2")
        a("s_lshl_b32 s3, s71, 1\nv_xor_b32 v11, s3, v11")
        a("v_xor_b32 v3, 1, v11\nv_lshl_add_u32 v5, v3, 6, v2\nv_lshl_add_u32 v2, v11, 6, v2")
        self.mk3(2); self.mk3(5)
        a("v_lshrrev_b32 v8, 5, v1\nv_lshlrev_b32 v8, 11, v8\nv_and_b32 v11, 31, v1\nv_lshl_add_u32 v8, v11, 4, v8")
        a("s_lshl_b32 s3, s70, 10\nv_add_u32 v8, s3, v8")
        ACC = 100; FB = [20, 36]
        def reads(u):
            s, ks = divmod(u, 4); f = FB[u % 2]; r = []
            for t in range(2):
                r.append(f"ds_read_b128 v[{f+8+4*t}:{f+11+4*t}], v8 offset:{self.P3_H + (s % self.P3_HN)*16384 + ks*4096 + t*512}")
            for j in range(2):
                for rd in range(2):
                    r.append(f"ds_read_b64_tr_b16 v[{f+4*j+2*rd}:{f+4*j+2*rd+1}], {self.ad(2+3*j, self.P3_W + (s % self.P3_WN)*16384 + ks*4096 + rd*1024)}")
            return r
        def mfmas(u):
            f = FB[u % 2]; r = []
            for j in range(2):
                for t in range(2):
                    c = ACC + (j*2+t)*16
                    cs = "0" if u == 0 else f"v[{c}:{c+15}]"
                    r.append(f"v_mfma_f32_32x32x16_bf16 v[{c}:{c+15}], v[{f+4*j}:{f+4*j+3}], v[{f+8+4*t}:{f+11+4*t}], {cs}")
            return r
        for u in range(40):
            if u % 4 == 0: a("s_barrier")
            rd = reads(u); mf = mfmas(u-1) if u else []
            i = 0
            for m in mf:
                for x in rd[i:i+3]: a(x)
                i += 3
                a(m)
            for x in rd[i:]: a(x)
            a("s_waitcnt lgkmcnt(0)")
        a("s_barrier")
        CSR = 52; STR = 84
        a("v_lshrrev_b32 v11, 5, v1\nv_lshlrev_b32 v2, 4, v11")
        a(f"s_lshl_b32 s3, s71, 8\ns_add_u32 s3, s3, {self.P3_CS}\nv_add_u32 v2, s3, v2")
        a("v_and_b32 v12, 31, v1\nv_lshlrev_b32 v3, 3, v12")
        a(f"s_lshl_b32 s3, s70, 9\ns_add_u32 s3, s3, {self.P3_ST}\nv_add_u32 v3, s3, v3")
        for t in range(2): a(f"ds_read_b64 v[{STR+4*t}:{STR+4*t+1}], v3 offset:{256*t}")
        for j in range(2):
            for q in range(4): a(f"ds_read_b128 v[{CSR+16*j+4*q}:{CSR+16*j+4*q+3}], v2 offset:{128*j + 32*q}")
        for m in mfmas(39): a(m)
        a(f"v_mul_u32_u24 v4, {CS}, v11\nv_lshl_add_u32 v4, v12, 4, v4")
        a(f"s_lshl_b32 s60, s73, 1\ns_add_u32 s60, s60, s71")
        a(f"s_cmp_ge_u32 s60, 27\ns_cbranch_scc1 {Ldone}")
        a(f"s_mul_i32 s60, s60, {8*CS}\ns_lshl_b32 s3, s70, 6\ns_add_u32 s3, s3, s72\ns_lshl_b32 s3, s3, 4\ns_add_u32 s60, s60, s3\ns_add_u32 s60, s60, {G_BASE}")
        a("v_mov_b32 v6, 1.0")
        a("s_waitcnt lgkmcnt(0)")
        for t in range(2):
            a(f"v_mul_f32 v{STR+4*t+2}, -1.4426950408889634, v{STR+4*t}")
            a(f"v_mov_b32 v{92+2*t}, v{STR+4*t+1}")
        T = 20
        for j in range(2):
            for t in range(2):
                c = ACC + (j*2+t)*16
                A_ = STR + 4*t; M_ = 92 + 2*t
                for qq in range(0, 4, 2):
                    o = T + 16 + 4*((qq//2) % 2)
                    for p in range(4):
                        x = c + 4*qq + 2*p; k = CSR + 16*j + 4*qq + 2*p
                        a(f"v_pk_fma_f32 v[{x}:{x+1}], v[{k}:{k+1}], v[{M_}:{M_+1}], v[{x}:{x+1}] op_sel_hi:[1,0,1] neg_lo:[0,1,0] neg_hi:[0,1,0]")
                    for p in range(4):
                        x = c + 4*qq + 2*p
                        a(f"v_pk_mul_f32 v[{T+2*p}:{T+2*p+1}], v[{x}:{x+1}], v[{A_+2}:{A_+3}] op_sel_hi:[1,0]")
                    for p in range(8): a(f"v_exp_f32 v{T+p}, v{T+p}")
                    for p in range(4):
                        x = c + 4*qq + 2*p
                        a(f"v_pk_mul_f32 v[{x}:{x+1}], v[{x}:{x+1}], v[{A_}:{A_+1}] op_sel_hi:[1,0]")
                    for p in range(4):
                        a(f"v_pk_add_f32 v[{T+2*p}:{T+2*p+1}], v[{T+2*p}:{T+2*p+1}], v[6:7] op_sel_hi:[1,0]")
                    for p in range(8): a(f"v_rcp_f32 v{T+p}, v{T+p}")
                    for p in range(4):
                        x = c + 4*qq + 2*p
                        a(f"v_pk_mul_f32 v[{x}:{x+1}], v[{x}:{x+1}], v[{T+2*p}:{T+2*p+1}]")
                    for p in range(4):
                        x = c + 4*qq + 2*p
                        a(f"v_cvt_pk_bf16_f32 v{o+p}, v{x}, v{x+1}")
                    a(f"v_permlane32_swap_b32 v{o}, v{o+2}\nv_permlane32_swap_b32 v{o+1}, v{o+3}")
                    a(f"s_add_u32 s61, s60, {(4*j + qq)*CS + 512*t}")
                    a(f"buffer_store_dwordx4 v[{o}:{o+3}], v4, {srd(SWS)}, s61 offen{self.sc}")
        a(f"s_branch {Ldone}")
        a(f"{Lld}:")
        self.vreset()
        if not self.persist:
            self.p3_w_setup()
        a(f"s_mul_i32 s3, s23, {2*CS}\ns_lshl_b32 s61, s72, 4\ns_add_u32 s3, s3, s61\nv_lshl_add_u32 v204, v1, 4, s3")
        def hiss(s):
            for n in range(4):
                a(f"s_mov_b32 s61, {H_BASE + (8*s + n//2)*CS + (n % 2)*1024}")
                a(f"s_add_u32 m0, s64, {self.P3_H + (s % self.P3_HN)*16384 + n*1024}")
                a(f"buffer_load_dwordx4 v204, {srd(SWS)}, s61 offen{self.sc} lds")
                self.vissue(("h", s))
        if not self.persist:
            for s in range(3):
                hiss(s); self.p3_w_issue(s)
            for s in range(3, 7): self.p3_w_issue(s)
        ncs = 0
        self.vwait([("h", 0), ("w1", 0)])
        for s in range(10):
            a("s_barrier")
            if s >= 1 and s + 2 <= 9: hiss(s + 2)
            if s >= 1 and s + 6 <= 9: self.p3_w_issue(s + 6)
            if s == 7:
                a(f"v_lshlrev_b32 v2, 3, v1\nv_add_u32 v2, {self.P3_CS}, v2\nv_mov_b32 v4, 0\nv_mov_b32 v5, 0\nds_write_b64 v2, v[4:5]")
                a("v_and_b32 v2, 31, v1\nv_lshrrev_b32 v3, 5, v1\nv_lshlrev_b32 v3, 14, v3\nv_lshl_add_u32 v2, v2, 3, v3")
                a("s_lshl_b32 s3, s23, 5\ns_add_u32 s3, s3, s72\ns_lshl_b32 s3, s3, 3\nv_add_u32 v2, s3, v2")
                for n in range(10):
                    a(f"s_mov_b32 s61, {ST_BASE + n*32768}")
                    a(f"buffer_load_dwordx2 v[{40+2*n}:{41+2*n}], v2, {srd(SWS)}, s61 offen{self.sc}")
                    self.vissue("st")
            self.p3_colsum(s)
            if s == 9:
                for e in range(4): a(f"v_permlane32_swap_b32 v{210+e}, v{214+e}")
                for e in range(4): a(f"v_add_f32 v{210+e}, v{210+e}, v{214+e}")
                for e in range(2): a(f"v_permlane16_swap_b32 v{210+e}, v{212+e}")
                for e in range(2): a(f"v_add_f32 v{210+e}, v{210+e}, v{212+e}")
                a("v_and_b32 v2, 15, v1\nv_lshlrev_b32 v2, 5, v2\nv_lshrrev_b32 v3, 4, v1\nv_lshl_add_u32 v2, v3, 3, v2")
                a(f"v_add_u32 v2, {self.P3_CS}, v2")
                a("ds_add_f32 v2, v210\nds_add_f32 v2, v211 offset:4")
                self.vwait("st")
                for n in range(1, 10): a(f"v_pk_add_f32 v[40:41], v[40:41], v[{40+2*n}:{41+2*n}]")
                a("v_mov_b32 v42, v40\nv_mov_b32 v43, v41")
                a("v_permlane32_swap_b32 v40, v42\nv_permlane32_swap_b32 v41, v43")
                a("v_add_f32 v40, v40, v42\nv_add_f32 v41, v41, v43")
                a(f"v_mul_f32 v43, {1.0/640!r}, v40\nv_mul_f32 v41, {1.0/640!r}, v41")
                a("v_fma_f32 v41, -v43, v43, v41\nv_max_f32 v41, 0, v41\nv_add_f32 v41, 1e-5, v41\nv_rsq_f32 v42, v41")
                a(f"v_and_b32 v2, 31, v1\nv_lshlrev_b32 v2, 3, v2\ns_lshl_b32 s3, s23, 8\ns_add_u32 s3, s3, {self.P3_ST}\nv_add_u32 v2, s3, v2")
                a("ds_write_b64 v2, v[42:43]")
            a("s_waitcnt lgkmcnt(0)")
            if s + 1 <= 9: self.vwait([("h", s + 1), ("w1", s + 1)])
        a("s_barrier")
        a(f"{Ldone}:")

    P4_W = 0; P4_WN = 14; P4_G = 114688; P4_GN = 4
    def p4_w_setup(self):
        a = self.a
        self.w64_addr(200, 8)
        a("s_and_b32 s3, s23, 1\ns_lshl_b32 s3, s3, 4\ns_lshr_b32 s61, s23, 1\ns_lshl_b32 s61, s61, 2\ns_add_u32 s3, s3, s61\ns_mul_i32 s3, s3, 1280")
        a("v_add_u32 v200, s3, v200\ns_lshl_b32 s64, s23, 10")
    def p4_w_issue(self, s):
        a = self.a
        for ks in range(2):
            a(f"s_mov_b32 s61, {(s*64 + 32*ks)*1280}")
            a(f"s_add_u32 m0, s64, {self.P4_W + (s % self.P4_WN)*8192 + ks*4096}")
            a(f"buffer_load_dwordx4 v200, {srd(SW2)}, s61 offen lds")
            self.vissue(("w2", s))
    def p4(self):
        a = self.a
        Lld = self.lab("P4ld"); Ldone = self.lab("P4done")
        a(f"s_cmp_ge_u32 s57, 30\ns_cbranch_scc1 {Ldone}")
        a(f"s_cmp_ge_u32 s22, 4\ns_cbranch_scc1 {Lld}")
        self.p24_ids(); self.c24_addr(); self.c24_rowaddr()
        H = self.HREG
        if not self.persist:
            self.c24_addr_panel(16)
            a(f"s_mov_b32 s61, {H_BASE}")
            for t in range(3):
                a(f"buffer_load_dwordx4 v[{H+4*t}:{H+4*t+3}], v{16+t}, {srd(SWS)}, s61 offen")
        self.c24_addr_rm(16)
        ACC = 100
        self.c24_loop(27, lambda s: self.P4_W + (s % self.P4_WN)*8192, lambda s: self.P4_G + (s % self.P4_GN)*12288, ACC, [20, 60])
        a("s_waitcnt vmcnt(0)")
        self.c24_sum(ACC, H, 40, 20)
        for t in range(3):
            a(f"buffer_store_dwordx4 v[{40+4*t}:{43+4*t}], v{16+t}, {srd(SOUT)}, 0 offen")
        a(f"s_branch {Ldone}")
        a(f"{Lld}:")
        self.vreset()
        if not self.persist:
            self.p24_ids(); self.p4_w_setup()
        self.panel96_addr(202)
        a("s_mul_i32 s65, s23, 3072")
        GN = self.P4_GN; WN = self.P4_WN if self.persist else 4
        gis = lambda s: self.panel96_issue(202, G_BASE, s, self.P4_G + (s % GN)*12288, ("g", s))
        for s in range(GN):
            gis(s)
            if not self.persist: self.p4_w_issue(s)
        self.vwait([("g", 0), ("w2", 0)])
        for s in range(27):
            a("s_barrier")
            if s >= 1 and s + GN - 1 <= 26: gis(s + GN - 1)
            if s >= 1 and s + WN - 1 <= 26: self.p4_w_issue(s + WN - 1)
            if s + 1 <= 26: self.vwait([("g", s + 1), ("w2", s + 1)])
        a("s_barrier")
        a(f"{Ldone}:")

    def text(self):
        L, n = hazard.fix(self.L)
        nm = self.name
        return "\n".join([f".globl {nm}", ".p2align 8", f".type {nm},@function", f"{nm}:"] + L) + "\n"
    def desc(self):
        return "\n".join([".p2align 6", f".amdhsa_kernel {self.name}",
            "  .amdhsa_next_free_vgpr 256", "  .amdhsa_next_free_sgpr 102", "  .amdhsa_accum_offset 256",
            "  .amdhsa_group_segment_fixed_size 0", "  .amdhsa_kernarg_size 72", "  .amdhsa_user_sgpr_count 2",
            "  .amdhsa_user_sgpr_kernarg_segment_ptr 1", "  .amdhsa_system_sgpr_workgroup_id_x 1",
            "  .amdhsa_float_denorm_mode_32 3",
            ".end_amdhsa_kernel"]) + "\n"

def header():
    ref = open(f"cdna_kernels/{NAME}.s.ref").read().split("\n")
    return [l for l in ref if l.startswith(";") and "@launch" not in l]

def build_multi():
    ks = []
    for i, ph in enumerate(("p1", "p2", "p3", "p4")):
        g = G(NAME + "_kernel" if i == 0 else f"blk_{ph}_kernel", False)
        g.prologue(256); getattr(g, ph)(); g.end(); ks.append(g)
    out = header()
    for g in ks: out.append(f"; @launch kernel={g.name} grid=(256,1,1) block=(512,1,1) lds={LDS}")
    out += ['.amdgcn_target "amdgcn-amd-amdhsa--gfx950"', ".text"]
    out += [g.text() for g in ks]
    out.append('.section .rodata,"a"')
    out += [g.desc() for g in ks]
    return "\n".join(out)

if __name__ == "__main__":
    mode = sys.argv[1]; path = sys.argv[2]
    txt = build_multi() if mode == "multi" else None
    open(path, "w").write(txt)
    import subprocess
    r = subprocess.run(["clang", "-x", "assembler", "-target", "amdgcn-amd-amdhsa", "-mcpu=gfx950", "-c", path, "-o", "chk.o"], capture_output=True, text=True)
    print(r.stderr[:3000] if r.returncode else "assembled ok", len(txt))
```

```python
import sys
sys.path.insert(0, "dev")
import hazard

NAME = "sequential_preLN__sliding_local_dilated__dense_activation_silu__prompt"
S, D, F = 2048, 640, 1728
CS = 2048 * 16
O_BASE = 0
H_BASE = 80 * CS
ST_BASE = 160 * CS
G_BASE = 0x600000
FL_BASE = 0xE00000
TS_BASE = 0xF00000
WS_SIZE = 0x1000000
OOB = 0x80000000
LDS = 163840
SX, SWQ, SWO, SW1, SW2, SOUT, SDBG, SWS = 24, 28, 32, 36, 40, 44, 48, 52
def srd(n): return f"s[{n}:{n+3}]"
def vr(a, n=1): return f"v{a}" if n == 1 else f"v[{a}:{a+n-1}]"

class G:
    NL = 0
    def __init__(self, name, persist, dbg=False):
        self.name = name; self.L = []; self.n = 0; self.persist = persist; self.dbg = dbg
        self.kidx = 0
        self.sc = " sc1" if persist else ""
        self.vm = []
    def a(self, s):
        for line in s.split("\n"):
            line = line.strip()
            if line: self.L.append(line if line.endswith(":") else "    " + line)
    def lab(self, b="L"):
        G.NL += 1; return f"{b}_{G.NL}"
    def vissue(self, tag): self.vm.append(tag)
    def vwait(self, tags):
        if not isinstance(tags, (list, tuple, set)): tags = [tags]
        last = -1
        for i, t in enumerate(self.vm):
            if t in tags: last = i
        if last < 0: return
        n = len(self.vm) - 1 - last
        assert n <= 63, n
        self.a(f"s_waitcnt vmcnt({n})")
        self.vm = self.vm[last + 1:]
    def vreset(self): self.vm = []

    def prologue(self, nwg):
        a = self.a
        a("s_load_dwordx16 s[4:19], s[0:1], 0")
        a("s_load_dwordx2 s[20:21], s[0:1], 64")
        a(f"s_cmp_ge_u32 s2, {nwg}")
        a(f"s_cbranch_scc1 Lend_{self.name}")
        a("v_and_b32 v1, 63, v0")
        a("v_lshrrev_b32 v2, 6, v0")
        a("v_readfirstlane_b32 s22, v2")
        a("s_and_b32 s56, s2, 7")
        a("s_lshr_b32 s57, s2, 3")
        a("s_and_b32 s23, s22, 3")
        if self.dbg: a("v_mov_b32 v255, 0")
        self.ts(0); self.tc(16)
        a("s_waitcnt lgkmcnt(0)")
        for d, b, n in ((SX, 4, S*D*2), (SWQ, 6, D*3*D*2), (SWO, 8, D*D*2), (SW1, 12, D*F*2), (SW2, 14, F*D*2),
                        (SOUT, 16, S*D*2), (SDBG, 18, 256), (SWS, 20, WS_SIZE)):
            a(f"s_mov_b32 s{d}, s{b}\ns_mov_b32 s{d+1}, s{b+1}\ns_mov_b32 s{d+2}, {n}\ns_mov_b32 s{d+3}, 0x00020000")
    def tc(self, i):
        if not self.dbg: return
        self.a(f"s_memtime s[80:81]\ns_waitcnt lgkmcnt(0)\nv_writelane_b32 v255, s80, {i}")
    def ts(self, i):
        if not self.dbg: return
        self.a(f"s_memrealtime s[80:81]\ns_waitcnt lgkmcnt(0)\nv_writelane_b32 v255, s80, {i}")
    def end(self):
        self.a(f"Lfin_{self.name}:")
        if self.dbg:
            self.a("s_waitcnt vmcnt(0)")
            self.ts(15); self.tc(17)
            self.a(f"s_lshl_b32 s80, s2, 3\ns_add_u32 s80, s80, s22\ns_lshl_b32 s80, s80, 7\ns_add_u32 s80, s80, {TS_BASE + self.kidx*0x40000}")
            self.a(f"v_lshlrev_b32 v2, 2, v1\ns_mov_b32 exec_hi, 0\nbuffer_store_dword v255, v2, {srd(SWS)}, s80 offen")
        self.a(f"Lend_{self.name}:\ns_endpgm")

    FS = 64
    def flag_clear(self):
        a = self.a
        Lk = self.lab("fc")
        a(f"s_cmp_lg_u32 s22, 0\ns_cbranch_scc1 {Lk}")
        a(f"v_mul_u32_u24 v2, {256*self.FS}, v1\nv_mov_b32 v3, 0\ns_mul_i32 s61, s2, {self.FS}\ns_add_u32 s61, s61, {FL_BASE}")
        a(f"s_mov_b64 exec, 7\nbuffer_store_dword v3, v2, {srd(SWS)}, s61 offen sc1\ns_mov_b64 exec, -1")
        a(f"{Lk}:")
    def flag_count(self):
        a = self.a
        Lk = self.lab("fc")
        a(f"s_cmp_lg_u32 s22, 0\ns_cbranch_scc1 {Lk}")
        a("s_and_b32 s61, s2, 3\ns_lshl_b32 s61, s61, 6\nv_mov_b32 v3, 1")
        a(f"s_mov_b64 exec, 1\nbuffer_atomic_add v3, off, {srd(SDBG)}, s61\ns_mov_b64 exec, -1")
        a(f"{Lk}:")
    def poll(self, sr, stride, val):
        a = self.a
        Lp = self.lab("poll"); Lq = self.lab("pollx")
        a(f"v_mul_u32_u24 v2, {stride}, v1\ns_bfm_b64 exec, s60, 0\ns_mov_b32 s60, 0x100000")
        a(f"{Lp}:")
        a(f"buffer_load_dword v3, v2, {srd(sr)}, s61 offen sc1")
        a(f"s_sub_u32 s60, s60, 1\ns_cbranch_scc1 {Lq}")
        a("s_waitcnt vmcnt(0)")
        a(f"v_cmp_ne_u32 vcc, {val}, v3\ns_cbranch_vccnz {Lp}")
        a(f"{Lq}:")
        a("s_waitcnt vmcnt(0)\ns_mov_b64 exec, -1")
        self.vreset()
    def count_poll(self):
        a = self.a
        Lk = self.lab("cp")
        a(f"s_waitcnt vmcnt(0)\ns_mov_b64 exec, 15\nv_cmp_ne_u32 vcc, 64, v96\ns_mov_b64 exec, -1\ns_cbranch_vccz {Lk}")
        a("s_mov_b32 s61, 0\ns_mov_b32 s60, 4")
        self.poll(SDBG, 64, 64)
        a(f"{Lk}:")
    def signal(self, ph):
        a = self.a
        Lk = self.lab("sg")
        a("s_barrier")
        a(f"s_cmp_lg_u32 s22, 0\ns_cbranch_scc1 {Lk}")
        a(f"s_mul_i32 s61, s74, {self.FS}\ns_add_u32 s61, s61, {FL_BASE + ph*256*self.FS}\nv_mov_b32 v3, 1")
        a(f"s_mov_b64 exec, 1\nbuffer_store_dword v3, off, {srd(SWS)}, s61 sc1\ns_mov_b64 exec, -1")
        a(f"{Lk}:")
    def wait_flags(self, ph):
        self.a(f"s_mul_i32 s61, s61, {self.FS}\ns_add_u32 s61, s61, {FL_BASE + ph*256*self.FS}")
        self.poll(SWS, self.FS, 1)

    def mk3(self, r):
        self.a(f"v_add_u32 v{r+1}, 0x10000, v{r}\nv_add_u32 v{r+2}, 0x20000, v{r}")
    def ad(self, r, off):
        return f"v{r + (off >> 16)} offset:{off & 0xffff}"

    P1_RING = 0; P1_SLOT = 15360; P1_X = 61440; P1_XS = 1312; P1_QKV = 81920; P1_QS = 488
    def ln_group(self, X, vrow):
        a = self.a
        a("v_mov_b32 v2, 0\nv_mov_b32 v3, 0\nv_mov_b32 v4, 0\nv_mov_b32 v5, 0")
        for i in range(0, 20, 2):
            a(f"v_dot2c_f32_bf16 v2, v{X+i}, v12\nv_dot2c_f32_bf16 v3, v{X+i}, v{X+i}")
            a(f"v_dot2c_f32_bf16 v4, v{X+i+1}, v12\nv_dot2c_f32_bf16 v5, v{X+i+1}, v{X+i+1}")
        a("v_add_f32 v2, v2, v4\nv_add_f32 v3, v3, v5")
        for sh in (8, 4, 2, 1):
            a(f"v_add_f32_dpp v2, v2, v2 row_ror:{sh} row_mask:0xf bank_mask:0xf")
            a(f"v_add_f32_dpp v3, v3, v3 row_ror:{sh} row_mask:0xf bank_mask:0xf")
        a(f"v_mul_f32 v2, {1.0/640!r}, v2")
        a(f"v_mul_f32 v3, {1.0/640!r}, v3")
        a("v_fma_f32 v3, -v2, v2, v3")
        a("v_max_f32 v3, 0, v3")
        a("v_add_f32 v3, 1e-5, v3")
        a("v_rsq_f32 v4, v3")
        a("v_mul_f32 v6, -v2, v4")
        for i in range(0, 20, 2):
            a(f"v_lshlrev_b32 v8, 16, v{X+i}\nv_and_b32 v9, 0xffff0000, v{X+i}")
            a(f"v_lshlrev_b32 v10, 16, v{X+i+1}\nv_and_b32 v11, 0xffff0000, v{X+i+1}")
            a("v_pk_fma_f32 v[8:9], v[8:9], v[4:5], v[6:7] op_sel_hi:[1,0,0]")
            a("v_pk_fma_f32 v[10:11], v[10:11], v[4:5], v[6:7] op_sel_hi:[1,0,0]")
            a(f"v_cvt_pk_bf16_f32 v{X+i}, v8, v9\nv_cvt_pk_bf16_f32 v{X+i+1}, v10, v11")
        a(f"v_mul_u32_u24 v2, {self.P1_XS}, v{vrow}")
        a("v_add_u32 v2, v2, v13")
        a(f"v_cmp_gt_u32 vcc, 78, v{vrow}")
        a("s_and_saveexec_b64 s[62:63], vcc")
        for i in range(5):
            a(f"ds_write_b128 v2, v[{X+4*i}:{X+4*i+3}] offset:{256*i}")
        a("s_mov_b64 exec, s[62:63]")

    def p1(self):
        a = self.a
        Lld = self.lab("P1ld"); Latt = self.lab("P1att")
        a("s_and_b32 s58, s56, 1\ns_lshl_b32 s58, s58, 2\ns_and_b32 s3, s57, 3\ns_add_u32 s58, s58, s3")
        a("s_lshr_b32 s59, s56, 1\ns_lshl_b32 s59, s59, 3\ns_lshr_b32 s3, s57, 2\ns_add_u32 s59, s59, s3")
        a("v_mov_b32 v12, 0x3f803f80")
        a("v_and_b32 v13, 15, v1\nv_lshlrev_b32 v13, 4, v13")
        a("v_lshrrev_b32 v14, 4, v1")
        a("s_lshl_b32 s3, s23, 2\nv_add_u32 v14, s3, v14")
        a("s_lshl_b32 s60, s59, 6\ns_sub_u32 s60, s60, 14")
        a("s_cmp_ge_u32 s22, 4")
        a(f"s_cbranch_scc1 {Lld}")
        self.vreset()
        XR = 20
        if self.persist: self.flag_clear()
        for g in range(3):
            a(f"v_add_u32 v{15+g}, {16*g}, v14")
            a(f"v_add_u32 v2, s60, v{15+g}\nv_mul_i32_i24 v2, 1280, v2\nv_add_u32 v2, v2, v13")
            for i in range(5):
                a(f"buffer_load_dwordx4 v[{XR+20*g+4*i}:{XR+20*g+4*i+3}], v2, {srd(SX)}, 0 offen offset:{256*i}")
                self.vissue(("x", g))
        a(f"v_add_u32 v13, {self.P1_X}, v13")
        for g in range(3):
            self.vwait([("x", g)])
            if g == 2 and self.persist: self.flag_count()
            self.ln_group(XR + 20*g, 15 + g)
        a("v_lshrrev_b32 v2, 2, v1\nv_mul_u32_u24 v2, 480, v2\nv_and_b32 v3, 3, v1\nv_lshl_add_u32 v2, v3, 3, v2")
        a("s_lshl_b32 s3, s23, 7\nv_add_u32 v2, s3, v2")
        a(f"v_and_b32 v3, 15, v1\nv_mul_u32_u24 v4, {self.P1_XS}, v3\nv_lshrrev_b32 v3, 4, v1\nv_lshl_add_u32 v4, v3, 4, v4")
        a(f"v_add_u32 v4, {self.P1_X - 2*self.P1_XS}, v4\nv_add_u32 v5, {3*16*self.P1_XS}, v4")
        ACC = 100; FB = [20, 56]
        a("s_waitcnt lgkmcnt(0)")
        self.ts(1)
        def reads(s):
            fb = FB[s % 2]; sl = self.P1_RING + (s % 4) * self.P1_SLOT; r = []
            order = []
            for t in range(5):
                order.append(f"ds_read_b128 v[{fb+16+4*t}:{fb+19+4*t}], v{4 + (t >= 3)} offset:{(t % 3)*16*self.P1_XS + 64*s}")
            for j in range(4):
                for rd in range(2):
                    order.append(f"ds_read_b64_tr_b16 v[{fb+4*j+2*rd}:{fb+4*j+2*rd+1}], v2 offset:{sl + 32*j + 7680*rd}")
            return order
        def mfmas(s):
            fb = FB[s % 2]; r = []
            for j in range(4):
                for t in range(5):
                    c = ACC + (j*5+t)*4
                    cs = "0" if s == 0 else f"v[{c}:{c+3}]"
                    r.append(f"v_mfma_f32_16x16x32_bf16 v[{c}:{c+3}], v[{fb+4*j}:{fb+4*j+3}], v[{fb+16+4*t}:{fb+19+4*t}], {cs}")
            return r
        for s in range(20):
            a("s_barrier")
            if s == 0: self.ts(2)
            if s == 10: self.ts(3)
            if s == 12 and self.persist:
                a(f"v_lshlrev_b32 v97, 6, v1\nbuffer_load_dword v96, v97, {srd(SDBG)}, 0 offen sc1")
            rd = reads(s); mf = mfmas(s-1) if s else []
            for i in range(max(len(rd), len(mf))):
                if i < len(rd): a(rd[i])
                if i < len(mf): a(mf[i])
            a("s_waitcnt lgkmcnt(0)")
        a("s_barrier")
        self.ts(4)
        for m in mfmas(19): a(m)
        a(f"v_and_b32 v3, 15, v1\nv_mul_u32_u24 v2, {self.P1_QS}, v3\nv_lshrrev_b32 v3, 4, v1\nv_lshl_add_u32 v2, v3, 3, v2")
        a(f"s_lshl_b32 s3, s23, 7\ns_add_u32 s3, s3, {self.P1_QKV}\nv_add_u32 v2, s3, v2")
        Lsk = self.lab("P1sk")
        for j in range(4):
            if j == 3:
                a(f"s_cmp_eq_u32 s23, 3\ns_cbranch_scc1 {Lsk}")
            for t in range(5):
                c = ACC + (j*5+t)*4
                a(f"v_cvt_pk_bf16_f32 v{c}, v{c}, v{c+1}\nv_cvt_pk_bf16_f32 v{c+1}, v{c+2}, v{c+3}")
                a(f"ds_write_b64 v2, v[{c}:{c+1}] offset:{t*16*self.P1_QS + 32*j}")
        a(f"{Lsk}:")
        if self.persist: self.count_poll()
        a("s_waitcnt lgkmcnt(0)")
        a(f"s_branch {Latt}")
        a(f"{Lld}:")
        self.vreset()
        for g in range(2):
            a(f"v_add_u32 v{15+g}, {48+16*g}, v14")
            a(f"v_add_u32 v2, s60, v{15+g}\nv_mul_i32_i24 v2, 1280, v2\nv_add_u32 v2, v2, v13")
            for i in range(5):
                a(f"buffer_load_dwordx4 v[{XR+20*g+4*i}:{XR+20*g+4*i+3}], v2, {srd(SX)}, 0 offen offset:{256*i}")
                self.vissue(("x", g))
        a(f"v_add_u32 v13, {self.P1_X}, v13")
        a("v_cmp_le_u32 vcc, 30, v1\nv_cndmask_b32 v2, 0, 1, vcc")
        a("v_mul_u32_u24 v3, 30, v2\nv_sub_u32 v3, v1, v3")
        a("v_mul_u32_u24 v4, 26, v3\nv_lshrrev_b32 v4, 8, v4")
        a("v_mul_u32_u24 v5, 10, v4\nv_sub_u32 v5, v3, v5")
        a("v_mul_u32_u24 v18, 3840, v2\nv_mul_u32_u24 v4, 1280, v4\nv_add_u32 v18, v18, v4\nv_lshl_add_u32 v18, v5, 4, v18")
        a("s_and_b32 s3, s23, 1\ns_lshl_b32 s3, s3, 4\ns_lshr_b32 s61, s23, 1\ns_lshl_b32 s61, s61, 2\ns_add_u32 s3, s3, s61")
        a("s_mul_i32 s3, s3, 3840\ns_mul_i32 s61, s58, 160\ns_add_u32 s3, s3, s61\nv_add_u32 v18, s3, v18")
        a(f"s_mul_i32 s64, s23, {4*960}")
        def issue(s):
            a("s_mov_b32 exec_hi, 0x0fffffff")
            for jj in range(4):
                a(f"s_mov_b32 s61, {(s*32 + [0, 2, 8, 10][jj]) * 3840}")
                a(f"s_add_u32 m0, s64, {self.P1_RING + (s % 4)*self.P1_SLOT + jj*960}")
                a(f"buffer_load_dwordx4 v18, {srd(SWQ)}, s61 offen lds")
                self.vissue(("w", s))
            a("s_mov_b32 exec_hi, -1")
        for s in range(4): issue(s)
        for g in range(2):
            self.vwait([("x", g)])
            self.ln_group(XR + 20*g, 15 + g)
        a("s_waitcnt lgkmcnt(0)")
        self.vwait([("w", 0)])
        for s in range(20):
            a("s_barrier")
            if s >= 1 and s + 3 <= 19: issue(s + 3)
            if s + 1 <= 19: self.vwait([("w", s + 1)])
        a("s_barrier")
        if self.persist:
            a(f"s_cmp_ge_u32 s57, 30\ns_cbranch_scc1 {Latt}")
            self.p2_setup(); self.p2_wo_issue()
        a(f"{Latt}:")
        a("s_barrier")
        self.ts(5)
        self.attention()
        self.ts(6)
        if self.persist:
            a("s_lshl_b32 s74, s59, 3\ns_add_u32 s74, s74, s58")
            a("s_waitcnt vmcnt(0)")
            self.signal(0)
            self.ts(18)
            a(f"s_cmp_ge_u32 s57, 30\ns_cbranch_scc1 Lfin_{self.name}")

    def attention(self):
        a = self.a
        QS = self.P1_QS
        a("s_lshr_b32 s3, s22, 2\ns_lshl_b32 s3, s3, 5")
        a("v_and_b32 v2, 31, v1\nv_add_u32 v2, s3, v2")
        a("v_lshrrev_b32 v3, 5, v1")
        a(f"v_mul_u32_u24 v4, {QS}, v2")
        a(f"s_mul_i32 s3, s23, 40\ns_add_u32 s3, s3, {self.P1_QKV + 16*QS}\nv_add_u32 v4, s3, v4")
        a(f"v_mul_u32_u24 v5, {8*QS}, v3\nv_sub_u32 v5, v4, v5\nv_subrev_u32 v5, {6*QS}, v5")
        Q = 20; Kr = 30; V = 70; P = 110; T = 120; AC = 130
        for c in range(5): a(f"ds_read_b64 v[{Q+2*c}:{Q+2*c+1}], v4 offset:{8*c}")
        for jj in range(4):
            for c in range(5): a(f"ds_read_b64 v[{Kr+10*jj+2*c}:{Kr+10*jj+2*c+1}], v5 offset:{(6-2*jj)*QS + 160 + 8*c}")
        a("s_lshl_b32 s3, s59, 6\nv_add_u32 v6, s3, v2")
        a("v_lshlrev_b32 v7, 3, v3\nv_sub_u32 v7, v6, v7")
        for jj in range(4): a(f"v_mov_b32 v{P+jj}, 0")
        a("s_waitcnt lgkmcnt(0)")
        for jj in range(4):
            for c in range(5): a(f"ds_read_b64 v[{V+10*jj+2*c}:{V+10*jj+2*c+1}], v5 offset:{(6-2*jj)*QS + 320 + 8*c}")
        for d in range(10):
            for jj in range(4): a(f"v_dot2c_f32_bf16 v{P+jj}, v{Q+d}, v{Kr+10*jj+d}")
        SCL = 20 ** -0.5 * 1.4426950408889634
        a("v_mov_b32 v8, 0xceac0000")
        for jj in range(4):
            a(f"v_mul_f32 v{P+jj}, {SCL!r}, v{P+jj}")
            a(f"v_cmp_le_i32 vcc, {2*jj}, v7")
            a(f"v_cndmask_b32 v{P+jj}, v8, v{P+jj}, vcc")
        a(f"v_max3_f32 v9, v{P}, v{P+1}, v{P+2}\nv_max_f32 v9, v9, v{P+3}\nv_mov_b32 v10, v9")
        a("v_permlane32_swap_b32 v9, v10\nv_max_f32 v9, v9, v10")
        for jj in range(4): a(f"v_sub_f32 v{P+jj}, v{P+jj}, v9")
        for jj in range(4): a(f"v_exp_f32 v{P+jj}, v{P+jj}")
        a(f"v_add_f32 v9, v{P}, v{P+1}\nv_add_f32 v10, v{P+2}, v{P+3}\nv_add_f32 v9, v9, v10\nv_mov_b32 v10, v9")
        a("v_permlane32_swap_b32 v9, v10\nv_add_f32 v9, v9, v10\nv_rcp_f32 v9, v9")
        for jj in range(4): a(f"v_mul_f32 v{P+jj}, v{P+jj}, v9")
        a(f"v_cvt_pk_bf16_f32 v{P}, v{P}, v{P+1}\nv_cvt_pk_bf16_f32 v{P+1}, v{P+2}, v{P+3}")
        a("s_mov_b32 s60, 0x05040100\ns_mov_b32 s61, 0x07060302")
        a("s_waitcnt lgkmcnt(0)")
        for d in range(10):
            t = T + 4 * (d % 2)
            a(f"v_perm_b32 v{t}, v{V+10+d}, v{V+d}, s60\nv_perm_b32 v{t+1}, v{V+10+d}, v{V+d}, s61")
            a(f"v_perm_b32 v{t+2}, v{V+30+d}, v{V+20+d}, s60\nv_perm_b32 v{t+3}, v{V+30+d}, v{V+20+d}, s61")
            a(f"v_dot2_f32_bf16 v{AC+2*d}, v{t}, v{P}, 0\nv_dot2_f32_bf16 v{AC+2*d+1}, v{t+1}, v{P}, 0")
            a(f"v_dot2_f32_bf16 v{AC+2*d}, v{t+2}, v{P+1}, v{AC+2*d}\nv_dot2_f32_bf16 v{AC+2*d+1}, v{t+3}, v{P+1}, v{AC+2*d+1}")
        pairs = [(d, d + 8) for d in range(8)] + [(16, 18), (17, 19)]
        for x, y in pairs: a(f"v_permlane32_swap_b32 v{AC+x}, v{AC+y}")
        for x, y in pairs: a(f"v_add_f32 v{AC+x}, v{AC+x}, v{AC+y}")
        for d in range(4): a(f"v_cvt_pk_bf16_f32 v{T+d}, v{AC+2*d}, v{AC+2*d+1}")
        a(f"v_cvt_pk_bf16_f32 v{T+4}, v{AC+16}, v{AC+17}")
        a("v_lshlrev_b32 v6, 4, v6")
        a(f"v_mul_u32_u24 v7, {CS}, v3\nv_add_u32 v7, v7, v6")
        a("v_lshl_add_u32 v8, v3, 2, v6")
        a(f"s_mul_i32 s60, s58, 10\ns_lshl_b32 s3, s23, 1\ns_add_u32 s61, s60, s3\ns_mul_i32 s61, s61, {CS}")
        if O_BASE: a(f"s_add_u32 s61, s61, {O_BASE}")
        a(f"buffer_store_dwordx4 v[{T}:{T+3}], v7, {srd(SWS)}, s61 offen{self.sc}")
        a(f"s_lshr_b32 s3, s23, 1\ns_add_u32 s60, s60, s3\ns_add_u32 s60, s60, 8\ns_mul_i32 s60, s60, {CS}")
        a(f"s_and_b32 s3, s23, 1\ns_lshl_b32 s3, s3, 3\ns_add_u32 s60, s60, s3")
        if O_BASE: a(f"s_add_u32 s60, s60, {O_BASE}")
        a(f"buffer_store_dword v{T+4}, v8, {srd(SWS)}, s60 offen{self.sc}")

    def p24_ids(self):
        a = self.a
        a("s_mul_i32 s66, s57, 26\ns_lshr_b32 s66, s66, 8\ns_mul_i32 s3, s66, 10\ns_sub_u32 s67, s57, s3")
        a("s_lshl_b32 s68, s56, 8\ns_mul_i32 s3, s66, 88\ns_add_u32 s68, s68, s3")
        a("s_cmp_eq_u32 s66, 2\ns_cselect_b32 s69, 0, 8\ns_add_u32 s69, s69, 80")
    def w64_addr(self, dst, Drows):
        a = self.a
        a("v_lshrrev_b32 v2, 3, v1\nv_and_b32 v3, 3, v2\nv_lshrrev_b32 v4, 2, v2")
        a(f"v_mul_u32_u24 v4, {Drows}, v4\nv_add_u32 v3, v3, v4\nv_mul_u32_u24 v{dst}, 1280, v3")
        a("v_lshrrev_b32 v2, 4, v1\nv_lshlrev_b32 v2, 1, v2\nv_and_b32 v3, 7, v1\nv_xor_b32 v3, v3, v2")
        a(f"v_lshl_add_u32 v{dst}, v3, 4, v{dst}")
        a(f"s_lshl_b32 s3, s67, 7\nv_add_u32 v{dst}, s3, v{dst}")
    def panel96_addr(self, dst):
        a = self.a
        for n in range(3):
            a(f"v_add_u32 v2, {64*n}, v1\nv_cmp_le_u32 vcc, 96, v2\nv_cndmask_b32 v3, 0, 1, vcc")
            a("v_mul_u32_u24 v4, 96, v3\nv_sub_u32 v2, v2, v4")
            a("s_lshl_b32 s3, s23, 1\nv_add_u32 v3, s3, v3")
            a(f"v_mul_u32_u24 v3, {CS}, v3\nv_add_u32 v4, s68, v2\nv_lshl_add_u32 v3, v4, 4, v3")
            a(f"v_cmp_gt_u32 vcc, s69, v2\nv_mov_b32 v4, {OOB}\nv_cndmask_b32 v{dst+n}, v4, v3, vcc")
    def panel96_issue(self, areg, gbase, s, ldsbase, tag):
        a = self.a
        a(f"s_mov_b32 s61, {gbase + s*8*CS}")
        for n in range(3):
            a(f"s_add_u32 m0, s65, {ldsbase + n*1024}")
            a(f"buffer_load_dwordx4 v{areg+n}, {srd(SWS)}, s61 offen{self.sc} lds")
            self.vissue(tag)
    def c24_addr(self):
        a = self.a
        a("s_lshr_b32 s70, s23, 1\ns_and_b32 s71, s23, 1")
        a("v_lshrrev_b32 v11, 3, v1\nv_and_b32 v11, 3, v11\ns_lshl_b32 s3, s71, 1\nv_xor_b32 v11, s3, v11")
        a("v_lshrrev_b32 v2, 2, v1\nv_lshlrev_b32 v2, 7, v2\nv_and_b32 v3, 3, v1\nv_lshl_add_u32 v2, v3, 3, v2")
        a("v_xor_b32 v3, 1, v11\nv_lshl_add_u32 v5, v3, 5, v2\nv_lshl_add_u32 v2, v11, 5, v2")
        self.mk3(2); self.mk3(5)
        a("v_lshrrev_b32 v8, 4, v1\nv_mul_u32_u24 v8, 1536, v8\nv_and_b32 v11, 15, v1\nv_lshl_add_u32 v8, v11, 4, v8")
        a("s_mul_i32 s3, s70, 768\nv_add_u32 v8, s3, v8")
        self.mk3(8)
    def c24_loop(self, nst, aoff, boff, ACC, FB, tsb):
        a = self.a
        def reads(s):
            fb = FB[s % 2]; r = []
            for ks in range(2):
                f = fb + 20*ks
                for t in range(3):
                    r.append(f"ds_read_b128 v[{f+8+4*t}:{f+11+4*t}], {self.ad(8, boff(s) + ks*4*1536 + t*256)}")
                for j in range(2):
                    for rd in range(2):
                        r.append(f"ds_read_b64_tr_b16 v[{f+4*j+2*rd}:{f+4*j+2*rd+1}], {self.ad(2+3*j, aoff(s) + ks*4096 + rd*2048)}")
            return r
        def mfmas(s):
            fb = FB[s % 2]; r = []
            for ks in range(2):
                f = fb + 20*ks
                for j in range(2):
                    for t in range(3):
                        c = ACC + (t*2+j)*4
                        cs = "0" if (s == 0 and ks == 0) else f"v[{c}:{c+3}]"
                        r.append(f"v_mfma_f32_16x16x32_bf16 v[{c}:{c+3}], v[{f+4*j}:{f+4*j+3}], v[{f+8+4*t}:{f+11+4*t}], {cs}")
            return r
        for s in range(nst):
            a("s_barrier")
            if s == 0: self.ts(tsb)
            if s == nst//2: self.ts(tsb+1)
            rd = reads(s); mf = mfmas(s-1) if s else []
            i = 0
            for m in mf:
                for x in rd[i:i+2]: a(x)
                i += 2
                a(m)
            for x in rd[i:]: a(x)
            a("s_waitcnt lgkmcnt(0)")
        a("s_barrier")
        self.ts(tsb+2)
        for m in mfmas(nst-1): a(m)
    def c24_rowaddr(self):
        a = self.a
        a("v_and_b32 v12, 15, v1\ns_mul_i32 s3, s70, 48\nv_add_u32 v12, s3, v12")
        a("v_lshrrev_b32 v13, 4, v1\nv_and_b32 v14, 1, v13\nv_lshlrev_b32 v14, 1, v14\nv_lshrrev_b32 v11, 1, v13\nv_add_u32 v14, v14, v11")
        a("s_lshl_b32 s3, s71, 2\nv_add_u32 v14, s3, v14")
    def c24_addr_rm(self, dst):
        a = self.a
        for t in range(3):
            a(f"v_add_u32 v11, {16*t}, v12\nv_cmp_gt_u32 vcc, s69, v11\nv_add_u32 v11, s68, v11\nv_mul_u32_u24 v11, 1280, v11")
            a(f"v_lshl_add_u32 v11, v14, 4, v11\ns_lshl_b32 s3, s67, 7\nv_add_u32 v11, s3, v11")
            a(f"v_mov_b32 v{dst+t}, {OOB}\nv_cndmask_b32 v{dst+t}, v{dst+t}, v11, vcc")
    def c24_addr_panel(self, dst):
        a = self.a
        for t in range(3):
            a(f"s_lshl_b32 s3, s67, 3\nv_add_u32 v{dst+t}, s3, v14\nv_mul_u32_u24 v{dst+t}, {CS}, v{dst+t}")
            a(f"v_add_u32 v11, {16*t}, v12\nv_cmp_gt_u32 vcc, s69, v11\nv_add_u32 v11, s68, v11")
            a(f"v_lshl_add_u32 v11, v11, 4, v{dst+t}")
            a(f"v_mov_b32 v{dst+t}, {OOB}\nv_cndmask_b32 v{dst+t}, v{dst+t}, v11, vcc")
    def c24_sum(self, ACC, RES, OUT, T):
        a = self.a
        for t in range(3):
            A = ACC + t*8; B = A + 4
            for r in range(4): a(f"v_permlane16_swap_b32 v{A+r}, v{B+r}")
            for d in range(4):
                a(f"v_lshlrev_b32 v{T+2*d}, 16, v{RES+4*t+d}\nv_and_b32 v{T+2*d+1}, 0xffff0000, v{RES+4*t+d}")
            for d in range(4):
                a(f"v_pk_add_f32 v[{T+2*d}:{T+2*d+1}], v[{T+2*d}:{T+2*d+1}], v[{A+2*d}:{A+2*d+1}]")
            for d in range(4):
                a(f"v_cvt_pk_bf16_f32 v{OUT+4*t+d}, v{T+2*d}, v{T+2*d+1}")

    P2_WO = 0; P2_RING = 81920; P2_NS = 6
    HREG = 240
    def p2_setup(self):
        self.p24_ids()
    def p2_wo_issue(self):
        a = self.a
        self.w64_addr(200, 8); self.w64_addr(201, 40)
        a(f"s_mul_i32 s64, s23, {160*1280}\ns_mul_i32 s65, s23, {5*4096}")
        for kk in range(5):
            for io in range(4):
                q = 4*kk + 2*(io % 2); rd = io // 2; hg = q // 10; c = q % 10
                if c < 8: row = 80*hg + 20*(c//2) + 4*rd; reg = 200
                else: row = 80*hg + 20*rd + 16; reg = 201
                a(f"s_add_u32 s61, s64, {row*1280}")
                a(f"s_add_u32 m0, s65, {self.P2_WO + kk*4096 + io*1024}")
                a(f"buffer_load_dwordx4 v{reg}, {srd(SWO)}, s61 offen lds")
                self.vissue("wo")
    def p2(self):
        a = self.a
        Lld = self.lab("P2ld"); Ldone = self.lab("P2done")
        a(f"s_cmp_ge_u32 s57, 30\ns_cbranch_scc1 {Ldone}")
        a(f"s_cmp_ge_u32 s22, 4\ns_cbranch_scc1 {Lld}")
        self.vreset()
        self.p24_ids(); self.c24_addr(); self.c24_rowaddr()
        XR = 220
        self.c24_addr_rm(16)
        for t in range(3):
            a(f"buffer_load_dwordx4 v[{XR+4*t}:{XR+4*t+3}], v{16+t}, {srd(SX)}, 0 offen")
        self.c24_addr_panel(16)
        ACC = 100
        self.c24_loop(10, lambda s: self.P2_WO + s*8192, lambda s: self.P2_RING + (s % self.P2_NS)*12288, ACC, [20, 60], 7 if self.persist else 2)
        a("s_waitcnt vmcnt(0)")
        H = self.HREG
        self.c24_sum(ACC, XR, H, 20)
        a(f"s_mov_b32 s61, {H_BASE}")
        for t in range(3):
            a(f"buffer_store_dwordx4 v[{H+4*t}:{H+4*t+3}], v{16+t}, {srd(SWS)}, s61 offen{self.sc}")
        a("v_mov_b32 v30, 0x3f803f80")
        for t in range(3):
            a(f"v_mov_b32 v{20+2*t}, 0\nv_mov_b32 v{21+2*t}, 0")
        for d in range(4):
            for t in range(3):
                a(f"v_dot2c_f32_bf16 v{20+2*t}, v{H+4*t+d}, v30\nv_dot2c_f32_bf16 v{21+2*t}, v{H+4*t+d}, v{H+4*t+d}")
        for t in range(3): a(f"v_permlane32_swap_b32 v{20+2*t}, v{21+2*t}")
        for t in range(3): a(f"v_add_f32 v{20+2*t}, v{20+2*t}, v{21+2*t}")
        a("v_mov_b32 v25, v24")
        a("v_permlane16_swap_b32 v20, v22\nv_permlane16_swap_b32 v24, v25")
        a("v_add_f32 v20, v20, v22\nv_add_f32 v24, v24, v25")
        a("v_and_b32 v26, 1, v13\nv_lshl_add_u32 v26, v26, 4, v12\nv_add_u32 v27, 32, v12\nv_lshrrev_b32 v28, 1, v13\nv_lshlrev_b32 v28, 2, v28")
        a(f"v_mov_b32 v29, {OOB}")
        for r in (26, 27):
            a(f"v_cmp_gt_u32 vcc, s69, v{r}\nv_add_u32 v{r}, s68, v{r}\nv_lshl_add_u32 v{r}, v{r}, 3, v28\nv_cndmask_b32 v{r}, v29, v{r}, vcc")
        a(f"s_lshl_b32 s61, s67, 1\ns_add_u32 s61, s61, s71\ns_lshl_b32 s61, s61, 14\ns_add_u32 s61, s61, {ST_BASE}")
        a(f"buffer_store_dword v20, v26, {srd(SWS)}, s61 offen{self.sc}")
        a(f"buffer_store_dword v24, v27, {srd(SWS)}, s61 offen{self.sc}")
        if self.persist:
            self.ts(19)
            a("s_waitcnt vmcnt(0)")
        a(f"s_branch {Ldone}")
        a(f"{Lld}:")
        self.vreset()
        if not self.persist:
            self.p2_setup(); self.p2_wo_issue()
        self.panel96_addr(202)
        a("s_mul_i32 s65, s23, 3072")
        if self.persist:
            a("s_lshl_b32 s61, s56, 2\ns_add_u32 s61, s61, s66\ns_lshl_b32 s61, s61, 3\ns_mov_b32 s60, 16")
            self.wait_flags(0)
            self.ts(7)
        NS = self.P2_NS
        iss = lambda s: self.panel96_issue(202, O_BASE, s, self.P2_RING + (s % NS)*12288, ("o", s))
        for s in range(NS): iss(s)
        self.vwait([("o", 0)])
        for s in range(10):
            a("s_barrier")
            if s >= 1 and s + NS - 1 <= 9: iss(s + NS - 1)
            if s + 1 <= 9: self.vwait([("o", s + 1)])
        a("s_barrier")
        if self.persist:
            L4 = self.lab("P2pf4")
            a(f"s_cmp_ge_u32 s57, 28\ns_cbranch_scc1 {L4}")
            self.p3_w_setup()
            for s in range(7): self.p3_w_issue(s)
            a(f"s_branch {Ldone}")
            a(f"{L4}:")
            self.p4_w_setup()
            for s in range(self.P4_WN): self.p4_w_issue(s)
        a(f"{Ldone}:")
        if self.persist:
            a("s_mul_i32 s74, s56, 30\ns_add_u32 s74, s74, s57")
            self.signal(1)
            self.ts(20)

    P3_H = 0; P3_HN = 3; P3_W = 49152; P3_WN = 7; P3_CS = LDS - 2048; P3_ST = LDS - 1024
    def p3_ids(self):
        a = self.a
        a("s_cmp_ge_u32 s57, 14\ns_cselect_b32 s3, 1, 0\ns_cselect_b32 s73, 14, 0\ns_sub_u32 s73, s57, s73")
        a("s_lshl_b32 s72, s56, 1\ns_add_u32 s72, s72, s3\ns_lshl_b32 s72, s72, 7")
    def p3_w_setup(self):
        a = self.a
        self.p3_ids()
        a("v_lshrrev_b32 v2, 4, v1\nv_lshlrev_b32 v3, 2, v2\nv_and_b32 v4, 15, v1\nv_xor_b32 v4, v4, v3")
        a("v_mul_u32_u24 v205, 3456, v2\nv_lshl_add_u32 v205, v4, 4, v205")
        a(f"s_lshl_b32 s3, s73, 8\ns_mul_i32 s61, s23, {16*3456}\ns_add_u32 s3, s3, s61\nv_add_u32 v205, s3, v205")
        a("v_lshlrev_b32 v206, 8, v2\nv_lshl_add_u32 v206, v4, 4, v206")
        a("s_lshl_b32 s64, s23, 12\nv_add_u32 v206, s64, v206")
        self.mk3(206)
        for e in range(8): a(f"v_mov_b32 v{210+e}, 0")
    def p3_w_issue(self, s):
        a = self.a
        for n in range(4):
            a(f"s_mov_b32 s61, {(s*64 + 4*n)*3456}")
            a(f"s_add_u32 m0, s64, {self.P3_W + (s % self.P3_WN)*16384 + n*1024}")
            a(f"buffer_load_dwordx4 v205, {srd(SW1)}, s61 offen lds")
            self.vissue(("w1", s))
    def p3_colsum(self, s):
        a = self.a
        for n in range(4):
            a(f"ds_read_b128 v[{20+4*n}:{23+4*n}], {self.ad(206, self.P3_W + (s % self.P3_WN)*16384 + n*1024)}")
        for n in range(4):
            a(f"s_waitcnt lgkmcnt({3-n})")
            for d in range(4):
                r = 20 + 4*n + d
                a(f"v_lshlrev_b32 v2, 16, v{r}\nv_and_b32 v3, 0xffff0000, v{r}\nv_add_f32 v{210+2*d}, v{210+2*d}, v2\nv_add_f32 v{211+2*d}, v{211+2*d}, v3")
    def p3(self):
        a = self.a
        Lld = self.lab("P3ld"); Ldone = self.lab("P3done"); Lskip = self.lab("P3skip")
        a(f"s_cmp_ge_u32 s57, 28\ns_cbranch_scc1 {Lskip}")
        a(f"s_cmp_ge_u32 s22, 4\ns_cbranch_scc1 {Lld}")
        self.p3_ids()
        a("s_lshr_b32 s70, s23, 1\ns_and_b32 s71, s23, 1")
        a("v_lshrrev_b32 v11, 2, v1\nv_and_b32 v11, 3, v11")
        a("v_lshrrev_b32 v2, 5, v1\nv_lshl_add_u32 v2, v2, 3, v11\nv_lshlrev_b32 v2, 8, v2")
        a("v_lshrrev_b32 v3, 4, v1\nv_and_b32 v3, 1, v3\nv_lshl_add_u32 v2, v3, 5, v2\nv_and_b32 v3, 3, v1\nv_lshl_add_u32 v2, v3, 3, v2")
        a("s_lshl_b32 s3, s71, 1\nv_xor_b32 v11, s3, v11")
        a("v_xor_b32 v3, 1, v11\nv_lshl_add_u32 v5, v3, 6, v2\nv_lshl_add_u32 v2, v11, 6, v2")
        self.mk3(2); self.mk3(5)
        a("v_lshrrev_b32 v8, 5, v1\nv_lshlrev_b32 v8, 11, v8\nv_and_b32 v11, 31, v1\nv_lshl_add_u32 v8, v11, 4, v8")
        a("s_lshl_b32 s3, s70, 10\nv_add_u32 v8, s3, v8")
        ACC = 100; FB = [20, 36]
        def reads(u):
            s, ks = divmod(u, 4); f = FB[u % 2]; r = []
            for t in range(2):
                r.append(f"ds_read_b128 v[{f+8+4*t}:{f+11+4*t}], v8 offset:{self.P3_H + (s % self.P3_HN)*16384 + ks*4096 + t*512}")
            for j in range(2):
                for rd in range(2):
                    r.append(f"ds_read_b64_tr_b16 v[{f+4*j+2*rd}:{f+4*j+2*rd+1}], {self.ad(2+3*j, self.P3_W + (s % self.P3_WN)*16384 + ks*4096 + rd*1024)}")
            return r
        def mfmas(u):
            f = FB[u % 2]; r = []
            for j in range(2):
                for t in range(2):
                    c = ACC + (j*2+t)*16
                    cs = "0" if u == 0 else f"v[{c}:{c+15}]"
                    r.append(f"v_mfma_f32_32x32x16_bf16 v[{c}:{c+15}], v[{f+4*j}:{f+4*j+3}], v[{f+8+4*t}:{f+11+4*t}], {cs}")
            return r
        for u in range(40):
            if u % 4 == 0: a("s_barrier")
            if u == 0: self.ts(10 if self.persist else 2)
            if u == 20 and not self.persist: self.ts(3)
            rd = reads(u); mf = mfmas(u-1) if u else []
            i = 0
            for m in mf:
                for x in rd[i:i+3]: a(x)
                i += 3
                a(m)
            for x in rd[i:]: a(x)
            a("s_waitcnt lgkmcnt(0)")
        a("s_barrier")
        self.ts(11 if self.persist else 4)
        CSR = 52; STR = 84
        a("v_lshrrev_b32 v11, 5, v1\nv_lshlrev_b32 v2, 4, v11")
        a(f"s_lshl_b32 s3, s71, 8\ns_add_u32 s3, s3, {self.P3_CS}\nv_add_u32 v2, s3, v2")
        a("v_and_b32 v12, 31, v1\nv_lshlrev_b32 v3, 3, v12")
        a(f"s_lshl_b32 s3, s70, 9\ns_add_u32 s3, s3, {self.P3_ST}\nv_add_u32 v3, s3, v3")
        for t in range(2): a(f"ds_read_b64 v[{STR+4*t}:{STR+4*t+1}], v3 offset:{256*t}")
        for j in range(2):
            for q in range(4): a(f"ds_read_b128 v[{CSR+16*j+4*q}:{CSR+16*j+4*q+3}], v2 offset:{128*j + 32*q}")
        for m in mfmas(39): a(m)
        a(f"v_mul_u32_u24 v4, {CS}, v11\nv_lshl_add_u32 v4, v12, 4, v4")
        a(f"s_lshl_b32 s60, s73, 1\ns_add_u32 s60, s60, s71")
        a(f"s_cmp_ge_u32 s60, 27\ns_cbranch_scc1 {Ldone}")
        a(f"s_mul_i32 s60, s60, {8*CS}\ns_lshl_b32 s3, s70, 6\ns_add_u32 s3, s3, s72\ns_lshl_b32 s3, s3, 4\ns_add_u32 s60, s60, s3\ns_add_u32 s60, s60, {G_BASE}")
        a("v_mov_b32 v6, 1.0")
        a("s_waitcnt lgkmcnt(0)")
        for t in range(2):
            a(f"v_mul_f32 v{STR+4*t+2}, -1.4426950408889634, v{STR+4*t}")
            a(f"v_mov_b32 v{92+2*t}, v{STR+4*t+1}")
        T = 20
        for j in range(2):
            for t in range(2):
                c = ACC + (j*2+t)*16
                A_ = STR + 4*t; M_ = 92 + 2*t
                for qq in range(0, 4, 2):
                    o = T + 16 + 4*((qq//2) % 2)
                    for p in range(4):
                        x = c + 4*qq + 2*p; k = CSR + 16*j + 4*qq + 2*p
                        a(f"v_pk_fma_f32 v[{x}:{x+1}], v[{k}:{k+1}], v[{M_}:{M_+1}], v[{x}:{x+1}] op_sel_hi:[1,0,1] neg_lo:[0,1,0] neg_hi:[0,1,0]")
                    for p in range(4):
                        x = c + 4*qq + 2*p
                        a(f"v_pk_mul_f32 v[{T+2*p}:{T+2*p+1}], v[{x}:{x+1}], v[{A_+2}:{A_+3}] op_sel_hi:[1,0]")
                    for p in range(8): a(f"v_exp_f32 v{T+p}, v{T+p}")
                    for p in range(4):
                        x = c + 4*qq + 2*p
                        a(f"v_pk_mul_f32 v[{x}:{x+1}], v[{x}:{x+1}], v[{A_}:{A_+1}] op_sel_hi:[1,0]")
                    for p in range(4):
                        a(f"v_pk_add_f32 v[{T+2*p}:{T+2*p+1}], v[{T+2*p}:{T+2*p+1}], v[6:7] op_sel_hi:[1,0]")
                    for p in range(8): a(f"v_rcp_f32 v{T+p}, v{T+p}")
                    for p in range(4):
                        x = c + 4*qq + 2*p
                        a(f"v_pk_mul_f32 v[{x}:{x+1}], v[{x}:{x+1}], v[{T+2*p}:{T+2*p+1}]")
                    for p in range(4):
                        x = c + 4*qq + 2*p
                        a(f"v_cvt_pk_bf16_f32 v{o+p}, v{x}, v{x+1}")
                    a(f"v_permlane32_swap_b32 v{o}, v{o+2}\nv_permlane32_swap_b32 v{o+1}, v{o+3}")
                    a(f"s_add_u32 s61, s60, {(4*j + qq)*CS + 512*t}")
                    a(f"buffer_store_dwordx4 v[{o}:{o+3}], v4, {srd(SWS)}, s61 offen{self.sc}")
        if self.persist:
            self.ts(21)
            a("s_waitcnt vmcnt(0)")
        a(f"s_branch {Ldone}")
        a(f"{Lld}:")
        self.vreset()
        if not self.persist:
            self.p3_w_setup()
        a(f"s_mul_i32 s3, s23, {2*CS}\ns_lshl_b32 s61, s72, 4\ns_add_u32 s3, s3, s61\nv_lshl_add_u32 v204, v1, 4, s3")
        def hiss(s):
            for n in range(4):
                a(f"s_mov_b32 s61, {H_BASE + (8*s + n//2)*CS + (n % 2)*1024}")
                a(f"s_add_u32 m0, s64, {self.P3_H + (s % self.P3_HN)*16384 + n*1024}")
                a(f"buffer_load_dwordx4 v204, {srd(SWS)}, s61 offen{self.sc} lds")
                self.vissue(("h", s))
        if not self.persist:
            for s in range(3):
                hiss(s); self.p3_w_issue(s)
            for s in range(3, 7): self.p3_w_issue(s)
        else:
            a("s_cmp_ge_u32 s57, 14\ns_cselect_b32 s3, 10, 0\ns_mul_i32 s61, s56, 30\ns_add_u32 s61, s61, s3\ns_mov_b32 s60, 20")
            self.wait_flags(1)
            self.ts(10)
            for s in range(3): hiss(s)
        ncs = 0
        self.vwait([("h", 0), ("w1", 0)])
        for s in range(10):
            a("s_barrier")
            if s >= 1 and s + 2 <= 9: hiss(s + 2)
            if s >= 1 and s + 6 <= 9: self.p3_w_issue(s + 6)
            if s == 7:
                a(f"v_lshlrev_b32 v2, 3, v1\nv_add_u32 v2, {self.P3_CS}, v2\nv_mov_b32 v4, 0\nv_mov_b32 v5, 0\nds_write_b64 v2, v[4:5]")
                a("v_and_b32 v2, 31, v1\nv_lshrrev_b32 v3, 5, v1\nv_lshlrev_b32 v3, 14, v3\nv_lshl_add_u32 v2, v2, 3, v3")
                a("s_lshl_b32 s3, s23, 5\ns_add_u32 s3, s3, s72\ns_lshl_b32 s3, s3, 3\nv_add_u32 v2, s3, v2")
                for n in range(10):
                    a(f"s_mov_b32 s61, {ST_BASE + n*32768}")
                    a(f"buffer_load_dwordx2 v[{40+2*n}:{41+2*n}], v2, {srd(SWS)}, s61 offen{self.sc}")
                    self.vissue("st")
            self.p3_colsum(s)
            if s == 9:
                for e in range(4): a(f"v_permlane32_swap_b32 v{210+e}, v{214+e}")
                for e in range(4): a(f"v_add_f32 v{210+e}, v{210+e}, v{214+e}")
                for e in range(2): a(f"v_permlane16_swap_b32 v{210+e}, v{212+e}")
                for e in range(2): a(f"v_add_f32 v{210+e}, v{210+e}, v{212+e}")
                a("v_and_b32 v2, 15, v1\nv_lshlrev_b32 v2, 5, v2\nv_lshrrev_b32 v3, 4, v1\nv_lshl_add_u32 v2, v3, 3, v2")
                a(f"v_add_u32 v2, {self.P3_CS}, v2")
                a("ds_add_f32 v2, v210\nds_add_f32 v2, v211 offset:4")
                self.vwait("st")
                for n in range(1, 10): a(f"v_pk_add_f32 v[40:41], v[40:41], v[{40+2*n}:{41+2*n}]")
                a("v_mov_b32 v42, v40\nv_mov_b32 v43, v41")
                a("v_permlane32_swap_b32 v40, v42\nv_permlane32_swap_b32 v41, v43")
                a("v_add_f32 v40, v40, v42\nv_add_f32 v41, v41, v43")
                a(f"v_mul_f32 v43, {1.0/640!r}, v40\nv_mul_f32 v41, {1.0/640!r}, v41")
                a("v_fma_f32 v41, -v43, v43, v41\nv_max_f32 v41, 0, v41\nv_add_f32 v41, 1e-5, v41\nv_rsq_f32 v42, v41")
                a(f"v_and_b32 v2, 31, v1\nv_lshlrev_b32 v2, 3, v2\ns_lshl_b32 s3, s23, 8\ns_add_u32 s3, s3, {self.P3_ST}\nv_add_u32 v2, s3, v2")
                a("ds_write_b64 v2, v[42:43]")
            a("s_waitcnt lgkmcnt(0)")
            if s + 1 <= 9: self.vwait([("h", s + 1), ("w1", s + 1)])
        a("s_barrier")
        if self.persist:
            self.p4_w_setup()
            for s in range(self.P4_WN): self.p4_w_issue(s)
        a(f"{Ldone}:")
        if self.persist:
            a("s_mul_i32 s74, s56, 28\ns_add_u32 s74, s74, s57")
            self.signal(2)
            self.ts(22)
        a(f"{Lskip}:")

    P4_W = 0; P4_WN = 14; P4_G = 114688; P4_GN = 4
    def p4_w_setup(self):
        a = self.a
        self.w64_addr(200, 8)
        a("s_and_b32 s3, s23, 1\ns_lshl_b32 s3, s3, 4\ns_lshr_b32 s61, s23, 1\ns_lshl_b32 s61, s61, 2\ns_add_u32 s3, s3, s61\ns_mul_i32 s3, s3, 1280")
        a("v_add_u32 v200, s3, v200\ns_lshl_b32 s64, s23, 10")
    def p4_w_issue(self, s):
        a = self.a
        for ks in range(2):
            a(f"s_mov_b32 s61, {(s*64 + 32*ks)*1280}")
            a(f"s_add_u32 m0, s64, {self.P4_W + (s % self.P4_WN)*8192 + ks*4096}")
            a(f"buffer_load_dwordx4 v200, {srd(SW2)}, s61 offen lds")
            self.vissue(("w2", s))
    def p4(self):
        a = self.a
        Lld = self.lab("P4ld"); Ldone = self.lab("P4done")
        a(f"s_cmp_ge_u32 s57, 30\ns_cbranch_scc1 {Ldone}")
        a(f"s_cmp_ge_u32 s22, 4\ns_cbranch_scc1 {Lld}")
        self.p24_ids(); self.c24_addr(); self.c24_rowaddr()
        H = self.HREG
        if not self.persist:
            self.c24_addr_panel(16)
            a(f"s_mov_b32 s61, {H_BASE}")
            for t in range(3):
                a(f"buffer_load_dwordx4 v[{H+4*t}:{H+4*t+3}], v{16+t}, {srd(SWS)}, s61 offen")
        self.c24_addr_rm(16)
        ACC = 100
        self.c24_loop(27, lambda s: self.P4_W + (s % self.P4_WN)*8192, lambda s: self.P4_G + (s % self.P4_GN)*12288, ACC, [20, 60], 12 if self.persist else 2)
        a("s_waitcnt vmcnt(0)")
        self.c24_sum(ACC, H, 40, 20)
        for t in range(3):
            a(f"buffer_store_dwordx4 v[{40+4*t}:{43+4*t}], v{16+t}, {srd(SOUT)}, 0 offen")
        a(f"s_branch {Ldone}")
        a(f"{Lld}:")
        self.vreset()
        if not self.persist:
            self.p24_ids(); self.p4_w_setup()
        self.panel96_addr(202)
        a("s_mul_i32 s65, s23, 3072")
        if self.persist:
            a("s_cmp_eq_u32 s66, 2\ns_cselect_b32 s3, 14, 0\ns_mul_i32 s61, s56, 28\ns_add_u32 s61, s61, s3")
            a("s_cmp_eq_u32 s66, 1\ns_cselect_b32 s60, 28, 14")
            self.wait_flags(2)
            self.ts(12)
        GN = self.P4_GN; WN = self.P4_WN if self.persist else 4
        gis = lambda s: self.panel96_issue(202, G_BASE, s, self.P4_G + (s % GN)*12288, ("g", s))
        for s in range(GN):
            gis(s)
            if not self.persist: self.p4_w_issue(s)
        self.vwait([("g", 0), ("w2", 0)])
        for s in range(27):
            a("s_barrier")
            if s >= 1 and s + GN - 1 <= 26: gis(s + GN - 1)
            if s >= 1 and s + WN - 1 <= 26: self.p4_w_issue(s + WN - 1)
            if s + 1 <= 26: self.vwait([("g", s + 1), ("w2", s + 1)])
        a("s_barrier")
        a(f"{Ldone}:")

    def text(self):
        L, n = hazard.fix(self.L)
        nm = self.name
        return "\n".join([f".globl {nm}", ".p2align 8", f".type {nm},@function", f"{nm}:"] + L) + "\n"
    def desc(self):
        return "\n".join([".p2align 6", f".amdhsa_kernel {self.name}",
            "  .amdhsa_next_free_vgpr 256", "  .amdhsa_next_free_sgpr 102", "  .amdhsa_accum_offset 256",
            "  .amdhsa_group_segment_fixed_size 0", "  .amdhsa_kernarg_size 72", "  .amdhsa_user_sgpr_count 2",
            "  .amdhsa_user_sgpr_kernarg_segment_ptr 1", "  .amdhsa_system_sgpr_workgroup_id_x 1",
            "  .amdhsa_float_denorm_mode_32 3",
            ".end_amdhsa_kernel"]) + "\n"

def header():
    ref = open(f"cdna_kernels/{NAME}.s.ref").read().split("\n")
    return [l for l in ref if l.startswith(";") and "@launch" not in l]

def build_multi(dbg=False):
    ks = []
    for i, ph in enumerate(("p1", "p2", "p3", "p4")):
        g = G(NAME + "_kernel" if i == 0 else f"blk_{ph}_kernel", False, dbg)
        g.kidx = i
        g.prologue(256); getattr(g, ph)(); g.end(); ks.append(g)
    out = header()
    for g in ks: out.append(f"; @launch kernel={g.name} grid=(256,1,1) block=(512,1,1) lds={LDS}")
    out += ['.amdgcn_target "amdgcn-amd-amdhsa--gfx950"', ".text"]
    out += [g.text() for g in ks]
    out.append('.section .rodata,"a"')
    out += [g.desc() for g in ks]
    return "\n".join(out)

def build_persist(dbg=False):
    g = G(NAME + "_kernel", True, dbg)
    g.prologue(256); g.p1(); g.p2(); g.p3(); g.p4(); g.end()
    out = header()
    out.append(f"; @launch grid=(256,1,1) block=(512,1,1) lds={LDS}")
    out += ['.amdgcn_target "amdgcn-amd-amdhsa--gfx950"', ".text", g.text(), '.section .rodata,"a"', g.desc()]
    return "\n".join(out)

if __name__ == "__main__":
    mode = sys.argv[1]; path = sys.argv[2]
    dbg = len(sys.argv) > 3 and sys.argv[3] == "dbg"
    txt = build_multi(dbg) if mode == "multi" else build_persist(dbg)
    open(path, "w").write(txt)
    import subprocess
    r = subprocess.run(["clang", "-x", "assembler", "-target", "amdgcn-amd-amdhsa", "-mcpu=gfx950", "-c", path, "-o", "chk.o"], capture_output=True, text=True)
    print(r.stderr[:3000] if r.returncode else "assembled ok", len(txt))
```

```python
import sys
sys.path.insert(0, "dev")
import hazard

NAME = "sequential_preLN__sliding_local_dilated__dense_activation_silu__prompt"
S, D, F = 2048, 640, 1728
CS = 2048 * 16
O_BASE = 0
H_BASE = 80 * CS
ST_BASE = 160 * CS
G_BASE = 0x600000
FL_BASE = 0xE00000
TS_BASE = 0xF00000
WS_SIZE = 0x1200000
TS2 = 0x1000000
OOB = 0x80000000
LDS = 163840
SX, SWQ, SWO, SW1, SW2, SOUT, SDBG, SWS = 24, 28, 32, 36, 40, 44, 48, 52
def srd(n): return f"s[{n}:{n+3}]"
A16 = lambda k: 16384 * k

CSUM = 0xE80000
OPT = dict(la1=3, rot1=1, rot2=1, rot3=1, rot4=1, map1=0, fast=1, nA=24, nB=16, nC=2, c0=4, nD=0, nE=4, e0=1, hla=7, gn=10, wo0=16, lazy=1, ord4=0, gper=2, hper=2, prio=0, lprio=0, wsz=4, ldsc=1)

class G:
    NL = 0
    def __init__(self, name, dbg=False, opt=None):
        self.name = name; self.L = []; self.dbg = dbg
        self.o = dict(OPT); self.o.update(opt or {})
        self.vm = []; self.tprev = None; self.tn = 0; self.ool = []
    def a(self, s):
        for line in s.split("\n"):
            line = line.strip()
            if line: self.L.append(line if line.endswith(":") else "    " + line)
    def lab(self, b="L"):
        G.NL += 1; return f"{b}_{G.NL}"
    def vissue(self, tag): self.vm.append(tag)
    def vwait(self, tags):
        if not isinstance(tags, (list, set)): tags = [tags]
        last = -1
        for i, t in enumerate(self.vm):
            if t in tags: last = i
        if last < 0: return
        n = len(self.vm) - 1 - last
        assert n <= 63, n
        self.a(f"s_waitcnt vmcnt({n})")
        self.vm = self.vm[last + 1:]
    def vreset(self): self.vm = []
    def tc(self, i):
        if self.dbg: self.a(f"s_memtime s[80:81]\ns_waitcnt lgkmcnt(0)\nv_writelane_b32 v255, s80, {i}")
    def ts(self, i):
        if self.dbg: self.a(f"s_memrealtime s[80:81]\ns_waitcnt lgkmcnt(0)\nv_writelane_b32 v255, s80, {i}")
    def bar(self):
        if self.dbg:
            if self.tprev is not None: self.a(f"v_writelane_b32 v{253 + self.tprev // 64}, s84, {self.tprev % 64}")
            self.a("s_memtime s[84:85]")
            self.tprev = self.tn; self.tn += 1
        self.a("s_barrier")
    def prologue(self):
        a = self.a
        a("s_load_dwordx16 s[4:19], s[0:1], 0")
        a("s_load_dwordx2 s[20:21], s[0:1], 64")
        a("s_cmp_ge_u32 s2, 256")
        a("s_cbranch_scc1 Lend")
        a("v_and_b32 v1, 63, v0")
        a("v_lshrrev_b32 v2, 6, v0")
        a("v_readfirstlane_b32 s22, v2")
        a("s_and_b32 s56, s2, 7")
        a("s_lshr_b32 s57, s2, 3")
        a("s_and_b32 s23, s22, 3")
        if self.o["map1"]:
            a("s_and_b32 s58, s57, 7\ns_lshl_b32 s59, s56, 2\ns_lshr_b32 s3, s57, 3\ns_add_u32 s59, s59, s3")
        else:
            a("s_and_b32 s58, s56, 1\ns_lshl_b32 s58, s58, 2\ns_and_b32 s3, s57, 3\ns_add_u32 s58, s58, s3")
            a("s_lshr_b32 s59, s56, 1\ns_lshl_b32 s59, s59, 3\ns_lshr_b32 s3, s57, 2\ns_add_u32 s59, s59, s3")
        if self.dbg: a("v_mov_b32 v255, 0\nv_mov_b32 v254, 0\nv_mov_b32 v253, 0")
        self.ts(0); self.tc(16)
    def srds(self, which):
        self.a("s_waitcnt lgkmcnt(0)")
        T = {SX: (4, S*D*2), SWQ: (6, D*3*D*2), SWO: (8, D*D*2), SW1: (12, D*F*2), SW2: (14, F*D*2),
             SOUT: (16, S*D*2), SDBG: (18, 256), SWS: (20, WS_SIZE)}
        for d in which:
            b, n = T[d]
            self.a(f"s_mov_b32 s{d}, s{b}\ns_mov_b32 s{d+1}, s{b+1}\ns_mov_b32 s{d+2}, {n}\ns_mov_b32 s{d+3}, 0x00020000")
    def fin(self):
        if self.dbg:
            self.a("s_waitcnt vmcnt(0)")
            self.ts(15); self.tc(17)
            self.a(f"s_lshl_b32 s80, s2, 3\ns_add_u32 s80, s80, s22\ns_lshl_b32 s80, s80, 7\ns_add_u32 s80, s80, {TS_BASE}")
            self.a(f"v_writelane_b32 v{253 + self.tprev // 64}, s84, {self.tprev % 64}")
            self.a(f"v_lshlrev_b32 v2, 2, v1\ns_lshl_b32 s84, s2, 3\ns_add_u32 s84, s84, s22\ns_lshl_b32 s84, s84, 9\ns_add_u32 s84, s84, {TS2}")
            self.a(f"buffer_store_dword v253, v2, {srd(SWS)}, s84 offen\nbuffer_store_dword v254, v2, {srd(SWS)}, s84 offen offset:256")
            self.a(f"v_lshlrev_b32 v2, 2, v1\ns_mov_b32 exec_hi, 0\nbuffer_store_dword v255, v2, {srd(SWS)}, s80 offen")
        self.a("s_endpgm")

    FS = 64
    def flag_clear(self):
        a = self.a
        Lk = self.lab("fc")
        a("s_getreg_b32 s3, hwreg(HW_REG_XCC_ID, 0, 4)\ns_mul_i32 s88, s3, s3\ns_lshl_b32 s88, s88, 10\ns_add_u32 s88, s88, s3\ns_add_u32 s88, s88, 0x800000")
        a(f"s_cmp_lg_u32 s22, 0\ns_cbranch_scc1 {Lk}")
        a(f"v_lshrrev_b32 v2, 3, v1\nv_mul_u32_u24 v2, {256*self.FS}, v2\nv_and_b32 v3, 7, v1\nv_lshl_add_u32 v2, v3, 2, v2")
        a(f"v_mov_b32 v3, 0\ns_mul_i32 s61, s2, {self.FS}\ns_add_u32 s61, s61, {FL_BASE}")
        a(f"s_mov_b64 exec, 0xffffff\nbuffer_store_dword v3, v2, {srd(SWS)}, s61 offen sc1\ns_mov_b64 exec, -1")
        a("s_lshl_b32 s61, s56, 5\nv_mov_b32 v3, s88")
        a("s_waitcnt vmcnt(0)")
        a(f"s_mov_b64 exec, 1\nbuffer_atomic_add v3, off, {srd(SDBG)}, s61\ns_mov_b64 exec, -1")
        a(f"{Lk}:")
    def count_check(self):
        a = self.a
        Lk = self.lab("cp"); Lp = self.lab("cpl")
        a("s_mov_b64 exec, 255\ns_mov_b32 s60, 0x100000\ns_mov_b32 s61, 0x10000000")
        a(f"{Lp}:")
        a(f"s_waitcnt vmcnt(0)\nv_cmp_gt_u32 vcc, s61, v96\ns_cbranch_vccz {Lk}")
        a(f"buffer_load_dword v96, v97, {srd(SDBG)}, 0 offen sc1")
        a(f"s_sub_u32 s60, s60, 1\ns_cbranch_scc0 {Lp}")
        a(f"{Lk}:")
        a("s_mov_b64 exec, -1")
        a("s_waitcnt vmcnt(0)\nv_readlane_b32 s3, v96, s56\ns_lshl_b32 s88, s88, 5\ns_cmp_eq_u32 s3, s88\ns_cselect_b64 s[86:87], -1, 0")
        if not self.o["fast"]: a("s_mov_b64 s[86:87], 0")
    def hst(self, txt, local=True):
        if not local:
            self.a(txt + " sc1"); return
        L1 = self.lab("slow"); L2 = self.lab("back")
        self.a(f"s_cbranch_vccz {L1}\n{txt}\n{L2}:")
        self.ool.append(f"{L1}:\ns_nop 7\n{txt} sc1\ns_branch {L2}")
    def signal(self, ph, wreg, local=True):
        a = self.a
        a(f"s_mul_i32 s61, s74, {self.FS}\ns_lshl_b32 s3, {wreg}, 2\ns_add_u32 s61, s61, s3\ns_add_u32 s61, s61, {FL_BASE + ph*256*self.FS}\nv_mov_b32 v3, 1")
        a("s_waitcnt vmcnt(0)")
        a("s_mov_b64 exec, 1")
        self.hst(f"buffer_store_dword v3, off, {srd(SWS)}, s61", local)
        a("s_mov_b64 exec, -1")
    def wait_flags(self, ph, two, extra=None):
        a = self.a
        a(f"s_mul_i32 s61, s61, {self.FS}\ns_add_u32 s61, s61, {FL_BASE + ph*256*self.FS}")
        Lp = self.lab("poll"); Lq = self.lab("pollx")
        if two: a(f"v_lshrrev_b32 v2, 1, v1\nv_mul_u32_u24 v2, {self.FS}, v2\nv_and_b32 v3, 1, v1\nv_lshl_add_u32 v2, v3, 4, v2")
        else: a(f"v_mul_u32_u24 v2, {self.FS}, v1")
        if extra: a(extra)
        a("s_bfm_b64 exec, s60, 0\ns_mov_b32 s60, 0x100000")
        a(f"{Lp}:")
        a(f"buffer_load_dwordx4 v[4:7], v2, {srd(SWS)}, s61 offen sc1")
        a(f"s_sub_u32 s60, s60, 1\ns_cbranch_scc1 {Lq}")
        a("s_waitcnt vmcnt(0)")
        a("v_and_b32 v4, v4, v5\nv_and_b32 v6, v6, v7\nv_and_b32 v4, v4, v6")
        a(f"v_cmp_ne_u32 vcc, 1, v4\ns_cbranch_vccnz {Lp}")
        a(f"{Lq}:")
        a("s_waitcnt vmcnt(0)\ns_mov_b64 exec, -1")
        self.vreset()
    def adv(self, sreg, stride, n):
        self.a(f"s_add_u32 s{sreg}, s{sreg}, {stride}\ns_cmp_eq_u32 s{sreg}, {stride*n}\ns_cselect_b32 s{sreg}, 0, s{sreg}")
    def mk3(self, r):
        self.a(f"v_add_u32 v{r+1}, 0x10000, v{r}\nv_add_u32 v{r+2}, 0x20000, v{r}")
    def ad(self, r, off):
        return f"v{r + (off >> 16)} offset:{off & 0xffff}"

    P1_SLOT = 40960; P1_W = 10240; P1_WS = 15360; P1_ST = 0; P1_QKV = 1024; P1_QS = 488
    def p1x(self, s): return (s % 4) * self.P1_SLOT
    def p1w(self, u): return ((u // 2) % 4) * self.P1_SLOT + self.P1_W + (u % 2) * self.P1_WS
    def p1c(self):
        a = self.a
        a(f"v_lshrrev_b32 v2, 3, v1\nv_and_b32 v2, 3, v2\nv_mul_u32_u24 v2, {self.P1_SLOT}, v2\nv_and_b32 v3, 7, v1\nv_lshl_add_u32 v2, v3, 4, v2")
        for r in range(4): a(f"v_mov_b32 v{20+r}, 0x3f803f80")
        a("ds_write_b128 v2, v[20:23]")
        a("v_lshrrev_b32 v10, 2, v1\nv_mul_u32_u24 v10, 480, v10\nv_and_b32 v3, 3, v1\nv_lshl_add_u32 v10, v3, 3, v10")
        a("s_lshl_b32 s3, s23, 7\nv_add_u32 v10, s3, v10")
        a("v_and_b32 v3, 15, v1\nv_lshrrev_b32 v13, 1, v3\nv_lshrrev_b32 v4, 4, v1\nv_xor_b32 v4, v4, v13\nv_lshlrev_b32 v4, 4, v4\nv_lshl_add_u32 v4, v3, 7, v4")
        a("v_xor_b32 v7, 64, v4")
        self.mk3(4); self.mk3(7); self.mk3(10)
        self.srds([SWS, SDBG, SX, SWO, SW1, SW2, SOUT])
        self.flag_clear()
        ACC = 100; FB = [20, 56]
        a("s_waitcnt lgkmcnt(0)")
        self.ts(1)
        def reads(u):
            fb = FB[u % 2]; r = []
            for t in range(5):
                r.append(f"ds_read_b128 v[{fb+16+4*t}:{fb+19+4*t}], {self.ad(4 + 3*(u % 2), self.p1x(u//2) + 2048*t)}")
            for j in range(4):
                for rd in range(2):
                    r.append(f"ds_read_b64_tr_b16 v[{fb+4*j+2*rd}:{fb+4*j+2*rd+1}], {self.ad(10, self.p1w(u) + 32*j + 7680*rd)}")
            return r
        def mfmas(u):
            fb = FB[u % 2]; r = []
            for j in range(4):
                for t in range(5):
                    c = ACC + (j*5+t)*4
                    cs = "0" if u == 0 else f"v[{c}:{c+3}]"
                    r.append(f"v_mfma_f32_16x16x32_bf16 v[{c}:{c+3}], v[{fb+4*j}:{fb+4*j+3}], v[{fb+16+4*t}:{fb+19+4*t}], {cs}")
            return r
        for u in range(20):
            self.bar()
            if u == 0: self.ts(2)
            if u == 10: self.ts(3)
            if u == 12:
                a(f"v_lshlrev_b32 v97, 5, v1\nbuffer_load_dword v96, v97, {srd(SDBG)}, 0 offen sc1")
            rd = reads(u); mf = mfmas(u-1) if u else []
            for i in range(max(len(rd), len(mf))):
                if i < len(rd): a(rd[i])
                if i < len(mf): a(mf[i])
            a("s_waitcnt lgkmcnt(0)")
        STR = 20; CSR = 32
        a("v_and_b32 v3, 15, v1\nv_lshlrev_b32 v13, 3, v3")
        mf = mfmas(19)
        for m in mf[:14]: a(m)
        self.bar()
        self.ts(4)
        for t in range(5): a(f"ds_read_b64 v[{STR+2*t}:{STR+2*t+1}], v13 offset:{self.P1_ST + 128*t}")
        for m in mf[14:]: a(m)
        a(f"v_mul_u32_u24 v2, {self.P1_QS}, v3\nv_lshrrev_b32 v3, 4, v1\nv_lshl_add_u32 v2, v3, 3, v2")
        a(f"s_lshl_b32 s3, s23, 7\ns_add_u32 s3, s3, {self.P1_QKV}\nv_add_u32 v2, s3, v2")
        a("s_waitcnt lgkmcnt(0)")
        Lsk = self.lab("P1sk")
        for j in range(4):
            if j == 3:
                a(f"s_cmp_eq_u32 s23, 3\ns_cbranch_scc1 {Lsk}")
            for r in range(4): a(f"v_mov_b32_dpp v{CSR+4*j+r}, v{ACC+j*20+r} row_newbcast:0 row_mask:0xf bank_mask:0xf")
            for t in range(5):
                c = ACC + (j*5+t)*4
                for p in (0, 2):
                    a(f"v_pk_fma_f32 v[{c+p}:{c+p+1}], v[{CSR+4*j+p}:{CSR+4*j+p+1}], v[{STR+2*t}:{STR+2*t+1}], v[{c+p}:{c+p+1}] op_sel:[0,1,0] op_sel_hi:[1,1,1] neg_lo:[0,1,0] neg_hi:[0,1,0]")
            for t in range(5):
                c = ACC + (j*5+t)*4
                for p in (0, 2):
                    a(f"v_pk_mul_f32 v[{c+p}:{c+p+1}], v[{c+p}:{c+p+1}], v[{STR+2*t}:{STR+2*t+1}] op_sel_hi:[1,0]")
            for t in range(5):
                c = ACC + (j*5+t)*4
                a(f"v_cvt_pk_bf16_f32 v{c}, v{c}, v{c+1}\nv_cvt_pk_bf16_f32 v{c+1}, v{c+2}, v{c+3}")
                a(f"ds_write_b64 v2, v[{c}:{c+1}] offset:{t*16*self.P1_QS + 32*j}")
        a(f"{Lsk}:")
        self.count_check()
        if self.o["map1"]: a("v_mov_b32 v2, 768\nv_mov_b32 v3, s86\nds_write_b32 v2, v3")
        a("s_waitcnt lgkmcnt(0)")
        self.p1tail()
    def p1tail(self, post=None):
        a = self.a
        self.bar()
        self.ts(5)
        self.attention()
        self.ts(6)
        a("s_lshl_b32 s74, s59, 3\ns_add_u32 s74, s74, s58")
        self.signal(0, "s22", self.o["map1"])
        self.vreset()
        self.ts(18)
        if post: post()
        self.bar()
        a("s_cmp_ge_u32 s57, 30\ns_cbranch_scc1 Lcsum")
    def csum(self):
        a = self.a
        a("Lcsum:")
        a("s_sub_u32 s60, s57, 30\ns_lshl_b32 s60, s60, 3\ns_add_u32 s60, s60, s56")
        a("s_cmp_ge_u32 s60, 14\ns_cbranch_scc1 Lcsx")
        a("v_lshrrev_b32 v2, 4, v1\nv_and_b32 v3, 15, v1\nv_mul_u32_u24 v4, 3456, v2\nv_lshl_add_u32 v4, v3, 4, v4")
        a(f"s_mul_i32 s61, s22, {80*3456}\ns_lshl_b32 s3, s60, 8\ns_add_u32 s61, s61, s3")
        a("s_waitcnt vmcnt(0)")
        for n in range(20):
            a(f"buffer_load_dwordx4 v[{20+4*n}:{23+4*n}], v4, {srd(SW1)}, s61 offen\ns_add_u32 s61, s61, {4*3456}")
        for e in range(8): a(f"v_mov_b32 v{10+e}, 0")
        a("v_mov_b32 v8, 0x00003f80\nv_mov_b32 v9, 0x3f800000")
        for n in range(20):
            a(f"s_waitcnt vmcnt({19-n})")
            for d in range(4):
                a(f"v_dot2c_f32_bf16 v{10+2*d}, v{20+4*n+d}, v8\nv_dot2c_f32_bf16 v{11+2*d}, v{20+4*n+d}, v9")
        for e in range(4): a(f"v_permlane32_swap_b32 v{10+e}, v{14+e}")
        for e in range(4): a(f"v_add_f32 v{10+e}, v{10+e}, v{14+e}")
        for e in range(2): a(f"v_permlane16_swap_b32 v{10+e}, v{12+e}")
        for e in range(2): a(f"v_add_f32 v{10+e}, v{10+e}, v{12+e}")
        a("v_lshlrev_b32 v3, 5, v3\nv_lshl_add_u32 v3, v2, 3, v3\ns_lshl_b32 s3, s22, 9\nv_add_u32 v3, s3, v3")
        a("ds_write_b64 v3, v[10:11]\ns_waitcnt lgkmcnt(0)\ns_barrier")
        a("s_cmp_lg_u32 s22, 0\ns_cbranch_scc1 Lcsx")
        a("v_lshlrev_b32 v3, 3, v1")
        for w in range(8): a(f"ds_read_b64 v[{20+2*w}:{21+2*w}], v3 offset:{512*w}")
        a("s_waitcnt lgkmcnt(0)")
        for w in range(1, 8): a(f"v_pk_add_f32 v[20:21], v[20:21], v[{20+2*w}:{21+2*w}]")
        a(f"s_lshl_b32 s61, s60, 9\ns_add_u32 s61, s61, {CSUM}")
        a(f"buffer_store_dwordx2 v[20:21], v3, {srd(SWS)}, s61 offen sc1")
        a(f"s_mul_i32 s61, s60, {self.FS}\ns_add_u32 s61, s61, {FL_BASE + (256 + 240)*self.FS}\nv_mov_b32 v4, 1\nv_lshlrev_b32 v3, 2, v1")
        a("s_waitcnt vmcnt(0)")
        a(f"s_mov_b64 exec, 15\nbuffer_store_dword v4, v3, {srd(SWS)}, s61 offen sc1\ns_mov_b64 exec, -1")
        a("Lcsx:")
        self.tprev = 22
        self.fin()
    W1R = [152, 168, 184, 200, 216, 232, 20, 36, 52, 68]
    W2R = [84 + 8*i for i in range(8)] + [184, 192, 200, 208, 152, 160, 168, 176, 216, 224, 232, 240] + [20 + 8*i for i in range(7)]
    def bg_init(self):
        self.bg = [("w1", s, n) for s in range(10) for n in range(4)] + [("w2", u, k) for u in range(27) for k in range(2)]
        self.busy = set(range(20, 150))
    def bg_issue(self, cnt, must=False):
        a = self.a
        while cnt > 0 and self.bg:
            k, s, n = self.bg[0]
            r = (self.W1R[s] if k == "w1" else self.W2R[s]) + 4*n
            if self.busy & set(range(r, r+4)):
                assert not must, (k, s, n)
                return
            self.bg.pop(0); cnt -= 1
            self.busy |= set(range(r, r+4))
            if k == "w1":
                a(f"s_add_u32 s61, s76, {4*n*3456}")
                a(f"buffer_load_dwordx4 v[{r}:{r+3}], v150, {srd(SW1)}, s61 offen")
                if n == 3: self.adv(76, 64*3456, 10)
            else:
                a(f"s_add_u32 s61, s83, {32*n*1280}")
                a(f"buffer_load_dwordx4 v[{r}:{r+3}], v17, {srd(SW2)}, s61 offen")
                if n == 1: self.adv(83, 64*1280, 27)
            self.vissue((k, s))
    def w1_flush(self, s):
        assert ("w1", s, 3) not in self.bg
        self.vwait([("w1", s)])
        r = self.W1R[s]
        for n in range(4): self.a(f"ds_write_b128 v{14 + (self.p3w(s) >> 16)}, v[{r+4*n}:{r+4*n+3}] offset:{(self.p3w(s) & 0xffff) + n*1024}")
    def w1_free(self, s): self.busy -= set(range(self.W1R[s], self.W1R[s] + 16))
    def w2_flush(self, u):
        assert ("w2", u, 1) not in self.bg
        self.vwait([("w2", u)])
        r = self.W2R[u]
        for k in range(2):
            o = (u % 4)*8192 + k*4096
            if self.o["wsz"] == 4: self.a(f"ds_write_b128 v19, v[{r+4*k}:{r+4*k+3}] offset:{o}")
            elif self.o["wsz"] == 2:
                for d in range(2): self.a(f"ds_write_b64 v19, v[{r+4*k+2*d}:{r+4*k+2*d+1}] offset:{o+8*d}")
            else:
                for d in range(4): self.a(f"ds_write_b32 v19, v{r+4*k+d} offset:{o+4*d}")
    def p1l(self):
        a = self.a
        LA = self.o["la1"]
        self.vreset()
        a("s_lshl_b32 s60, s59, 6\ns_sub_u32 s60, s60, 16")
        a("s_mul_i32 s3, s23, 20\nv_lshrrev_b32 v14, 3, v1\nv_add_u32 v14, s3, v14\nv_and_b32 v13, 7, v1")
        for n in range(3):
            a(f"v_add_u32 v2, {8*n}, v14\nv_lshrrev_b32 v3, 1, v2\nv_and_b32 v3, 7, v3\nv_xor_b32 v3, v3, v13")
            a(f"v_add_u32 v2, s60, v2\nv_max_i32 v2, 0, v2\nv_mul_u32_u24 v2, 1280, v2\nv_lshl_add_u32 v{15+n}, v3, 4, v2")
        a("v_cmp_le_u32 vcc, 30, v1\nv_cndmask_b32 v2, 0, 1, vcc")
        a("v_mul_u32_u24 v3, 30, v2\nv_sub_u32 v3, v1, v3")
        a("v_mul_u32_u24 v4, 26, v3\nv_lshrrev_b32 v4, 8, v4")
        a("v_mul_u32_u24 v5, 10, v4\nv_sub_u32 v5, v3, v5")
        a("v_mul_u32_u24 v18, 3840, v2\nv_mul_u32_u24 v4, 1280, v4\nv_add_u32 v18, v18, v4\nv_lshl_add_u32 v18, v5, 4, v18")
        a("s_and_b32 s3, s23, 1\ns_lshl_b32 s3, s3, 4\ns_lshr_b32 s61, s23, 1\ns_lshl_b32 s61, s61, 2\ns_add_u32 s3, s3, s61")
        a("s_mul_i32 s3, s3, 3840\ns_mul_i32 s61, s58, 160\ns_add_u32 s3, s3, s61\nv_add_u32 v18, s3, v18")
        a(f"s_mul_i32 s64, s23, {4*960}\ns_mul_i32 s65, s23, 2560")
        a("s_cmp_eq_u32 s23, 0\ns_cselect_b32 s78, 0xffff0000, -1")
        if self.o["rot1"]:
            if self.o["map1"]: a("s_and_b32 s3, s57, 7\ns_lshr_b32 s61, s57, 3")
            else: a("s_lshr_b32 s3, s57, 2\ns_and_b32 s61, s57, 3")
            a("s_mul_i32 s3, s3, 5\ns_lshr_b32 s3, s3, 2")
            if self.o["rot1"] == 1:
                a("s_mul_i32 s61, s61, 5\ns_lshr_b32 s61, s61, 1\ns_add_u32 s3, s3, s61")
                a("s_sub_u32 s61, s3, 10\ns_cmp_ge_u32 s3, 10\ns_cselect_b32 s3, s61, s3")
            a(f"s_lshl_b32 s75, s3, 7\ns_mul_i32 s76, s3, {64*3840}")
        else:
            a("s_mov_b32 s75, 0\ns_mov_b32 s76, 0")
        self.srds([SX, SWQ])
        def xiss(s):
            for n in range(3):
                a(f"s_add_u32 m0, s65, {self.p1x(s) + n*1024}")
                if n == 0: a("s_mov_b32 exec_lo, s78")
                if n == 1: a("s_mov_b32 exec_lo, -1")
                if n == 2: a("s_mov_b32 exec_hi, 0")
                a(f"buffer_load_dwordx4 v{15+n}, {srd(SX)}, s75 offen lds")
                self.vissue(("x", s))
            a("s_mov_b32 exec_hi, -1")
            self.adv(75, 128, 10)
        def wiss(u):
            a("s_mov_b32 exec_hi, 0x0fffffff")
            for jj in range(4):
                a(f"s_add_u32 m0, s64, {self.p1w(u) + jj*960}")
                a(f"s_add_u32 s61, s76, {[0, 2, 8, 10][jj] * 3840}")
                a(f"buffer_load_dwordx4 v18, {srd(SWQ)}, s61 offen lds")
                self.vissue(("w", u))
            a("s_mov_b32 exec_hi, -1")
            self.adv(76, 32*3840, 20)
        def iss(u):
            if u % 2 == 0: xiss(u // 2)
            wiss(u)
        for u in range(LA + 1): iss(u)
        self.srds([SWS, SWO, SW1, SW2])
        for r in range(6): a(f"v_mov_b32 v{20+r}, 0")
        a("v_lshlrev_b32 v26, 4, v1\nv_add_u32 v26, s65, v26\nv_mov_b32 v12, 0x3f803f80")
        self.mk3(26)
        self.p24_ids()
        self.p2_wo_setup()
        self.vwait([("w", 0)])
        nwo = 0
        for u in range(20):
            self.bar()
            if u >= 1 and u + LA <= 19: iss(u + LA)
            if u >= self.o["wo0"]: self.p2_wo_issue(nwo); nwo += 1
            if u % 2 == 0:
                for n in range(3): a(f"ds_read_b128 v[{32+4*n}:{35+4*n}], {self.ad(26, self.p1x(u//2) + n*1024)}")
                a("s_waitcnt lgkmcnt(0)")
                for d in range(4):
                    for n in range(3):
                        a(f"v_dot2c_f32_bf16 v{20+2*n}, v{32+4*n+d}, v12\nv_dot2c_f32_bf16 v{21+2*n}, v{32+4*n+d}, v{32+4*n+d}")
            if u == 19:
                for m in ("quad_perm:[1,0,3,2]", "quad_perm:[2,3,0,1]", "row_half_mirror"):
                    for r in range(6): a(f"v_add_f32_dpp v{20+r}, v{20+r}, v{20+r} {m} row_mask:0xf bank_mask:0xf")
                for n in range(3):
                    m_, q_ = 33 + 2*n, 21 + 2*n
                    a(f"v_mul_f32 v{m_}, {1.0/640!r}, v{20+2*n}\nv_mul_f32 v{q_}, {1.0/640!r}, v{q_}")
                    a(f"v_fma_f32 v{q_}, -v{m_}, v{m_}, v{q_}\nv_max_f32 v{q_}, 0, v{q_}\nv_add_f32 v{q_}, 1e-5, v{q_}\nv_rsq_f32 v{m_-1}, v{q_}")
                a("v_lshlrev_b32 v2, 3, v14")
                a(f"ds_write_b64 v2, v[32:33] offset:{self.P1_ST}\nds_write_b64 v2, v[34:35] offset:{self.P1_ST+64}")
                a(f"s_mov_b32 exec_hi, 0\nds_write_b64 v2, v[36:37] offset:{self.P1_ST+128}\ns_mov_b32 exec_hi, -1")
                a("s_waitcnt lgkmcnt(0)")
            if u + 1 <= 19: self.vwait([("w", u + 1)])
        self.bar()
        for k in range(nwo, 5): self.p2_wo_issue(k)
        self.p3_w_setup()
        self.bg_init()
        self.bg_issue(self.o["nA"])
        def post():
            self.busy -= set(range(20, 150))
            self.p4_w_setup()
            self.bg_issue(self.o["nB"])
        self.p1tail(post)

    def attention(self):
        a = self.a
        QS = self.P1_QS
        a("s_lshr_b32 s3, s22, 2\ns_lshl_b32 s3, s3, 5")
        a("v_and_b32 v2, 31, v1\nv_add_u32 v2, s3, v2")
        a("v_lshrrev_b32 v3, 5, v1")
        a(f"v_mul_u32_u24 v4, {QS}, v2")
        a(f"s_mul_i32 s3, s23, 40\ns_add_u32 s3, s3, {self.P1_QKV + 16*QS}\nv_add_u32 v4, s3, v4")
        a(f"v_mul_u32_u24 v5, {8*QS}, v3\nv_sub_u32 v5, v4, v5\nv_subrev_u32 v5, {6*QS}, v5")
        Q = 20; Kr = 30; V = 70; P = 110; T = 120; AC = 130
        if self.o["map1"]: a("v_mov_b32 v11, 768\nds_read_b32 v11, v11")
        for c in range(5): a(f"ds_read_b64 v[{Q+2*c}:{Q+2*c+1}], v4 offset:{8*c}")
        for jj in range(4):
            for c in range(5): a(f"ds_read_b64 v[{Kr+10*jj+2*c}:{Kr+10*jj+2*c+1}], v5 offset:{(6-2*jj)*QS + 160 + 8*c}")
        a("s_lshl_b32 s3, s59, 6\nv_add_u32 v6, s3, v2")
        a("v_lshlrev_b32 v7, 3, v3\nv_sub_u32 v7, v6, v7")
        for jj in range(4): a(f"v_mov_b32 v{P+jj}, 0")
        a("s_waitcnt lgkmcnt(0)")
        for jj in range(4):
            for c in range(5): a(f"ds_read_b64 v[{V+10*jj+2*c}:{V+10*jj+2*c+1}], v5 offset:{(6-2*jj)*QS + 320 + 8*c}")
        for d in range(10):
            for jj in range(4): a(f"v_dot2c_f32_bf16 v{P+jj}, v{Q+d}, v{Kr+10*jj+d}")
        SCL = 20 ** -0.5 * 1.4426950408889634
        a("v_mov_b32 v8, 0xceac0000")
        for jj in range(4):
            a(f"v_mul_f32 v{P+jj}, {SCL!r}, v{P+jj}")
            a(f"v_cmp_le_i32 vcc, {2*jj}, v7")
            a(f"v_cndmask_b32 v{P+jj}, v8, v{P+jj}, vcc")
        a(f"v_max3_f32 v9, v{P}, v{P+1}, v{P+2}\nv_max_f32 v9, v9, v{P+3}\nv_mov_b32 v10, v9")
        a("v_permlane32_swap_b32 v9, v10\nv_max_f32 v9, v9, v10")
        for jj in range(4): a(f"v_sub_f32 v{P+jj}, v{P+jj}, v9")
        for jj in range(4): a(f"v_exp_f32 v{P+jj}, v{P+jj}")
        a(f"v_add_f32 v9, v{P}, v{P+1}\nv_add_f32 v10, v{P+2}, v{P+3}\nv_add_f32 v9, v9, v10\nv_mov_b32 v10, v9")
        a("v_permlane32_swap_b32 v9, v10\nv_add_f32 v9, v9, v10\nv_rcp_f32 v9, v9")
        for jj in range(4): a(f"v_mul_f32 v{P+jj}, v{P+jj}, v9")
        a(f"v_cvt_pk_bf16_f32 v{P}, v{P}, v{P+1}\nv_cvt_pk_bf16_f32 v{P+1}, v{P+2}, v{P+3}")
        a("s_mov_b32 s60, 0x05040100\ns_mov_b32 s61, 0x07060302")
        a("s_waitcnt lgkmcnt(0)")
        for d in range(10):
            t = T + 4 * (d % 2)
            a(f"v_perm_b32 v{t}, v{V+10+d}, v{V+d}, s60\nv_perm_b32 v{t+1}, v{V+10+d}, v{V+d}, s61")
            a(f"v_perm_b32 v{t+2}, v{V+30+d}, v{V+20+d}, s60\nv_perm_b32 v{t+3}, v{V+30+d}, v{V+20+d}, s61")
            a(f"v_dot2_f32_bf16 v{AC+2*d}, v{t}, v{P}, 0\nv_dot2_f32_bf16 v{AC+2*d+1}, v{t+1}, v{P}, 0")
            a(f"v_dot2_f32_bf16 v{AC+2*d}, v{t+2}, v{P+1}, v{AC+2*d}\nv_dot2_f32_bf16 v{AC+2*d+1}, v{t+3}, v{P+1}, v{AC+2*d+1}")
        pairs = [(d, d + 8) for d in range(8)] + [(16, 18), (17, 19)]
        for x, y in pairs: a(f"v_permlane32_swap_b32 v{AC+x}, v{AC+y}")
        for x, y in pairs: a(f"v_add_f32 v{AC+x}, v{AC+x}, v{AC+y}")
        for d in range(4): a(f"v_cvt_pk_bf16_f32 v{T+d}, v{AC+2*d}, v{AC+2*d+1}")
        a(f"v_cvt_pk_bf16_f32 v{T+4}, v{AC+16}, v{AC+17}")
        a("v_lshlrev_b32 v6, 4, v6")
        a(f"v_mul_u32_u24 v7, {CS}, v3\nv_add_u32 v7, v7, v6")
        a("v_lshl_add_u32 v8, v3, 2, v6")
        a(f"s_mul_i32 s60, s58, 10\ns_lshl_b32 s3, s23, 1\ns_add_u32 s61, s60, s3\ns_mul_i32 s61, s61, {CS}")
        if self.o["map1"]: a("v_readfirstlane_b32 s86, v11\ns_mov_b32 s87, s86\ns_mov_b64 vcc, s[86:87]")
        self.hst(f"buffer_store_dwordx4 v[{T}:{T+3}], v7, {srd(SWS)}, s61 offen", self.o["map1"])
        a(f"s_lshr_b32 s3, s23, 1\ns_add_u32 s60, s60, s3\ns_add_u32 s60, s60, 8\ns_mul_i32 s60, s60, {CS}")
        a(f"s_and_b32 s3, s23, 1\ns_lshl_b32 s3, s3, 3\ns_add_u32 s60, s60, s3")
        self.hst(f"buffer_store_dword v{T+4}, v8, {srd(SWS)}, s60 offen", self.o["map1"])

    def p24_ids(self):
        a = self.a
        a("s_mul_i32 s66, s57, 26\ns_lshr_b32 s66, s66, 8\ns_mul_i32 s3, s66, 10\ns_sub_u32 s67, s57, s3")
        a("s_lshl_b32 s68, s56, 8\ns_mul_i32 s3, s66, 88\ns_add_u32 s68, s68, s3")
        a("s_cmp_eq_u32 s66, 2\ns_cselect_b32 s69, 0, 8\ns_add_u32 s69, s69, 80")
    def w64_addr(self, dst, Drows):
        a = self.a
        a("v_lshrrev_b32 v2, 3, v1\nv_and_b32 v3, 3, v2\nv_lshrrev_b32 v4, 2, v2")
        a(f"v_mul_u32_u24 v4, {Drows}, v4\nv_add_u32 v3, v3, v4\nv_mul_u32_u24 v{dst}, 1280, v3")
        a("v_lshrrev_b32 v2, 4, v1\nv_lshlrev_b32 v2, 1, v2\nv_and_b32 v3, 7, v1\nv_xor_b32 v3, v3, v2")
        a(f"v_lshl_add_u32 v{dst}, v3, 4, v{dst}")
        a(f"s_lshl_b32 s3, s67, 7\nv_add_u32 v{dst}, s3, v{dst}")
    def panel96_addr(self, dst):
        a = self.a
        for n in range(3):
            a(f"v_add_u32 v2, {64*n}, v1\nv_cmp_le_u32 vcc, 96, v2\nv_cndmask_b32 v3, 0, 1, vcc")
            a("v_mul_u32_u24 v4, 96, v3\nv_sub_u32 v2, v2, v4")
            a("s_lshl_b32 s3, s23, 1\nv_add_u32 v3, s3, v3")
            a(f"v_mul_u32_u24 v3, {CS}, v3\nv_add_u32 v4, s68, v2\nv_lshl_add_u32 v3, v4, 4, v3")
            a(f"v_cmp_gt_u32 vcc, s69, v2\nv_mov_b32 v4, {OOB}\nv_cndmask_b32 v{dst+n}, v4, v3, vcc")
    def panel96_issue(self, areg, gbase, nst, ldsbase, tag):
        a = self.a
        a(f"s_add_u32 s61, s75, {gbase}")
        for n in range(3):
            a(f"s_add_u32 m0, s65, {ldsbase + n*1024}")
            a(f"buffer_load_dwordx4 v{areg+n}, {srd(SWS)}, s61 offen {'sc1' if self.o['ldsc'] else ''} lds")
            self.vissue(tag)
        self.adv(75, 8*CS, nst)
    def c24_addr(self):
        a = self.a
        a("s_lshr_b32 s70, s23, 1\ns_and_b32 s71, s23, 1")
        a("v_lshrrev_b32 v11, 3, v1\nv_and_b32 v11, 3, v11\ns_lshl_b32 s3, s71, 1\nv_xor_b32 v11, s3, v11")
        a("v_lshrrev_b32 v2, 2, v1\nv_lshlrev_b32 v2, 7, v2\nv_and_b32 v3, 3, v1\nv_lshl_add_u32 v2, v3, 3, v2")
        a("v_xor_b32 v3, 1, v11\nv_lshl_add_u32 v5, v3, 5, v2\nv_lshl_add_u32 v2, v11, 5, v2")
        self.mk3(2); self.mk3(5)
        a("v_lshrrev_b32 v8, 4, v1\nv_mul_u32_u24 v8, 1536, v8\nv_and_b32 v11, 15, v1\nv_lshl_add_u32 v8, v11, 4, v8")
        a("s_mul_i32 s3, s70, 768\nv_add_u32 v8, s3, v8")
        self.mk3(8)
    def c24_loop(self, nst, aoff, boff, ACC, tsb):
        a = self.a
        def reads(u):
            s, ks = divmod(u, 2); f = 20 + 20*(u % 4); r = []
            for j in range(2):
                for rd in range(2):
                    r.append(f"ds_read_b64_tr_b16 v[{f+4*j+2*rd}:{f+4*j+2*rd+1}], {self.ad(2+3*j, aoff(s) + ks*4096 + rd*2048)}")
            for t in range(3):
                r.append(f"ds_read_b128 v[{f+8+4*t}:{f+11+4*t}], {self.ad(8, boff(s) + ks*4*1536 + t*256)}")
            return [r[0], r[4], r[1], r[5], r[2], r[3], r[6]]
        def mfmas(u):
            f = 20 + 20*(u % 4); r = []
            for j in range(2):
                for t in range(3):
                    c = ACC + (t*2+j)*4
                    cs = "0" if u == 0 else f"v[{c}:{c+3}]"
                    r.append(f"v_mfma_f32_16x16x32_bf16 v[{c}:{c+3}], v[{f+4*j}:{f+4*j+3}], v[{f+8+4*t}:{f+11+4*t}], {cs}")
            return r
        n = 2*nst
        self.bar()
        self.ts(tsb)
        for x in reads(0) + reads(1): a(x)
        for u in range(n):
            nu = u + 2
            if nu < n and nu % 2 == 0: self.bar()
            if u == nst: self.ts(tsb+1)
            a(f"s_waitcnt lgkmcnt({7 if u + 1 < n else 0})")
            if u == n - 1:
                self.bar(); self.ts(tsb+2)
            rd = reads(nu) if nu < n else []
            mf = mfmas(u)
            for i, m in enumerate(mf):
                a(m)
                if i < len(rd): a(rd[i])
            for x in rd[len(mf):]: a(x)
    def c24_rowaddr(self):
        a = self.a
        a("v_and_b32 v12, 15, v1\ns_mul_i32 s3, s70, 48\nv_add_u32 v12, s3, v12")
        a("v_lshrrev_b32 v13, 4, v1\nv_and_b32 v14, 1, v13\nv_lshlrev_b32 v14, 1, v14\nv_lshrrev_b32 v11, 1, v13\nv_add_u32 v14, v14, v11")
        a("s_lshl_b32 s3, s71, 2\nv_add_u32 v14, s3, v14")
    def c24_addr_rm(self, dst):
        a = self.a
        for t in range(3):
            a(f"v_add_u32 v11, {16*t}, v12\nv_cmp_gt_u32 vcc, s69, v11\nv_add_u32 v11, s68, v11\nv_mul_u32_u24 v11, 1280, v11")
            a(f"v_lshl_add_u32 v11, v14, 4, v11\ns_lshl_b32 s3, s67, 7\nv_add_u32 v11, s3, v11")
            a(f"v_mov_b32 v{dst+t}, {OOB}\nv_cndmask_b32 v{dst+t}, v{dst+t}, v11, vcc")
    def c24_addr_panel(self, dst):
        a = self.a
        for t in range(3):
            a(f"s_lshl_b32 s3, s67, 3\nv_add_u32 v{dst+t}, s3, v14\nv_mul_u32_u24 v{dst+t}, {CS}, v{dst+t}")
            a(f"v_add_u32 v11, {16*t}, v12\nv_cmp_gt_u32 vcc, s69, v11\nv_add_u32 v11, s68, v11")
            a(f"v_lshl_add_u32 v11, v11, 4, v{dst+t}")
            a(f"v_mov_b32 v{dst+t}, {OOB}\nv_cndmask_b32 v{dst+t}, v{dst+t}, v11, vcc")
    def c24_sum(self, ACC, RES, OUT, T, store):
        a = self.a
        for t in range(3):
            A = ACC + t*8; B = A + 4
            for d in range(4):
                a(f"v_lshlrev_b32 v{T+2*d}, 16, v{RES+4*t+d}\nv_and_b32 v{T+2*d+1}, 0xffff0000, v{RES+4*t+d}")
            for r in range(4): a(f"v_permlane16_swap_b32 v{A+r}, v{B+r}")
            for d in range(4):
                a(f"v_pk_add_f32 v[{T+2*d}:{T+2*d+1}], v[{T+2*d}:{T+2*d+1}], v[{A+2*d}:{A+2*d+1}]")
            for d in range(4):
                a(f"v_cvt_pk_bf16_f32 v{OUT+4*t+d}, v{T+2*d}, v{T+2*d+1}")
            store(t)

    P2_WO = 81920; P2_RING = 0; P2_NS = 6
    HREG = 240
    def p2_wo_setup(self):
        a = self.a
        self.w64_addr(44, 8); self.w64_addr(45, 40)
        a(f"s_cmp_ge_u32 s57, 30\ns_cselect_b32 s3, {OOB}, 0\nv_or_b32 v44, s3, v44\nv_or_b32 v45, s3, v45")
        a(f"s_mul_i32 s77, s23, {160*1280}\ns_mul_i32 s79, s23, 5")
        if self.o["rot2"]:
            a("s_lshl_b32 s3, s67, 1\ns_add_u32 s79, s79, 20\ns_sub_u32 s79, s79, s3\ns_sub_u32 s3, s79, 20\ns_cmp_ge_u32 s79, 20\ns_cselect_b32 s79, s3, s79")
        a("s_lshl_b32 s79, s79, 12")
    def p2_wo_issue(self, kk):
        a = self.a
        for io in range(4):
            q = 4*kk + 2*(io % 2); rd = io // 2; hg = q // 10; c = q % 10
            if c < 8: row = 80*hg + 20*(c//2) + 4*rd; reg = 44
            else: row = 80*hg + 20*rd + 16; reg = 45
            a(f"s_add_u32 m0, s79, {self.P2_WO + io*1024}")
            a(f"s_add_u32 s61, s77, {row*1280}")
            a(f"buffer_load_dwordx4 v{reg}, {srd(SWO)}, s61 offen lds")
            self.vissue("wo")
        self.adv(79, 4096, 20)
    def p2c(self):
        a = self.a
        self.p24_ids(); self.c24_addr(); self.c24_rowaddr()
        XR = 220
        self.c24_addr_rm(16)
        for t in range(3):
            a(f"buffer_load_dwordx4 v[{XR+4*t}:{XR+4*t+3}], v{16+t}, {srd(SX)}, 0 offen")
        self.c24_addr_panel(16)
        a("v_and_b32 v232, 1, v13\nv_lshl_add_u32 v232, v232, 4, v12\nv_add_u32 v233, 32, v12\nv_lshrrev_b32 v11, 1, v13\nv_lshlrev_b32 v11, 2, v11")
        a(f"v_mov_b32 v15, {OOB}")
        for r in (232, 233):
            a(f"v_cmp_gt_u32 vcc, s69, v{r}\nv_add_u32 v{r}, s68, v{r}\nv_lshl_add_u32 v{r}, v{r}, 3, v11\nv_cndmask_b32 v{r}, v15, v{r}, vcc")
        a(f"s_lshl_b32 s60, s67, 1\ns_add_u32 s60, s60, s71\ns_lshl_b32 s60, s60, 14\ns_add_u32 s60, s60, {ST_BASE}")
        a("s_mul_i32 s74, s56, 30\ns_add_u32 s74, s74, s57")
        ACC = 100
        self.c24_loop(10, lambda s: self.P2_WO + s*8192, lambda s: self.P2_RING + (s % self.P2_NS)*12288, ACC, 7)
        a("s_waitcnt vmcnt(0)")
        H = self.HREG
        a(f"s_mov_b32 s61, {H_BASE}")
        a("v_mov_b32 v30, 0x3f803f80")
        for t in range(6): a(f"v_mov_b32 v{20+t}, 0")
        a("s_mov_b64 vcc, s[86:87]")
        self.c24_sum(ACC, XR, H, 32, lambda t: self.hst(f"buffer_store_dwordx4 v[{H+4*t}:{H+4*t+3}], v{16+t}, {srd(SWS)}, s61 offen"))
        for d in range(4):
            for t in range(3):
                a(f"v_dot2c_f32_bf16 v{20+2*t}, v{H+4*t+d}, v30\nv_dot2c_f32_bf16 v{21+2*t}, v{H+4*t+d}, v{H+4*t+d}")
        for t in range(3): a(f"v_permlane32_swap_b32 v{20+2*t}, v{21+2*t}")
        for t in range(3): a(f"v_add_f32 v{20+2*t}, v{20+2*t}, v{21+2*t}")
        a("v_mov_b32 v25, v24")
        a("v_permlane16_swap_b32 v20, v22\nv_permlane16_swap_b32 v24, v25")
        a("v_add_f32 v20, v20, v22\nv_add_f32 v24, v24, v25")
        self.hst(f"buffer_store_dword v20, v232, {srd(SWS)}, s60 offen")
        self.hst(f"buffer_store_dword v24, v233, {srd(SWS)}, s60 offen")
        self.ts(19)
        self.signal(1, "s23")
        self.ts(20)
    def p2l(self):
        a = self.a
        self.panel96_addr(11)
        a("s_mul_i32 s65, s23, 3072")
        a(f"s_mul_i32 s75, s67, {8*CS}" if self.o["rot2"] else "s_mov_b32 s75, 0")
        a("v_lshlrev_b32 v14, 4, v1\ns_lshl_b32 s3, s23, 10\nv_add_u32 v19, s3, v14\nv_add_u32 v14, s64, v14")
        a("s_lshl_b32 s61, s56, 2\ns_add_u32 s61, s61, s66\ns_lshl_b32 s61, s61, 3\ns_mov_b32 s60, 32")
        self.wait_flags(0, True)
        self.ts(7)
        NS = self.P2_NS
        iss = lambda s: self.panel96_issue(11, O_BASE, 10, self.P2_RING + (s % NS)*12288, ("o", s))
        for s in range(NS): iss(s)
        self.vwait([("o", 0)])
        for s in range(10):
            self.bar()
            if s >= 2 and s + NS - 2 <= 9: iss(s + NS - 2)
            if s >= self.o["c0"]: self.bg_issue(self.o["nC"])
            if s + 1 <= 9: self.vwait([("o", s + 1)])
        self.bar()
        a("s_cmp_ge_u32 s57, 28\ns_cbranch_scc1 Lskip3l")
        self.bg_skip = [x for x in self.bg if x[0] == "w2"]

    def p3w(self, s): return A16(s % 3)
    def p3h(self, s): return A16([3, 4, 5, 9, 6, 7, 8][s % 7])
    P3_ST = 159744
    def p3_ids(self):
        a = self.a
        a("s_cmp_ge_u32 s57, 14\ns_cselect_b32 s3, 1, 0\ns_cselect_b32 s73, 14, 0\ns_sub_u32 s73, s57, s73")
        a("s_lshl_b32 s72, s56, 1\ns_add_u32 s72, s72, s3\ns_lshl_b32 s72, s72, 7")
    def p3_w_setup(self):
        a = self.a
        self.p3_ids()
        a("v_lshrrev_b32 v2, 4, v1\nv_lshlrev_b32 v3, 2, v2\nv_and_b32 v4, 15, v1\nv_xor_b32 v4, v4, v3")
        a("v_mul_u32_u24 v150, 3456, v2\nv_lshl_add_u32 v150, v4, 4, v150")
        a(f"s_lshl_b32 s3, s73, 8\ns_mul_i32 s61, s23, {16*3456}\ns_add_u32 s3, s3, s61")
        a(f"s_cmp_ge_u32 s57, 28\ns_cselect_b32 s3, {OOB}, s3\nv_add_u32 v150, s3, v150")
        a("s_lshl_b32 s64, s23, 12")
        if self.o["rot3"]:
            a("s_mul_i32 s77, s73, 183\ns_lshr_b32 s77, s77, 8\ns_cmp_ge_u32 s57, 14\ns_cselect_b32 s3, 5, 0\ns_add_u32 s77, s77, s3")
            a("s_sub_u32 s3, s77, 10\ns_cmp_ge_u32 s77, 10\ns_cselect_b32 s77, s3, s77")
        else: a("s_mov_b32 s77, 0")
        a(f"s_mul_i32 s76, s77, {64*3456}")
    def p3c(self):
        a = self.a
        Lsig = self.lab("P3sig")
        a("s_cmp_ge_u32 s57, 28\ns_cbranch_scc1 Lskip3c")
        self.p3_ids()
        a("v_lshrrev_b32 v11, 2, v1\nv_and_b32 v11, 3, v11")
        a("v_lshrrev_b32 v2, 5, v1\nv_lshl_add_u32 v2, v2, 3, v11\nv_lshlrev_b32 v2, 8, v2")
        a("v_lshrrev_b32 v3, 4, v1\nv_and_b32 v3, 1, v3\nv_lshl_add_u32 v2, v3, 5, v2\nv_and_b32 v3, 3, v1\nv_lshl_add_u32 v2, v3, 3, v2")
        a("s_lshl_b32 s3, s71, 1\nv_xor_b32 v11, s3, v11")
        a("v_xor_b32 v3, 1, v11\nv_lshl_add_u32 v5, v3, 6, v2\nv_lshl_add_u32 v2, v11, 6, v2")
        self.mk3(2); self.mk3(5)
        a("v_lshrrev_b32 v8, 5, v1\nv_lshlrev_b32 v8, 11, v8\nv_and_b32 v11, 31, v1\nv_lshl_add_u32 v8, v11, 4, v8")
        a("s_lshl_b32 s3, s70, 10\nv_add_u32 v8, s3, v8")
        self.mk3(8)
        a("v_lshrrev_b32 v15, 5, v1\nv_lshlrev_b32 v12, 4, v15")
        a(f"s_lshl_b32 s62, s71, 8\ns_lshl_b32 s3, s73, 9\ns_add_u32 s62, s62, s3\ns_add_u32 s62, s62, {CSUM}")
        a("v_lshlrev_b32 v13, 3, v11")
        a(f"s_lshl_b32 s3, s70, 9\ns_add_u32 s3, s3, {self.P3_ST}\nv_add_u32 v13, s3, v13")
        a(f"v_mul_u32_u24 v14, {CS}, v15\nv_lshl_add_u32 v14, v11, 4, v14")
        a("s_lshl_b32 s77, s73, 1\ns_add_u32 s77, s77, s71")
        a(f"s_mul_i32 s60, s77, {8*CS}\ns_lshl_b32 s3, s70, 6\ns_add_u32 s3, s3, s72\ns_lshl_b32 s3, s3, 4\ns_add_u32 s60, s60, s3\ns_add_u32 s60, s60, {G_BASE}")
        a("s_mul_i32 s74, s56, 28\ns_add_u32 s74, s74, s57")
        a("v_mov_b32 v16, 1.0")
        ACC = 100; FB = [20, 36]; CSR = 52; STR = 84
        def reads(u):
            s, ks = divmod(u, 4); f = FB[u % 2]; r = []
            for t in range(2):
                r.append(f"ds_read_b128 v[{f+8+4*t}:{f+11+4*t}], {self.ad(8, self.p3h(s) + ks*4096 + t*512)}")
            for j in range(2):
                for rd in range(2):
                    r.append(f"ds_read_b64_tr_b16 v[{f+4*j+2*rd}:{f+4*j+2*rd+1}], {self.ad(2+3*j, self.p3w(s) + ks*4096 + rd*1024)}")
            return [r[0], r[2], r[3], r[1], r[4], r[5]]
        def mfmas(u):
            f = FB[u % 2]; r = []
            for j in range(2):
                for t in range(2):
                    c = ACC + (j*2+t)*16
                    cs = "0" if u == 0 else f"v[{c}:{c+15}]"
                    r.append(f"v_mfma_f32_32x32x16_bf16 v[{c}:{c+15}], v[{f+4*j}:{f+4*j+3}], v[{f+8+4*t}:{f+11+4*t}], {cs}")
            return r
        for u in range(40):
            rd = reads(u); mf = mfmas(u-1) if u else []
            if u % 4 == 0:
                if mf: a(mf.pop(0))
                self.bar()
            if u == 0: self.ts(10)
            if u == 20: self.ts(23)
            if u == 17:
                for j in range(2):
                    for q in range(4): a(f"buffer_load_dwordx4 v[{CSR+16*j+4*q}:{CSR+16*j+4*q+3}], v12, {srd(SWS)}, s62 offen offset:{128*j + 32*q} sc1")
            i = 0
            for m in mf:
                if u % 4 == 0:
                    for x in rd[i:i+3]: a(x)
                    i += 3
                    a(m)
                else:
                    a(m)
                    for x in rd[i:i+3]: a(x)
                    i += 3
            for x in rd[i:]: a(x)
            a("s_waitcnt lgkmcnt(0)")
        mf = mfmas(39)
        a(mf.pop(0))
        self.bar()
        self.ts(11)
        for t in range(2): a(f"ds_read_b64 v[{STR+4*t}:{STR+4*t+1}], v13 offset:{256*t}")
        for m in mf: a(m)
        a("s_waitcnt vmcnt(0) lgkmcnt(0)\ns_mov_b64 vcc, s[86:87]")
        a(f"s_cmp_ge_u32 s77, 27\ns_cbranch_scc1 {Lsig}")
        for t in range(2):
            a(f"v_mul_f32 v{STR+4*t+2}, -1.4426950408889634, v{STR+4*t}")
        T = 20
        for j in range(2):
            for t in range(2):
                c = ACC + (j*2+t)*16
                A_ = STR + 4*t
                for qq in range(0, 4, 2):
                    o = T + 16 + 4*((qq//2) % 2)
                    for p in range(4):
                        x = c + 4*qq + 2*p; k = CSR + 16*j + 4*qq + 2*p
                        a(f"v_pk_fma_f32 v[{x}:{x+1}], v[{k}:{k+1}], v[{A_}:{A_+1}], v[{x}:{x+1}] op_sel:[0,1,0] op_sel_hi:[1,1,1] neg_lo:[0,1,0] neg_hi:[0,1,0]")
                    for p in range(4):
                        x = c + 4*qq + 2*p
                        a(f"v_pk_mul_f32 v[{T+2*p}:{T+2*p+1}], v[{x}:{x+1}], v[{A_+2}:{A_+3}] op_sel_hi:[1,0]")
                    for p in range(8): a(f"v_exp_f32 v{T+p}, v{T+p}")
                    for p in range(4):
                        x = c + 4*qq + 2*p
                        a(f"v_pk_mul_f32 v[{x}:{x+1}], v[{x}:{x+1}], v[{A_}:{A_+1}] op_sel_hi:[1,0]")
                    for p in range(4):
                        a(f"v_pk_add_f32 v[{T+2*p}:{T+2*p+1}], v[{T+2*p}:{T+2*p+1}], v[16:17] op_sel_hi:[1,0]")
                    for p in range(8): a(f"v_rcp_f32 v{T+p}, v{T+p}")
                    for p in range(4):
                        x = c + 4*qq + 2*p
                        a(f"v_pk_mul_f32 v[{x}:{x+1}], v[{x}:{x+1}], v[{T+2*p}:{T+2*p+1}]")
                    for p in range(4):
                        x = c + 4*qq + 2*p
                        a(f"v_cvt_pk_bf16_f32 v{o+p}, v{x}, v{x+1}")
                    a(f"v_permlane32_swap_b32 v{o}, v{o+2}\nv_permlane32_swap_b32 v{o+1}, v{o+3}")
                    a(f"s_add_u32 s61, s60, {(4*j + qq)*CS + 512*t}")
                    self.hst(f"buffer_store_dwordx4 v[{o}:{o+3}], v14, {srd(SWS)}, s61 offen")
        a(f"{Lsig}:")
        self.ts(21)
        self.signal(2, "s23")
        self.ts(22)
        a("Lskip3c:")
    def p3l(self):
        a = self.a
        self.bg_issue(sum(1 for x in self.bg if x[0] == "w1" and x[1] < 3), True)
        for s in range(3): self.w1_flush(s)
        a(f"s_mul_i32 s3, s23, {2*CS}\ns_lshl_b32 s61, s72, 4\ns_add_u32 s3, s3, s61\nv_lshl_add_u32 v18, v1, 4, s3")
        a(f"s_mul_i32 s75, s77, {8*CS}")
        a("v_and_b32 v2, 31, v1\nv_lshrrev_b32 v3, 5, v1\nv_lshlrev_b32 v3, 14, v3\nv_lshl_add_u32 v10, v2, 3, v3")
        a("s_lshl_b32 s3, s23, 5\ns_add_u32 s3, s3, s72\ns_lshl_b32 s3, s3, 3\nv_add_u32 v10, s3, v10")
        a("s_waitcnt lgkmcnt(0)")
        self.w1_free(2)
        self.bg_issue(self.o["nD"])
        def hiss(s):
            for n in range(4):
                a(f"s_add_u32 m0, s64, {self.p3h(s) + n*1024}")
                a(f"s_add_u32 s61, s75, {H_BASE + (n//2)*CS + (n % 2)*1024}")
                a(f"buffer_load_dwordx4 v18, {srd(SWS)}, s61 offen {'sc1' if self.o['ldsc'] else ''} lds")
                self.vissue(("h", s))
            self.adv(75, 8*CS, 10)
        a("s_cmp_ge_u32 s57, 14\ns_cselect_b32 s3, 10, 0\ns_mul_i32 s61, s56, 30\ns_add_u32 s61, s61, s3\ns_mov_b32 s60, 21")
        a(f"s_add_u32 s62, s73, 240\ns_sub_u32 s62, s62, s61\ns_mul_i32 s62, s62, {self.FS}")
        self.wait_flags(1, False, "v_writelane_b32 v2, s62, 20")
        self.ts(10)
        HL = self.o["hla"]; SR = 152
        hiss(0); hiss(1)
        self.vwait([("h", 0)])
        nh = 2
        for s in range(10):
            self.bar()
            if s == 0:
                for n in range(10):
                    a(f"s_mov_b32 s61, {ST_BASE + n*32768}")
                    a(f"buffer_load_dwordx2 v[{SR+2*n}:{SR+1+2*n}], v10, {srd(SWS)}, s61 offen sc1")
                    self.vissue("st")
            if s >= 1 and s + 2 <= 9:
                self.bg_issue(sum(1 for x in self.bg if x[0] == "w1" and x[1] <= s + 2), True)
                self.w1_flush(s + 2)
            if s >= 2 and s + 1 <= 9: self.w1_free(s + 1)
            for _ in range(self.o["hper"]):
                if nh <= 9 and nh <= s + HL - 1 and nh <= max(s, 1) + 5 + (1 if s >= 1 else 0) and (nh < 7 or nh - 7 < s):
                    hiss(nh); nh += 1
            if s >= self.o["e0"]: self.bg_issue(self.o["nE"])
            if s == 2:
                self.vwait("st")
                for n in range(1, 10): a(f"v_pk_add_f32 v[{SR}:{SR+1}], v[{SR}:{SR+1}], v[{SR+2*n}:{SR+1+2*n}]")
                a(f"v_mov_b32 v248, v{SR}\nv_mov_b32 v249, v{SR+1}")
                a(f"v_permlane32_swap_b32 v{SR}, v248\nv_permlane32_swap_b32 v{SR+1}, v249")
                a(f"v_add_f32 v{SR}, v{SR}, v248\nv_add_f32 v{SR+1}, v{SR+1}, v249")
                a(f"v_mul_f32 v249, {1.0/640!r}, v{SR}\nv_mul_f32 v{SR+1}, {1.0/640!r}, v{SR+1}")
                a(f"v_fma_f32 v{SR+1}, -v249, v249, v{SR+1}\nv_max_f32 v{SR+1}, 0, v{SR+1}\nv_add_f32 v{SR+1}, 1e-5, v{SR+1}\nv_rsq_f32 v248, v{SR+1}")
                self.w1_free(0); self.w1_free(1)
            if s == 4:
                a(f"v_and_b32 v2, 31, v1\nv_lshlrev_b32 v2, 3, v2\ns_lshl_b32 s3, s23, 8\ns_add_u32 s3, s3, {self.P3_ST}\nv_add_u32 v2, s3, v2")
                a("ds_write_b64 v2, v[248:249]")
            a("s_waitcnt lgkmcnt(0)")
            if s + 1 <= 9:
                assert nh > s + 1
                self.vwait([("h", s + 1)])
        self.bar()
        self.bg_issue(999, True)
        a("s_branch Lp4l")
        a("Lskip3l:")
        self.bg = self.bg_skip; self.busy = set()
        self.bg_issue(999, True)
        a("Lp4l:")
        a("s_waitcnt vmcnt(0)")
        self.vreset()

    P4_G = 32768
    def p4_w_setup(self):
        a = self.a
        self.w64_addr(17, 8)
        a("s_and_b32 s3, s23, 1\ns_lshl_b32 s3, s3, 4\ns_lshr_b32 s61, s23, 1\ns_lshl_b32 s61, s61, 2\ns_add_u32 s3, s3, s61\ns_mul_i32 s3, s3, 1280")
        a(f"s_cmp_ge_u32 s57, 30\ns_cselect_b32 s3, {OOB}, s3\nv_add_u32 v17, s3, v17")
        if self.o["rot4"]:
            a("s_mul_i32 s82, s67, 27*205\ns_lshr_b32 s82, s82, 11\ns_mul_i32 s3, s66, 9\ns_add_u32 s82, s82, s3")
            a("s_sub_u32 s3, s82, 27\ns_cmp_ge_u32 s82, 27\ns_cselect_b32 s82, s3, s82")
        else: a("s_mov_b32 s82, 0")
        a(f"s_mul_i32 s83, s82, {64*1280}")
    def p4c(self):
        a = self.a
        self.c24_addr(); self.c24_rowaddr()
        H = self.HREG
        self.c24_addr_rm(16)
        ACC = 100
        self.c24_loop(27, lambda s: (s % 4)*8192, lambda s: self.P4_G + (s % 10)*12288, ACC, 12)
        self.c24_sum(ACC, H, 40, 20, lambda t: a(f"buffer_store_dwordx4 v[{40+4*t}:{43+4*t}], v{16+t}, {srd(SOUT)}, 0 offen"))
        self.fin()
    def p4l(self):
        a = self.a
        for u in range(4): self.w2_flush(u)
        a(f"s_mul_i32 s75, s82, {8*CS}")
        a("s_cmp_eq_u32 s66, 2\ns_cselect_b32 s3, 14, 0\ns_mul_i32 s61, s56, 28\ns_add_u32 s61, s61, s3")
        a("s_cmp_eq_u32 s66, 1\ns_cselect_b32 s60, 28, 14")
        self.wait_flags(2, False)
        self.ts(12)
        GN = self.o["gn"]
        gis = lambda s: self.panel96_issue(11, G_BASE, 27, self.P4_G + (s % 10)*12288, ("g", s))
        for s in range(3): gis(s)
        ng = 3
        self.vwait([("g", 0)])
        a("s_waitcnt lgkmcnt(0)")
        for s in range(27):
            self.bar()
            fl = s >= 2 and s + 2 <= 26
            if fl and not self.o["ord4"]: self.w2_flush(s + 2)
            for _ in range(self.o["gper"]):
                if ng <= 26 and ng <= s + GN - 2 + (2 if s < 2 else 0) and (ng < 10 or ng - 10 <= s - 2):
                    gis(ng); ng += 1
            if fl and self.o["ord4"]: self.w2_flush(s + 2)
            if s + 1 <= 26: self.vwait([("g", s + 1)])
            a(f"s_waitcnt lgkmcnt({8 // self.o['wsz'] if fl and self.o['lazy'] else 0})")
        self.bar()
        self.fin()

    def build(self):
        a = self.a
        self.prologue()
        a("s_cmp_ge_u32 s22, 4\ns_cbranch_scc0 Lcomp")
        if self.o["lprio"]: a(f"s_setprio {self.o['lprio']}")
        self.p1l(); self.p2l(); self.p3l(); self.p4l()
        a("Lcomp:")
        if self.o["prio"]: a(f"s_setprio {self.o['prio']}")
        self.tprev = None; self.tn = 0
        self.p1c(); self.p2c(); self.p3c(); self.p4c()
        self.csum()
        for x in self.ool: a(x)
        a("Lend:\ns_endpgm")
    def text(self):
        L, n = hazard.fix(self.L)
        nm = self.name
        return "\n".join([f".globl {nm}", ".p2align 8", f".type {nm},@function", f"{nm}:"] + L) + "\n"
    def desc(self):
        return "\n".join([".p2align 6", f".amdhsa_kernel {self.name}",
            "  .amdhsa_next_free_vgpr 256", "  .amdhsa_next_free_sgpr 102", "  .amdhsa_accum_offset 256",
            "  .amdhsa_group_segment_fixed_size 0", "  .amdhsa_kernarg_size 72", "  .amdhsa_user_sgpr_count 2",
            "  .amdhsa_user_sgpr_kernarg_segment_ptr 1", "  .amdhsa_system_sgpr_workgroup_id_x 1",
            "  .amdhsa_float_denorm_mode_32 3",
            ".end_amdhsa_kernel"]) + "\n"

def header():
    ref = open(f"cdna_kernels/{NAME}.s.ref").read().split("\n")
    return [l for l in ref if l.startswith(";") and "@launch" not in l]
def build(dbg=False, opt=None):
    g = G(NAME + "_kernel", dbg, opt); g.build()
    out = header()
    out.append(f"; @launch grid=(256,1,1) block=(512,1,1) lds={LDS}")
    out += ['.amdgcn_target "amdgcn-amd-amdhsa--gfx950"', ".text", g.text(), '.section .rodata,"a"', g.desc()]
    return "\n".join(out)
if __name__ == "__main__":
    path = sys.argv[1]; dbg = False; opt = {}
    for x in sys.argv[2:]:
        if x == "dbg": dbg = True
        else:
            k, v = x.split("="); assert k in OPT, k; opt[k] = int(v)
    txt = build(dbg, opt)
    open(path, "w").write(txt)
    import subprocess
    r = subprocess.run(["clang", "-x", "assembler", "-target", "amdgcn-amd-amdhsa", "-mcpu=gfx950", "-c", path, "-o", "chk.o"], capture_output=True, text=True)
    print(r.stderr[:3000] if r.returncode else "assembled ok", len(txt))
```

```python
import sys
sys.path.insert(0, "dev")
import hazard

NAME = "sequential_preLN__sliding_local_dilated__dense_activation_silu__prompt"
S, D, F = 2048, 640, 1728
CS = 2048 * 16
O_BASE = 0
H_BASE = 80 * CS
ST_BASE = 160 * CS
G_BASE = 0x600000
FL_BASE = 0xE00000
TS_BASE = 0xF00000
WS_SIZE = 0x1200000
TS2 = 0x1000000
OOB = 0x80000000
LDS = 163840
SX, SWQ, SWO, SW1, SW2, SOUT, SDBG, SWS = 24, 28, 32, 36, 40, 44, 48, 52
def srd(n): return f"s[{n}:{n+3}]"
A16 = lambda k: 16384 * k

CSUM = 0xE80000
OPT = dict(la1=3, rot1=1, rot2=1, rot3=1, rot4=1, map1=0, fast=1, nA=24, nB=16, nC=2, c0=4, nD=0, nE=4, e0=1, hla=7, gn=10, wo0=16, lazy=1, ord4=0, gper=2, hper=2, prio=0, lprio=0, wsz=4, ldsc=1, pen=0, osc=0)

class G:
    NL = 0
    def __init__(self, name, dbg=False, opt=None):
        self.name = name; self.L = []; self.dbg = dbg
        self.o = dict(OPT); self.o.update(opt or {})
        self.vm = []; self.tprev = None; self.tn = 0; self.ool = []
    def a(self, s):
        for line in s.split("\n"):
            line = line.strip()
            if line: self.L.append(line if line.endswith(":") else "    " + line)
    def lab(self, b="L"):
        G.NL += 1; return f"{b}_{G.NL}"
    def vissue(self, tag): self.vm.append(tag)
    def vwait(self, tags):
        if not isinstance(tags, (list, set)): tags = [tags]
        last = -1
        for i, t in enumerate(self.vm):
            if t in tags: last = i
        if last < 0: return
        n = len(self.vm) - 1 - last
        assert n <= 63, n
        self.a(f"s_waitcnt vmcnt({n})")
        self.vm = self.vm[last + 1:]
    def vreset(self): self.vm = []
    def tc(self, i):
        if self.dbg: self.a(f"s_memtime s[80:81]\ns_waitcnt lgkmcnt(0)\nv_writelane_b32 v255, s80, {i}")
    def ts(self, i):
        if self.dbg: self.a(f"s_memrealtime s[80:81]\ns_waitcnt lgkmcnt(0)\nv_writelane_b32 v255, s80, {i}")
    def bar(self):
        if self.dbg:
            if self.tprev is not None: self.a(f"v_writelane_b32 v{253 + self.tprev // 64}, s84, {self.tprev % 64}")
            self.a("s_memtime s[84:85]")
            self.tprev = self.tn; self.tn += 1
        self.a("s_barrier")
    def prologue(self):
        a = self.a
        a("s_load_dwordx16 s[4:19], s[0:1], 0")
        a("s_load_dwordx2 s[20:21], s[0:1], 64")
        a("s_cmp_ge_u32 s2, 256")
        a("s_cbranch_scc1 Lend")
        a("v_and_b32 v1, 63, v0")
        a("v_lshrrev_b32 v2, 6, v0")
        a("v_readfirstlane_b32 s22, v2")
        a("s_and_b32 s56, s2, 7")
        a("s_lshr_b32 s57, s2, 3")
        a("s_and_b32 s23, s22, 3")
        if self.o["map1"]:
            a("s_and_b32 s58, s57, 7\ns_lshl_b32 s59, s56, 2\ns_lshr_b32 s3, s57, 3\ns_add_u32 s59, s59, s3")
        else:
            a("s_and_b32 s58, s56, 1\ns_lshl_b32 s58, s58, 2\ns_and_b32 s3, s57, 3\ns_add_u32 s58, s58, s3")
            a("s_lshr_b32 s59, s56, 1\ns_lshl_b32 s59, s59, 3\ns_lshr_b32 s3, s57, 2\ns_add_u32 s59, s59, s3")
        if self.dbg: a("v_mov_b32 v255, 0\nv_mov_b32 v254, 0\nv_mov_b32 v253, 0")
        self.ts(0); self.tc(16)
    def srds(self, which):
        self.a("s_waitcnt lgkmcnt(0)")
        T = {SX: (4, S*D*2), SWQ: (6, D*3*D*2), SWO: (8, D*D*2), SW1: (12, D*F*2), SW2: (14, F*D*2),
             SOUT: (16, S*D*2), SDBG: (18, 256), SWS: (20, WS_SIZE)}
        for d in which:
            b, n = T[d]
            self.a(f"s_mov_b32 s{d}, s{b}\ns_mov_b32 s{d+1}, s{b+1}\ns_mov_b32 s{d+2}, {n}\ns_mov_b32 s{d+3}, 0x00020000")
    def fin(self):
        if self.dbg:
            self.a("s_waitcnt vmcnt(0)")
            self.ts(15); self.tc(17)
            self.a(f"s_lshl_b32 s80, s2, 3\ns_add_u32 s80, s80, s22\ns_lshl_b32 s80, s80, 7\ns_add_u32 s80, s80, {TS_BASE}")
            self.a(f"v_writelane_b32 v{253 + self.tprev // 64}, s84, {self.tprev % 64}")
            self.a(f"v_lshlrev_b32 v2, 2, v1\ns_lshl_b32 s84, s2, 3\ns_add_u32 s84, s84, s22\ns_lshl_b32 s84, s84, 9\ns_add_u32 s84, s84, {TS2}")
            self.a(f"buffer_store_dword v253, v2, {srd(SWS)}, s84 offen\nbuffer_store_dword v254, v2, {srd(SWS)}, s84 offen offset:256")
            self.a(f"v_lshlrev_b32 v2, 2, v1\ns_mov_b32 exec_hi, 0\nbuffer_store_dword v255, v2, {srd(SWS)}, s80 offen")
        self.a("s_endpgm")

    FS = 64
    def flag_clear(self):
        a = self.a
        Lk = self.lab("fc")
        a("s_getreg_b32 s3, hwreg(HW_REG_XCC_ID, 0, 4)\ns_mul_i32 s88, s3, s3\ns_lshl_b32 s88, s88, 10\ns_add_u32 s88, s88, s3\ns_add_u32 s88, s88, 0x800000")
        a(f"s_cmp_lg_u32 s22, 0\ns_cbranch_scc1 {Lk}")
        a(f"v_lshrrev_b32 v2, 3, v1\nv_mul_u32_u24 v2, {256*self.FS}, v2\nv_and_b32 v3, 7, v1\nv_lshl_add_u32 v2, v3, 2, v2")
        a(f"v_mov_b32 v3, 0\ns_mul_i32 s61, s2, {self.FS}\ns_add_u32 s61, s61, {FL_BASE}")
        a(f"s_mov_b64 exec, 0xffffff\nbuffer_store_dword v3, v2, {srd(SWS)}, s61 offen sc1\ns_mov_b64 exec, -1")
        a("s_lshl_b32 s61, s56, 5\nv_mov_b32 v3, s88")
        a("s_waitcnt vmcnt(0)")
        a(f"s_mov_b64 exec, 1\nbuffer_atomic_add v3, off, {srd(SDBG)}, s61\ns_mov_b64 exec, -1")
        a(f"{Lk}:")
    def count_check(self):
        a = self.a
        Lk = self.lab("cp"); Lp = self.lab("cpl")
        a("s_mov_b64 exec, 255\ns_mov_b32 s60, 0x100000\ns_mov_b32 s61, 0x10000000")
        a(f"{Lp}:")
        a(f"s_waitcnt vmcnt(0)\nv_cmp_gt_u32 vcc, s61, v96\ns_cbranch_vccz {Lk}")
        a(f"buffer_load_dword v96, v97, {srd(SDBG)}, 0 offen sc1")
        a(f"s_sub_u32 s60, s60, 1\ns_cbranch_scc0 {Lp}")
        a(f"{Lk}:")
        a("s_mov_b64 exec, -1")
        a("s_waitcnt vmcnt(0)\nv_readlane_b32 s3, v96, s56\ns_lshl_b32 s88, s88, 5\ns_cmp_eq_u32 s3, s88\ns_cselect_b64 s[86:87], -1, 0")
        if not self.o["fast"]: a("s_mov_b64 s[86:87], 0")
        if self.o["pen"]:
            Lz = self.lab("pen")
            a(f"s_cmp_lg_u32 s86, 0\ns_cbranch_scc1 {Lz}")
            for _ in range(6): a("s_sleep 127")
            a(f"{Lz}:")
    def hst(self, txt, local=True):
        if not local:
            self.a(txt + " sc1"); return
        L1 = self.lab("slow"); L2 = self.lab("back")
        self.a(f"s_cbranch_vccz {L1}\n{txt}\n{L2}:")
        self.ool.append(f"{L1}:\ns_nop 7\n{txt} sc1\ns_branch {L2}")
    def signal(self, ph, wreg, local=True):
        a = self.a
        a(f"s_mul_i32 s61, s74, {self.FS}\ns_lshl_b32 s3, {wreg}, 2\ns_add_u32 s61, s61, s3\ns_add_u32 s61, s61, {FL_BASE + ph*256*self.FS}\nv_mov_b32 v3, 1")
        a("s_waitcnt vmcnt(0)")
        a("s_mov_b64 exec, 1")
        self.hst(f"buffer_store_dword v3, off, {srd(SWS)}, s61", local)
        a("s_mov_b64 exec, -1")
    def wait_flags(self, ph, two, extra=None):
        a = self.a
        a(f"s_mul_i32 s61, s61, {self.FS}\ns_add_u32 s61, s61, {FL_BASE + ph*256*self.FS}")
        Lp = self.lab("poll"); Lq = self.lab("pollx")
        if two: a(f"v_lshrrev_b32 v2, 1, v1\nv_mul_u32_u24 v2, {self.FS}, v2\nv_and_b32 v3, 1, v1\nv_lshl_add_u32 v2, v3, 4, v2")
        else: a(f"v_mul_u32_u24 v2, {self.FS}, v1")
        if extra: a(extra)
        a("s_bfm_b64 exec, s60, 0\ns_mov_b32 s60, 0x100000")
        a(f"{Lp}:")
        a(f"buffer_load_dwordx4 v[4:7], v2, {srd(SWS)}, s61 offen sc1")
        a(f"s_sub_u32 s60, s60, 1\ns_cbranch_scc1 {Lq}")
        a("s_waitcnt vmcnt(0)")
        a("v_and_b32 v4, v4, v5\nv_and_b32 v6, v6, v7\nv_and_b32 v4, v4, v6")
        a(f"v_cmp_ne_u32 vcc, 1, v4\ns_cbranch_vccnz {Lp}")
        a(f"{Lq}:")
        a("s_waitcnt vmcnt(0)\ns_mov_b64 exec, -1")
        self.vreset()
    def adv(self, sreg, stride, n):
        self.a(f"s_add_u32 s{sreg}, s{sreg}, {stride}\ns_cmp_eq_u32 s{sreg}, {stride*n}\ns_cselect_b32 s{sreg}, 0, s{sreg}")
    def mk3(self, r):
        self.a(f"v_add_u32 v{r+1}, 0x10000, v{r}\nv_add_u32 v{r+2}, 0x20000, v{r}")
    def ad(self, r, off):
        return f"v{r + (off >> 16)} offset:{off & 0xffff}"

    P1_SLOT = 40960; P1_W = 10240; P1_WS = 15360; P1_ST = 0; P1_QKV = 1024; P1_QS = 488
    def p1x(self, s): return (s % 4) * self.P1_SLOT
    def p1w(self, u): return ((u // 2) % 4) * self.P1_SLOT + self.P1_W + (u % 2) * self.P1_WS
    def p1c(self):
        a = self.a
        a(f"v_lshrrev_b32 v2, 3, v1\nv_and_b32 v2, 3, v2\nv_mul_u32_u24 v2, {self.P1_SLOT}, v2\nv_and_b32 v3, 7, v1\nv_lshl_add_u32 v2, v3, 4, v2")
        for r in range(4): a(f"v_mov_b32 v{20+r}, 0x3f803f80")
        a("ds_write_b128 v2, v[20:23]")
        a("v_lshrrev_b32 v10, 2, v1\nv_mul_u32_u24 v10, 480, v10\nv_and_b32 v3, 3, v1\nv_lshl_add_u32 v10, v3, 3, v10")
        a("s_lshl_b32 s3, s23, 7\nv_add_u32 v10, s3, v10")
        a("v_and_b32 v3, 15, v1\nv_lshrrev_b32 v13, 1, v3\nv_lshrrev_b32 v4, 4, v1\nv_xor_b32 v4, v4, v13\nv_lshlrev_b32 v4, 4, v4\nv_lshl_add_u32 v4, v3, 7, v4")
        a("v_xor_b32 v7, 64, v4")
        self.mk3(4); self.mk3(7); self.mk3(10)
        self.srds([SWS, SDBG, SX, SWO, SW1, SW2, SOUT])
        self.flag_clear()
        ACC = 100; FB = [20, 56]
        a("s_waitcnt lgkmcnt(0)")
        self.ts(1)
        def reads(u):
            fb = FB[u % 2]; r = []
            for t in range(5):
                r.append(f"ds_read_b128 v[{fb+16+4*t}:{fb+19+4*t}], {self.ad(4 + 3*(u % 2), self.p1x(u//2) + 2048*t)}")
            for j in range(4):
                for rd in range(2):
                    r.append(f"ds_read_b64_tr_b16 v[{fb+4*j+2*rd}:{fb+4*j+2*rd+1}], {self.ad(10, self.p1w(u) + 32*j + 7680*rd)}")
            return r
        def mfmas(u):
            fb = FB[u % 2]; r = []
            for j in range(4):
                for t in range(5):
                    c = ACC + (j*5+t)*4
                    cs = "0" if u == 0 else f"v[{c}:{c+3}]"
                    r.append(f"v_mfma_f32_16x16x32_bf16 v[{c}:{c+3}], v[{fb+4*j}:{fb+4*j+3}], v[{fb+16+4*t}:{fb+19+4*t}], {cs}")
            return r
        for u in range(20):
            self.bar()
            if u == 0: self.ts(2)
            if u == 10: self.ts(3)
            if u == 12:
                a(f"v_lshlrev_b32 v97, 5, v1\nbuffer_load_dword v96, v97, {srd(SDBG)}, 0 offen sc1")
            rd = reads(u); mf = mfmas(u-1) if u else []
            for i in range(max(len(rd), len(mf))):
                if i < len(rd): a(rd[i])
                if i < len(mf): a(mf[i])
            a("s_waitcnt lgkmcnt(0)")
        STR = 20; CSR = 32
        a("v_and_b32 v3, 15, v1\nv_lshlrev_b32 v13, 3, v3")
        mf = mfmas(19)
        for m in mf[:14]: a(m)
        self.bar()
        self.ts(4)
        for t in range(5): a(f"ds_read_b64 v[{STR+2*t}:{STR+2*t+1}], v13 offset:{self.P1_ST + 128*t}")
        for m in mf[14:]: a(m)
        a(f"v_mul_u32_u24 v2, {self.P1_QS}, v3\nv_lshrrev_b32 v3, 4, v1\nv_lshl_add_u32 v2, v3, 3, v2")
        a(f"s_lshl_b32 s3, s23, 7\ns_add_u32 s3, s3, {self.P1_QKV}\nv_add_u32 v2, s3, v2")
        a("s_waitcnt lgkmcnt(0)")
        Lsk = self.lab("P1sk")
        for j in range(4):
            if j == 3:
                a(f"s_cmp_eq_u32 s23, 3\ns_cbranch_scc1 {Lsk}")
            for r in range(4): a(f"v_mov_b32_dpp v{CSR+4*j+r}, v{ACC+j*20+r} row_newbcast:0 row_mask:0xf bank_mask:0xf")
            for t in range(5):
                c = ACC + (j*5+t)*4
                for p in (0, 2):
                    a(f"v_pk_fma_f32 v[{c+p}:{c+p+1}], v[{CSR+4*j+p}:{CSR+4*j+p+1}], v[{STR+2*t}:{STR+2*t+1}], v[{c+p}:{c+p+1}] op_sel:[0,1,0] op_sel_hi:[1,1,1] neg_lo:[0,1,0] neg_hi:[0,1,0]")
            for t in range(5):
                c = ACC + (j*5+t)*4
                for p in (0, 2):
                    a(f"v_pk_mul_f32 v[{c+p}:{c+p+1}], v[{c+p}:{c+p+1}], v[{STR+2*t}:{STR+2*t+1}] op_sel_hi:[1,0]")
            for t in range(5):
                c = ACC + (j*5+t)*4
                a(f"v_cvt_pk_bf16_f32 v{c}, v{c}, v{c+1}\nv_cvt_pk_bf16_f32 v{c+1}, v{c+2}, v{c+3}")
                a(f"ds_write_b64 v2, v[{c}:{c+1}] offset:{t*16*self.P1_QS + 32*j}")
        a(f"{Lsk}:")
        self.count_check()
        if self.o["map1"]: a("v_mov_b32 v2, 768\nv_mov_b32 v3, s86\nds_write_b32 v2, v3")
        a("s_waitcnt lgkmcnt(0)")
        self.p1tail()
    def p1tail(self, post=None):
        a = self.a
        self.bar()
        self.ts(5)
        self.attention()
        self.ts(6)
        a("s_lshl_b32 s74, s59, 3\ns_add_u32 s74, s74, s58")
        self.signal(0, "s22", self.o["map1"])
        self.vreset()
        self.ts(18)
        if post: post()
        self.bar()
        a("s_cmp_ge_u32 s57, 30\ns_cbranch_scc1 Lcsum")
    def csum(self):
        a = self.a
        a("Lcsum:")
        a("s_sub_u32 s60, s57, 30\ns_lshl_b32 s60, s60, 3\ns_add_u32 s60, s60, s56")
        a("s_cmp_ge_u32 s60, 14\ns_cbranch_scc1 Lcsx")
        a("v_lshrrev_b32 v2, 4, v1\nv_and_b32 v3, 15, v1\nv_mul_u32_u24 v4, 3456, v2\nv_lshl_add_u32 v4, v3, 4, v4")
        a(f"s_mul_i32 s61, s22, {80*3456}\ns_lshl_b32 s3, s60, 8\ns_add_u32 s61, s61, s3")
        a("s_waitcnt vmcnt(0)")
        for n in range(20):
            a(f"buffer_load_dwordx4 v[{20+4*n}:{23+4*n}], v4, {srd(SW1)}, s61 offen\ns_add_u32 s61, s61, {4*3456}")
        for e in range(8): a(f"v_mov_b32 v{10+e}, 0")
        a("v_mov_b32 v8, 0x00003f80\nv_mov_b32 v9, 0x3f800000")
        for n in range(20):
            a(f"s_waitcnt vmcnt({19-n})")
            for d in range(4):
                a(f"v_dot2c_f32_bf16 v{10+2*d}, v{20+4*n+d}, v8\nv_dot2c_f32_bf16 v{11+2*d}, v{20+4*n+d}, v9")
        for e in range(4): a(f"v_permlane32_swap_b32 v{10+e}, v{14+e}")
        for e in range(4): a(f"v_add_f32 v{10+e}, v{10+e}, v{14+e}")
        for e in range(2): a(f"v_permlane16_swap_b32 v{10+e}, v{12+e}")
        for e in range(2): a(f"v_add_f32 v{10+e}, v{10+e}, v{12+e}")
        a("v_lshlrev_b32 v3, 5, v3\nv_lshl_add_u32 v3, v2, 3, v3\ns_lshl_b32 s3, s22, 9\nv_add_u32 v3, s3, v3")
        a("ds_write_b64 v3, v[10:11]\ns_waitcnt lgkmcnt(0)\ns_barrier")
        a("s_cmp_lg_u32 s22, 0\ns_cbranch_scc1 Lcsx")
        a("v_lshlrev_b32 v3, 3, v1")
        for w in range(8): a(f"ds_read_b64 v[{20+2*w}:{21+2*w}], v3 offset:{512*w}")
        a("s_waitcnt lgkmcnt(0)")
        for w in range(1, 8): a(f"v_pk_add_f32 v[20:21], v[20:21], v[{20+2*w}:{21+2*w}]")
        a(f"s_lshl_b32 s61, s60, 9\ns_add_u32 s61, s61, {CSUM}")
        a(f"buffer_store_dwordx2 v[20:21], v3, {srd(SWS)}, s61 offen sc1")
        a(f"s_mul_i32 s61, s60, {self.FS}\ns_add_u32 s61, s61, {FL_BASE + (256 + 240)*self.FS}\nv_mov_b32 v4, 1\nv_lshlrev_b32 v3, 2, v1")
        a("s_waitcnt vmcnt(0)")
        a(f"s_mov_b64 exec, 15\nbuffer_store_dword v4, v3, {srd(SWS)}, s61 offen sc1\ns_mov_b64 exec, -1")
        a("Lcsx:")
        self.tprev = 22
        self.fin()
    W1R = [152, 168, 184, 200, 216, 232, 20, 36, 52, 68]
    W2R = [84 + 8*i for i in range(8)] + [184, 192, 200, 208, 152, 160, 168, 176, 216, 224, 232, 240] + [20 + 8*i for i in range(7)]
    def bg_init(self):
        self.bg = [("w1", s, n) for s in range(10) for n in range(4)] + [("w2", u, k) for u in range(27) for k in range(2)]
        self.busy = set(range(20, 150))
    def bg_issue(self, cnt, must=False):
        a = self.a
        while cnt > 0 and self.bg:
            k, s, n = self.bg[0]
            r = (self.W1R[s] if k == "w1" else self.W2R[s]) + 4*n
            if self.busy & set(range(r, r+4)):
                assert not must, (k, s, n)
                return
            self.bg.pop(0); cnt -= 1
            self.busy |= set(range(r, r+4))
            if k == "w1":
                a(f"s_add_u32 s61, s76, {4*n*3456}")
                a(f"buffer_load_dwordx4 v[{r}:{r+3}], v150, {srd(SW1)}, s61 offen")
                if n == 3: self.adv(76, 64*3456, 10)
            else:
                a(f"s_add_u32 s61, s83, {32*n*1280}")
                a(f"buffer_load_dwordx4 v[{r}:{r+3}], v17, {srd(SW2)}, s61 offen")
                if n == 1: self.adv(83, 64*1280, 27)
            self.vissue((k, s))
    def w1_flush(self, s):
        assert ("w1", s, 3) not in self.bg
        self.vwait([("w1", s)])
        r = self.W1R[s]
        for n in range(4): self.a(f"ds_write_b128 v{14 + (self.p3w(s) >> 16)}, v[{r+4*n}:{r+4*n+3}] offset:{(self.p3w(s) & 0xffff) + n*1024}")
    def w1_free(self, s): self.busy -= set(range(self.W1R[s], self.W1R[s] + 16))
    def w2_flush(self, u):
        assert ("w2", u, 1) not in self.bg
        self.vwait([("w2", u)])
        r = self.W2R[u]
        for k in range(2):
            o = (u % 4)*8192 + k*4096
            if self.o["wsz"] == 4: self.a(f"ds_write_b128 v19, v[{r+4*k}:{r+4*k+3}] offset:{o}")
            elif self.o["wsz"] == 2:
                for d in range(2): self.a(f"ds_write_b64 v19, v[{r+4*k+2*d}:{r+4*k+2*d+1}] offset:{o+8*d}")
            else:
                for d in range(4): self.a(f"ds_write_b32 v19, v{r+4*k+d} offset:{o+4*d}")
    def p1l(self):
        a = self.a
        LA = self.o["la1"]
        self.vreset()
        a("s_lshl_b32 s60, s59, 6\ns_sub_u32 s60, s60, 16")
        a("s_mul_i32 s3, s23, 20\nv_lshrrev_b32 v14, 3, v1\nv_add_u32 v14, s3, v14\nv_and_b32 v13, 7, v1")
        for n in range(3):
            a(f"v_add_u32 v2, {8*n}, v14\nv_lshrrev_b32 v3, 1, v2\nv_and_b32 v3, 7, v3\nv_xor_b32 v3, v3, v13")
            a(f"v_add_u32 v2, s60, v2\nv_max_i32 v2, 0, v2\nv_mul_u32_u24 v2, 1280, v2\nv_lshl_add_u32 v{15+n}, v3, 4, v2")
        a("v_cmp_le_u32 vcc, 30, v1\nv_cndmask_b32 v2, 0, 1, vcc")
        a("v_mul_u32_u24 v3, 30, v2\nv_sub_u32 v3, v1, v3")
        a("v_mul_u32_u24 v4, 26, v3\nv_lshrrev_b32 v4, 8, v4")
        a("v_mul_u32_u24 v5, 10, v4\nv_sub_u32 v5, v3, v5")
        a("v_mul_u32_u24 v18, 3840, v2\nv_mul_u32_u24 v4, 1280, v4\nv_add_u32 v18, v18, v4\nv_lshl_add_u32 v18, v5, 4, v18")
        a("s_and_b32 s3, s23, 1\ns_lshl_b32 s3, s3, 4\ns_lshr_b32 s61, s23, 1\ns_lshl_b32 s61, s61, 2\ns_add_u32 s3, s3, s61")
        a("s_mul_i32 s3, s3, 3840\ns_mul_i32 s61, s58, 160\ns_add_u32 s3, s3, s61\nv_add_u32 v18, s3, v18")
        a(f"s_mul_i32 s64, s23, {4*960}\ns_mul_i32 s65, s23, 2560")
        a("s_cmp_eq_u32 s23, 0\ns_cselect_b32 s78, 0xffff0000, -1")
        if self.o["rot1"]:
            if self.o["map1"]: a("s_and_b32 s3, s57, 7\ns_lshr_b32 s61, s57, 3")
            else: a("s_lshr_b32 s3, s57, 2\ns_and_b32 s61, s57, 3")
            a("s_mul_i32 s3, s3, 5\ns_lshr_b32 s3, s3, 2")
            if self.o["rot1"] == 1:
                a("s_mul_i32 s61, s61, 5\ns_lshr_b32 s61, s61, 1\ns_add_u32 s3, s3, s61")
                a("s_sub_u32 s61, s3, 10\ns_cmp_ge_u32 s3, 10\ns_cselect_b32 s3, s61, s3")
            a(f"s_lshl_b32 s75, s3, 7\ns_mul_i32 s76, s3, {64*3840}")
        else:
            a("s_mov_b32 s75, 0\ns_mov_b32 s76, 0")
        self.srds([SX, SWQ])
        def xiss(s):
            for n in range(3):
                a(f"s_add_u32 m0, s65, {self.p1x(s) + n*1024}")
                if n == 0: a("s_mov_b32 exec_lo, s78")
                if n == 1: a("s_mov_b32 exec_lo, -1")
                if n == 2: a("s_mov_b32 exec_hi, 0")
                a(f"buffer_load_dwordx4 v{15+n}, {srd(SX)}, s75 offen lds")
                self.vissue(("x", s))
            a("s_mov_b32 exec_hi, -1")
            self.adv(75, 128, 10)
        def wiss(u):
            a("s_mov_b32 exec_hi, 0x0fffffff")
            for jj in range(4):
                a(f"s_add_u32 m0, s64, {self.p1w(u) + jj*960}")
                a(f"s_add_u32 s61, s76, {[0, 2, 8, 10][jj] * 3840}")
                a(f"buffer_load_dwordx4 v18, {srd(SWQ)}, s61 offen lds")
                self.vissue(("w", u))
            a("s_mov_b32 exec_hi, -1")
            self.adv(76, 32*3840, 20)
        def iss(u):
            if u % 2 == 0: xiss(u // 2)
            wiss(u)
        for u in range(LA + 1): iss(u)
        self.srds([SWS, SWO, SW1, SW2])
        for r in range(6): a(f"v_mov_b32 v{20+r}, 0")
        a("v_lshlrev_b32 v26, 4, v1\nv_add_u32 v26, s65, v26\nv_mov_b32 v12, 0x3f803f80")
        self.mk3(26)
        self.p24_ids()
        self.p2_wo_setup()
        self.vwait([("w", 0)])
        nwo = 0
        for u in range(20):
            self.bar()
            if u >= 1 and u + LA <= 19: iss(u + LA)
            if u >= self.o["wo0"]: self.p2_wo_issue(nwo); nwo += 1
            if u % 2 == 0:
                for n in range(3): a(f"ds_read_b128 v[{32+4*n}:{35+4*n}], {self.ad(26, self.p1x(u//2) + n*1024)}")
                a("s_waitcnt lgkmcnt(0)")
                for d in range(4):
                    for n in range(3):
                        a(f"v_dot2c_f32_bf16 v{20+2*n}, v{32+4*n+d}, v12\nv_dot2c_f32_bf16 v{21+2*n}, v{32+4*n+d}, v{32+4*n+d}")
            if u == 19:
                for m in ("quad_perm:[1,0,3,2]", "quad_perm:[2,3,0,1]", "row_half_mirror"):
                    for r in range(6): a(f"v_add_f32_dpp v{20+r}, v{20+r}, v{20+r} {m} row_mask:0xf bank_mask:0xf")
                for n in range(3):
                    m_, q_ = 33 + 2*n, 21 + 2*n
                    a(f"v_mul_f32 v{m_}, {1.0/640!r}, v{20+2*n}\nv_mul_f32 v{q_}, {1.0/640!r}, v{q_}")
                    a(f"v_fma_f32 v{q_}, -v{m_}, v{m_}, v{q_}\nv_max_f32 v{q_}, 0, v{q_}\nv_add_f32 v{q_}, 1e-5, v{q_}\nv_rsq_f32 v{m_-1}, v{q_}")
                a("v_lshlrev_b32 v2, 3, v14")
                a(f"ds_write_b64 v2, v[32:33] offset:{self.P1_ST}\nds_write_b64 v2, v[34:35] offset:{self.P1_ST+64}")
                a(f"s_mov_b32 exec_hi, 0\nds_write_b64 v2, v[36:37] offset:{self.P1_ST+128}\ns_mov_b32 exec_hi, -1")
                a("s_waitcnt lgkmcnt(0)")
            if u + 1 <= 19: self.vwait([("w", u + 1)])
        self.bar()
        for k in range(nwo, 5): self.p2_wo_issue(k)
        self.p3_w_setup()
        self.bg_init()
        self.bg_issue(self.o["nA"])
        def post():
            self.busy -= set(range(20, 150))
            self.p4_w_setup()
            self.bg_issue(self.o["nB"])
        self.p1tail(post)

    def attention(self):
        a = self.a
        QS = self.P1_QS
        a("s_lshr_b32 s3, s22, 2\ns_lshl_b32 s3, s3, 5")
        a("v_and_b32 v2, 31, v1\nv_add_u32 v2, s3, v2")
        a("v_lshrrev_b32 v3, 5, v1")
        a(f"v_mul_u32_u24 v4, {QS}, v2")
        a(f"s_mul_i32 s3, s23, 40\ns_add_u32 s3, s3, {self.P1_QKV + 16*QS}\nv_add_u32 v4, s3, v4")
        a(f"v_mul_u32_u24 v5, {8*QS}, v3\nv_sub_u32 v5, v4, v5\nv_subrev_u32 v5, {6*QS}, v5")
        Q = 20; Kr = 30; V = 70; P = 110; T = 120; AC = 130
        if self.o["map1"]: a("v_mov_b32 v11, 768\nds_read_b32 v11, v11")
        for c in range(5): a(f"ds_read_b64 v[{Q+2*c}:{Q+2*c+1}], v4 offset:{8*c}")
        for jj in range(4):
            for c in range(5): a(f"ds_read_b64 v[{Kr+10*jj+2*c}:{Kr+10*jj+2*c+1}], v5 offset:{(6-2*jj)*QS + 160 + 8*c}")
        a("s_lshl_b32 s3, s59, 6\nv_add_u32 v6, s3, v2")
        a("v_lshlrev_b32 v7, 3, v3\nv_sub_u32 v7, v6, v7")
        for jj in range(4): a(f"v_mov_b32 v{P+jj}, 0")
        a("s_waitcnt lgkmcnt(0)")
        for jj in range(4):
            for c in range(5): a(f"ds_read_b64 v[{V+10*jj+2*c}:{V+10*jj+2*c+1}], v5 offset:{(6-2*jj)*QS + 320 + 8*c}")
        for d in range(10):
            for jj in range(4): a(f"v_dot2c_f32_bf16 v{P+jj}, v{Q+d}, v{Kr+10*jj+d}")
        SCL = 20 ** -0.5 * 1.4426950408889634
        a("v_mov_b32 v8, 0xceac0000")
        for jj in range(4):
            a(f"v_mul_f32 v{P+jj}, {SCL!r}, v{P+jj}")
            a(f"v_cmp_le_i32 vcc, {2*jj}, v7")
            a(f"v_cndmask_b32 v{P+jj}, v8, v{P+jj}, vcc")
        a(f"v_max3_f32 v9, v{P}, v{P+1}, v{P+2}\nv_max_f32 v9, v9, v{P+3}\nv_mov_b32 v10, v9")
        a("v_permlane32_swap_b32 v9, v10\nv_max_f32 v9, v9, v10")
        for jj in range(4): a(f"v_sub_f32 v{P+jj}, v{P+jj}, v9")
        for jj in range(4): a(f"v_exp_f32 v{P+jj}, v{P+jj}")
        a(f"v_add_f32 v9, v{P}, v{P+1}\nv_add_f32 v10, v{P+2}, v{P+3}\nv_add_f32 v9, v9, v10\nv_mov_b32 v10, v9")
        a("v_permlane32_swap_b32 v9, v10\nv_add_f32 v9, v9, v10\nv_rcp_f32 v9, v9")
        for jj in range(4): a(f"v_mul_f32 v{P+jj}, v{P+jj}, v9")
        a(f"v_cvt_pk_bf16_f32 v{P}, v{P}, v{P+1}\nv_cvt_pk_bf16_f32 v{P+1}, v{P+2}, v{P+3}")
        a("s_mov_b32 s60, 0x05040100\ns_mov_b32 s61, 0x07060302")
        a("s_waitcnt lgkmcnt(0)")
        for d in range(10):
            t = T + 4 * (d % 2)
            a(f"v_perm_b32 v{t}, v{V+10+d}, v{V+d}, s60\nv_perm_b32 v{t+1}, v{V+10+d}, v{V+d}, s61")
            a(f"v_perm_b32 v{t+2}, v{V+30+d}, v{V+20+d}, s60\nv_perm_b32 v{t+3}, v{V+30+d}, v{V+20+d}, s61")
            a(f"v_dot2_f32_bf16 v{AC+2*d}, v{t}, v{P}, 0\nv_dot2_f32_bf16 v{AC+2*d+1}, v{t+1}, v{P}, 0")
            a(f"v_dot2_f32_bf16 v{AC+2*d}, v{t+2}, v{P+1}, v{AC+2*d}\nv_dot2_f32_bf16 v{AC+2*d+1}, v{t+3}, v{P+1}, v{AC+2*d+1}")
        pairs = [(d, d + 8) for d in range(8)] + [(16, 18), (17, 19)]
        for x, y in pairs: a(f"v_permlane32_swap_b32 v{AC+x}, v{AC+y}")
        for x, y in pairs: a(f"v_add_f32 v{AC+x}, v{AC+x}, v{AC+y}")
        for d in range(4): a(f"v_cvt_pk_bf16_f32 v{T+d}, v{AC+2*d}, v{AC+2*d+1}")
        a(f"v_cvt_pk_bf16_f32 v{T+4}, v{AC+16}, v{AC+17}")
        a("v_lshlrev_b32 v6, 4, v6")
        a(f"v_mul_u32_u24 v7, {CS}, v3\nv_add_u32 v7, v7, v6")
        a("v_lshl_add_u32 v8, v3, 2, v6")
        a(f"s_mul_i32 s60, s58, 10\ns_lshl_b32 s3, s23, 1\ns_add_u32 s61, s60, s3\ns_mul_i32 s61, s61, {CS}")
        if self.o["map1"]: a("v_readfirstlane_b32 s86, v11\ns_mov_b32 s87, s86\ns_mov_b64 vcc, s[86:87]")
        self.hst(f"buffer_store_dwordx4 v[{T}:{T+3}], v7, {srd(SWS)}, s61 offen", self.o["map1"])
        a(f"s_lshr_b32 s3, s23, 1\ns_add_u32 s60, s60, s3\ns_add_u32 s60, s60, 8\ns_mul_i32 s60, s60, {CS}")
        a(f"s_and_b32 s3, s23, 1\ns_lshl_b32 s3, s3, 3\ns_add_u32 s60, s60, s3")
        self.hst(f"buffer_store_dword v{T+4}, v8, {srd(SWS)}, s60 offen", self.o["map1"])

    def p24_ids(self):
        a = self.a
        a("s_mul_i32 s66, s57, 26\ns_lshr_b32 s66, s66, 8\ns_mul_i32 s3, s66, 10\ns_sub_u32 s67, s57, s3")
        a("s_lshl_b32 s68, s56, 8\ns_mul_i32 s3, s66, 88\ns_add_u32 s68, s68, s3")
        a("s_cmp_eq_u32 s66, 2\ns_cselect_b32 s69, 0, 8\ns_add_u32 s69, s69, 80")
    def w64_addr(self, dst, Drows):
        a = self.a
        a("v_lshrrev_b32 v2, 3, v1\nv_and_b32 v3, 3, v2\nv_lshrrev_b32 v4, 2, v2")
        a(f"v_mul_u32_u24 v4, {Drows}, v4\nv_add_u32 v3, v3, v4\nv_mul_u32_u24 v{dst}, 1280, v3")
        a("v_lshrrev_b32 v2, 4, v1\nv_lshlrev_b32 v2, 1, v2\nv_and_b32 v3, 7, v1\nv_xor_b32 v3, v3, v2")
        a(f"v_lshl_add_u32 v{dst}, v3, 4, v{dst}")
        a(f"s_lshl_b32 s3, s67, 7\nv_add_u32 v{dst}, s3, v{dst}")
    def panel96_addr(self, dst):
        a = self.a
        for n in range(3):
            a(f"v_add_u32 v2, {64*n}, v1\nv_cmp_le_u32 vcc, 96, v2\nv_cndmask_b32 v3, 0, 1, vcc")
            a("v_mul_u32_u24 v4, 96, v3\nv_sub_u32 v2, v2, v4")
            a("s_lshl_b32 s3, s23, 1\nv_add_u32 v3, s3, v3")
            a(f"v_mul_u32_u24 v3, {CS}, v3\nv_add_u32 v4, s68, v2\nv_lshl_add_u32 v3, v4, 4, v3")
            a(f"v_cmp_gt_u32 vcc, s69, v2\nv_mov_b32 v4, {OOB}\nv_cndmask_b32 v{dst+n}, v4, v3, vcc")
    def panel96_issue(self, areg, gbase, nst, ldsbase, tag):
        a = self.a
        a(f"s_add_u32 s61, s75, {gbase}")
        for n in range(3):
            a(f"s_add_u32 m0, s65, {ldsbase + n*1024}")
            a(f"buffer_load_dwordx4 v{areg+n}, {srd(SWS)}, s61 offen {'sc1' if self.o['ldsc'] else ''} lds")
            self.vissue(tag)
        self.adv(75, 8*CS, nst)
    def c24_addr(self):
        a = self.a
        a("s_lshr_b32 s70, s23, 1\ns_and_b32 s71, s23, 1")
        a("v_lshrrev_b32 v11, 3, v1\nv_and_b32 v11, 3, v11\ns_lshl_b32 s3, s71, 1\nv_xor_b32 v11, s3, v11")
        a("v_lshrrev_b32 v2, 2, v1\nv_lshlrev_b32 v2, 7, v2\nv_and_b32 v3, 3, v1\nv_lshl_add_u32 v2, v3, 3, v2")
        a("v_xor_b32 v3, 1, v11\nv_lshl_add_u32 v5, v3, 5, v2\nv_lshl_add_u32 v2, v11, 5, v2")
        self.mk3(2); self.mk3(5)
        a("v_lshrrev_b32 v8, 4, v1\nv_mul_u32_u24 v8, 1536, v8\nv_and_b32 v11, 15, v1\nv_lshl_add_u32 v8, v11, 4, v8")
        a("s_mul_i32 s3, s70, 768\nv_add_u32 v8, s3, v8")
        self.mk3(8)
    def c24_loop(self, nst, aoff, boff, ACC, tsb):
        a = self.a
        def reads(u):
            s, ks = divmod(u, 2); f = 20 + 20*(u % 4); r = []
            for j in range(2):
                for rd in range(2):
                    r.append(f"ds_read_b64_tr_b16 v[{f+4*j+2*rd}:{f+4*j+2*rd+1}], {self.ad(2+3*j, aoff(s) + ks*4096 + rd*2048)}")
            for t in range(3):
                r.append(f"ds_read_b128 v[{f+8+4*t}:{f+11+4*t}], {self.ad(8, boff(s) + ks*4*1536 + t*256)}")
            return [r[0], r[4], r[1], r[5], r[2], r[3], r[6]]
        def mfmas(u):
            f = 20 + 20*(u % 4); r = []
            for j in range(2):
                for t in range(3):
                    c = ACC + (t*2+j)*4
                    cs = "0" if u == 0 else f"v[{c}:{c+3}]"
                    r.append(f"v_mfma_f32_16x16x32_bf16 v[{c}:{c+3}], v[{f+4*j}:{f+4*j+3}], v[{f+8+4*t}:{f+11+4*t}], {cs}")
            return r
        n = 2*nst
        self.bar()
        self.ts(tsb)
        for x in reads(0) + reads(1): a(x)
        for u in range(n):
            nu = u + 2
            if nu < n and nu % 2 == 0: self.bar()
            if u == nst: self.ts(tsb+1)
            a(f"s_waitcnt lgkmcnt({7 if u + 1 < n else 0})")
            if u == n - 1:
                self.bar(); self.ts(tsb+2)
            rd = reads(nu) if nu < n else []
            mf = mfmas(u)
            for i, m in enumerate(mf):
                a(m)
                if i < len(rd): a(rd[i])
            for x in rd[len(mf):]: a(x)
    def c24_rowaddr(self):
        a = self.a
        a("v_and_b32 v12, 15, v1\ns_mul_i32 s3, s70, 48\nv_add_u32 v12, s3, v12")
        a("v_lshrrev_b32 v13, 4, v1\nv_and_b32 v14, 1, v13\nv_lshlrev_b32 v14, 1, v14\nv_lshrrev_b32 v11, 1, v13\nv_add_u32 v14, v14, v11")
        a("s_lshl_b32 s3, s71, 2\nv_add_u32 v14, s3, v14")
    def c24_addr_rm(self, dst):
        a = self.a
        for t in range(3):
            a(f"v_add_u32 v11, {16*t}, v12\nv_cmp_gt_u32 vcc, s69, v11\nv_add_u32 v11, s68, v11\nv_mul_u32_u24 v11, 1280, v11")
            a(f"v_lshl_add_u32 v11, v14, 4, v11\ns_lshl_b32 s3, s67, 7\nv_add_u32 v11, s3, v11")
            a(f"v_mov_b32 v{dst+t}, {OOB}\nv_cndmask_b32 v{dst+t}, v{dst+t}, v11, vcc")
    def c24_addr_panel(self, dst):
        a = self.a
        for t in range(3):
            a(f"s_lshl_b32 s3, s67, 3\nv_add_u32 v{dst+t}, s3, v14\nv_mul_u32_u24 v{dst+t}, {CS}, v{dst+t}")
            a(f"v_add_u32 v11, {16*t}, v12\nv_cmp_gt_u32 vcc, s69, v11\nv_add_u32 v11, s68, v11")
            a(f"v_lshl_add_u32 v11, v11, 4, v{dst+t}")
            a(f"v_mov_b32 v{dst+t}, {OOB}\nv_cndmask_b32 v{dst+t}, v{dst+t}, v11, vcc")
    def c24_sum(self, ACC, RES, OUT, T, store):
        a = self.a
        for t in range(3):
            A = ACC + t*8; B = A + 4
            for d in range(4):
                a(f"v_lshlrev_b32 v{T+2*d}, 16, v{RES+4*t+d}\nv_and_b32 v{T+2*d+1}, 0xffff0000, v{RES+4*t+d}")
            for r in range(4): a(f"v_permlane16_swap_b32 v{A+r}, v{B+r}")
            for d in range(4):
                a(f"v_pk_add_f32 v[{T+2*d}:{T+2*d+1}], v[{T+2*d}:{T+2*d+1}], v[{A+2*d}:{A+2*d+1}]")
            for d in range(4):
                a(f"v_cvt_pk_bf16_f32 v{OUT+4*t+d}, v{T+2*d}, v{T+2*d+1}")
            store(t)

    P2_WO = 81920; P2_RING = 0; P2_NS = 6
    HREG = 240
    def p2_wo_setup(self):
        a = self.a
        self.w64_addr(44, 8); self.w64_addr(45, 40)
        a(f"s_cmp_ge_u32 s57, 30\ns_cselect_b32 s3, {OOB}, 0\nv_or_b32 v44, s3, v44\nv_or_b32 v45, s3, v45")
        a(f"s_mul_i32 s77, s23, {160*1280}\ns_mul_i32 s79, s23, 5")
        if self.o["rot2"]:
            a("s_lshl_b32 s3, s67, 1\ns_add_u32 s79, s79, 20\ns_sub_u32 s79, s79, s3\ns_sub_u32 s3, s79, 20\ns_cmp_ge_u32 s79, 20\ns_cselect_b32 s79, s3, s79")
        a("s_lshl_b32 s79, s79, 12")
    def p2_wo_issue(self, kk):
        a = self.a
        for io in range(4):
            q = 4*kk + 2*(io % 2); rd = io // 2; hg = q // 10; c = q % 10
            if c < 8: row = 80*hg + 20*(c//2) + 4*rd; reg = 44
            else: row = 80*hg + 20*rd + 16; reg = 45
            a(f"s_add_u32 m0, s79, {self.P2_WO + io*1024}")
            a(f"s_add_u32 s61, s77, {row*1280}")
            a(f"buffer_load_dwordx4 v{reg}, {srd(SWO)}, s61 offen lds")
            self.vissue("wo")
        self.adv(79, 4096, 20)
    def p2c(self):
        a = self.a
        self.p24_ids(); self.c24_addr(); self.c24_rowaddr()
        XR = 220
        self.c24_addr_rm(16)
        for t in range(3):
            a(f"buffer_load_dwordx4 v[{XR+4*t}:{XR+4*t+3}], v{16+t}, {srd(SX)}, 0 offen")
        self.c24_addr_panel(16)
        a("v_and_b32 v232, 1, v13\nv_lshl_add_u32 v232, v232, 4, v12\nv_add_u32 v233, 32, v12\nv_lshrrev_b32 v11, 1, v13\nv_lshlrev_b32 v11, 2, v11")
        a(f"v_mov_b32 v15, {OOB}")
        for r in (232, 233):
            a(f"v_cmp_gt_u32 vcc, s69, v{r}\nv_add_u32 v{r}, s68, v{r}\nv_lshl_add_u32 v{r}, v{r}, 3, v11\nv_cndmask_b32 v{r}, v15, v{r}, vcc")
        a(f"s_lshl_b32 s60, s67, 1\ns_add_u32 s60, s60, s71\ns_lshl_b32 s60, s60, 14\ns_add_u32 s60, s60, {ST_BASE}")
        a("s_mul_i32 s74, s56, 30\ns_add_u32 s74, s74, s57")
        ACC = 100
        self.c24_loop(10, lambda s: self.P2_WO + s*8192, lambda s: self.P2_RING + (s % self.P2_NS)*12288, ACC, 7)
        a("s_waitcnt vmcnt(0)")
        H = self.HREG
        a(f"s_mov_b32 s61, {H_BASE}")
        a("v_mov_b32 v30, 0x3f803f80")
        for t in range(6): a(f"v_mov_b32 v{20+t}, 0")
        a("s_mov_b64 vcc, s[86:87]")
        self.c24_sum(ACC, XR, H, 32, lambda t: self.hst(f"buffer_store_dwordx4 v[{H+4*t}:{H+4*t+3}], v{16+t}, {srd(SWS)}, s61 offen"))
        for d in range(4):
            for t in range(3):
                a(f"v_dot2c_f32_bf16 v{20+2*t}, v{H+4*t+d}, v30\nv_dot2c_f32_bf16 v{21+2*t}, v{H+4*t+d}, v{H+4*t+d}")
        for t in range(3): a(f"v_permlane32_swap_b32 v{20+2*t}, v{21+2*t}")
        for t in range(3): a(f"v_add_f32 v{20+2*t}, v{20+2*t}, v{21+2*t}")
        a("v_mov_b32 v25, v24")
        a("v_permlane16_swap_b32 v20, v22\nv_permlane16_swap_b32 v24, v25")
        a("v_add_f32 v20, v20, v22\nv_add_f32 v24, v24, v25")
        self.hst(f"buffer_store_dword v20, v232, {srd(SWS)}, s60 offen")
        self.hst(f"buffer_store_dword v24, v233, {srd(SWS)}, s60 offen")
        self.ts(19)
        self.signal(1, "s23")
        self.ts(20)
    def p2l(self):
        a = self.a
        self.panel96_addr(11)
        a("s_mul_i32 s65, s23, 3072")
        a(f"s_mul_i32 s75, s67, {8*CS}" if self.o["rot2"] else "s_mov_b32 s75, 0")
        a("v_lshlrev_b32 v14, 4, v1\ns_lshl_b32 s3, s23, 10\nv_add_u32 v19, s3, v14\nv_add_u32 v14, s64, v14")
        a("s_lshl_b32 s61, s56, 2\ns_add_u32 s61, s61, s66\ns_lshl_b32 s61, s61, 3\ns_mov_b32 s60, 32")
        self.wait_flags(0, True)
        self.ts(7)
        NS = self.P2_NS
        iss = lambda s: self.panel96_issue(11, O_BASE, 10, self.P2_RING + (s % NS)*12288, ("o", s))
        for s in range(NS): iss(s)
        self.vwait([("o", 0)])
        for s in range(10):
            self.bar()
            if s >= 2 and s + NS - 2 <= 9: iss(s + NS - 2)
            if s >= self.o["c0"]: self.bg_issue(self.o["nC"])
            if s + 1 <= 9: self.vwait([("o", s + 1)])
        self.bar()
        a("s_cmp_ge_u32 s57, 28\ns_cbranch_scc1 Lskip3l")
        self.bg_skip = [x for x in self.bg if x[0] == "w2"]

    def p3w(self, s): return A16(s % 3)
    def p3h(self, s): return A16([3, 4, 5, 9, 6, 7, 8][s % 7])
    P3_ST = 159744
    def p3_ids(self):
        a = self.a
        a("s_cmp_ge_u32 s57, 14\ns_cselect_b32 s3, 1, 0\ns_cselect_b32 s73, 14, 0\ns_sub_u32 s73, s57, s73")
        a("s_lshl_b32 s72, s56, 1\ns_add_u32 s72, s72, s3\ns_lshl_b32 s72, s72, 7")
    def p3_w_setup(self):
        a = self.a
        self.p3_ids()
        a("v_lshrrev_b32 v2, 4, v1\nv_lshlrev_b32 v3, 2, v2\nv_and_b32 v4, 15, v1\nv_xor_b32 v4, v4, v3")
        a("v_mul_u32_u24 v150, 3456, v2\nv_lshl_add_u32 v150, v4, 4, v150")
        a(f"s_lshl_b32 s3, s73, 8\ns_mul_i32 s61, s23, {16*3456}\ns_add_u32 s3, s3, s61")
        a(f"s_cmp_ge_u32 s57, 28\ns_cselect_b32 s3, {OOB}, s3\nv_add_u32 v150, s3, v150")
        a("s_lshl_b32 s64, s23, 12")
        if self.o["rot3"]:
            a("s_mul_i32 s77, s73, 183\ns_lshr_b32 s77, s77, 8\ns_cmp_ge_u32 s57, 14\ns_cselect_b32 s3, 5, 0\ns_add_u32 s77, s77, s3")
            a("s_sub_u32 s3, s77, 10\ns_cmp_ge_u32 s77, 10\ns_cselect_b32 s77, s3, s77")
        else: a("s_mov_b32 s77, 0")
        a(f"s_mul_i32 s76, s77, {64*3456}")
    def p3c(self):
        a = self.a
        Lsig = self.lab("P3sig")
        a("s_cmp_ge_u32 s57, 28\ns_cbranch_scc1 Lskip3c")
        self.p3_ids()
        a("v_lshrrev_b32 v11, 2, v1\nv_and_b32 v11, 3, v11")
        a("v_lshrrev_b32 v2, 5, v1\nv_lshl_add_u32 v2, v2, 3, v11\nv_lshlrev_b32 v2, 8, v2")
        a("v_lshrrev_b32 v3, 4, v1\nv_and_b32 v3, 1, v3\nv_lshl_add_u32 v2, v3, 5, v2\nv_and_b32 v3, 3, v1\nv_lshl_add_u32 v2, v3, 3, v2")
        a("s_lshl_b32 s3, s71, 1\nv_xor_b32 v11, s3, v11")
        a("v_xor_b32 v3, 1, v11\nv_lshl_add_u32 v5, v3, 6, v2\nv_lshl_add_u32 v2, v11, 6, v2")
        self.mk3(2); self.mk3(5)
        a("v_lshrrev_b32 v8, 5, v1\nv_lshlrev_b32 v8, 11, v8\nv_and_b32 v11, 31, v1\nv_lshl_add_u32 v8, v11, 4, v8")
        a("s_lshl_b32 s3, s70, 10\nv_add_u32 v8, s3, v8")
        self.mk3(8)
        a("v_lshrrev_b32 v15, 5, v1\nv_lshlrev_b32 v12, 4, v15")
        a(f"s_lshl_b32 s62, s71, 8\ns_lshl_b32 s3, s73, 9\ns_add_u32 s62, s62, s3\ns_add_u32 s62, s62, {CSUM}")
        a("v_lshlrev_b32 v13, 3, v11")
        a(f"s_lshl_b32 s3, s70, 9\ns_add_u32 s3, s3, {self.P3_ST}\nv_add_u32 v13, s3, v13")
        a(f"v_mul_u32_u24 v14, {CS}, v15\nv_lshl_add_u32 v14, v11, 4, v14")
        a("s_lshl_b32 s77, s73, 1\ns_add_u32 s77, s77, s71")
        a(f"s_mul_i32 s60, s77, {8*CS}\ns_lshl_b32 s3, s70, 6\ns_add_u32 s3, s3, s72\ns_lshl_b32 s3, s3, 4\ns_add_u32 s60, s60, s3\ns_add_u32 s60, s60, {G_BASE}")
        a("s_mul_i32 s74, s56, 28\ns_add_u32 s74, s74, s57")
        a("v_mov_b32 v16, 1.0")
        ACC = 100; FB = [20, 36]; CSR = 52; STR = 84
        def reads(u):
            s, ks = divmod(u, 4); f = FB[u % 2]; r = []
            for t in range(2):
                r.append(f"ds_read_b128 v[{f+8+4*t}:{f+11+4*t}], {self.ad(8, self.p3h(s) + ks*4096 + t*512)}")
            for j in range(2):
                for rd in range(2):
                    r.append(f"ds_read_b64_tr_b16 v[{f+4*j+2*rd}:{f+4*j+2*rd+1}], {self.ad(2+3*j, self.p3w(s) + ks*4096 + rd*1024)}")
            return [r[0], r[2], r[3], r[1], r[4], r[5]]
        def mfmas(u):
            f = FB[u % 2]; r = []
            for j in range(2):
                for t in range(2):
                    c = ACC + (j*2+t)*16
                    cs = "0" if u == 0 else f"v[{c}:{c+15}]"
                    r.append(f"v_mfma_f32_32x32x16_bf16 v[{c}:{c+15}], v[{f+4*j}:{f+4*j+3}], v[{f+8+4*t}:{f+11+4*t}], {cs}")
            return r
        for u in range(40):
            rd = reads(u); mf = mfmas(u-1) if u else []
            if u % 4 == 0:
                if mf: a(mf.pop(0))
                self.bar()
            if u == 0: self.ts(10)
            if u == 20: self.ts(23)
            if u == 17:
                for j in range(2):
                    for q in range(4): a(f"buffer_load_dwordx4 v[{CSR+16*j+4*q}:{CSR+16*j+4*q+3}], v12, {srd(SWS)}, s62 offen offset:{128*j + 32*q} sc1")
            i = 0
            for m in mf:
                if u % 4 == 0:
                    for x in rd[i:i+3]: a(x)
                    i += 3
                    a(m)
                else:
                    a(m)
                    for x in rd[i:i+3]: a(x)
                    i += 3
            for x in rd[i:]: a(x)
            a("s_waitcnt lgkmcnt(0)")
        mf = mfmas(39)
        a(mf.pop(0))
        self.bar()
        self.ts(11)
        for t in range(2): a(f"ds_read_b64 v[{STR+4*t}:{STR+4*t+1}], v13 offset:{256*t}")
        for m in mf: a(m)
        a("s_waitcnt vmcnt(0) lgkmcnt(0)\ns_mov_b64 vcc, s[86:87]")
        a(f"s_cmp_ge_u32 s77, 27\ns_cbranch_scc1 {Lsig}")
        for t in range(2):
            a(f"v_mul_f32 v{STR+4*t+2}, -1.4426950408889634, v{STR+4*t}")
        T = 20
        for j in range(2):
            for t in range(2):
                c = ACC + (j*2+t)*16
                A_ = STR + 4*t
                for qq in range(0, 4, 2):
                    o = T + 16 + 4*((qq//2) % 2)
                    for p in range(4):
                        x = c + 4*qq + 2*p; k = CSR + 16*j + 4*qq + 2*p
                        a(f"v_pk_fma_f32 v[{x}:{x+1}], v[{k}:{k+1}], v[{A_}:{A_+1}], v[{x}:{x+1}] op_sel:[0,1,0] op_sel_hi:[1,1,1] neg_lo:[0,1,0] neg_hi:[0,1,0]")
                    for p in range(4):
                        x = c + 4*qq + 2*p
                        a(f"v_pk_mul_f32 v[{T+2*p}:{T+2*p+1}], v[{x}:{x+1}], v[{A_+2}:{A_+3}] op_sel_hi:[1,0]")
                    for p in range(8): a(f"v_exp_f32 v{T+p}, v{T+p}")
                    for p in range(4):
                        x = c + 4*qq + 2*p
                        a(f"v_pk_mul_f32 v[{x}:{x+1}], v[{x}:{x+1}], v[{A_}:{A_+1}] op_sel_hi:[1,0]")
                    for p in range(4):
                        a(f"v_pk_add_f32 v[{T+2*p}:{T+2*p+1}], v[{T+2*p}:{T+2*p+1}], v[16:17] op_sel_hi:[1,0]")
                    for p in range(8): a(f"v_rcp_f32 v{T+p}, v{T+p}")
                    for p in range(4):
                        x = c + 4*qq + 2*p
                        a(f"v_pk_mul_f32 v[{x}:{x+1}], v[{x}:{x+1}], v[{T+2*p}:{T+2*p+1}]")
                    for p in range(4):
                        x = c + 4*qq + 2*p
                        a(f"v_cvt_pk_bf16_f32 v{o+p}, v{x}, v{x+1}")
                    a(f"v_permlane32_swap_b32 v{o}, v{o+2}\nv_permlane32_swap_b32 v{o+1}, v{o+3}")
                    a(f"s_add_u32 s61, s60, {(4*j + qq)*CS + 512*t}")
                    self.hst(f"buffer_store_dwordx4 v[{o}:{o+3}], v14, {srd(SWS)}, s61 offen")
        a(f"{Lsig}:")
        self.ts(21)
        self.signal(2, "s23")
        self.ts(22)
        a("Lskip3c:")
    def p3l(self):
        a = self.a
        self.bg_issue(sum(1 for x in self.bg if x[0] == "w1" and x[1] < 3), True)
        for s in range(3): self.w1_flush(s)
        a(f"s_mul_i32 s3, s23, {2*CS}\ns_lshl_b32 s61, s72, 4\ns_add_u32 s3, s3, s61\nv_lshl_add_u32 v18, v1, 4, s3")
        a(f"s_mul_i32 s75, s77, {8*CS}")
        a("v_and_b32 v2, 31, v1\nv_lshrrev_b32 v3, 5, v1\nv_lshlrev_b32 v3, 14, v3\nv_lshl_add_u32 v10, v2, 3, v3")
        a("s_lshl_b32 s3, s23, 5\ns_add_u32 s3, s3, s72\ns_lshl_b32 s3, s3, 3\nv_add_u32 v10, s3, v10")
        a("s_waitcnt lgkmcnt(0)")
        self.w1_free(2)
        self.bg_issue(self.o["nD"])
        def hiss(s):
            for n in range(4):
                a(f"s_add_u32 m0, s64, {self.p3h(s) + n*1024}")
                a(f"s_add_u32 s61, s75, {H_BASE + (n//2)*CS + (n % 2)*1024}")
                a(f"buffer_load_dwordx4 v18, {srd(SWS)}, s61 offen {'sc1' if self.o['ldsc'] else ''} lds")
                self.vissue(("h", s))
            self.adv(75, 8*CS, 10)
        a("s_cmp_ge_u32 s57, 14\ns_cselect_b32 s3, 10, 0\ns_mul_i32 s61, s56, 30\ns_add_u32 s61, s61, s3\ns_mov_b32 s60, 21")
        a(f"s_add_u32 s62, s73, 240\ns_sub_u32 s62, s62, s61\ns_mul_i32 s62, s62, {self.FS}")
        self.wait_flags(1, False, "v_writelane_b32 v2, s62, 20")
        self.ts(10)
        HL = self.o["hla"]; SR = 152
        hiss(0); hiss(1)
        self.vwait([("h", 0)])
        nh = 2
        for s in range(10):
            self.bar()
            if s == 0:
                for n in range(10):
                    a(f"s_mov_b32 s61, {ST_BASE + n*32768}")
                    a(f"buffer_load_dwordx2 v[{SR+2*n}:{SR+1+2*n}], v10, {srd(SWS)}, s61 offen sc1")
                    self.vissue("st")
            if s >= 1 and s + 2 <= 9:
                self.bg_issue(sum(1 for x in self.bg if x[0] == "w1" and x[1] <= s + 2), True)
                self.w1_flush(s + 2)
            if s >= 2 and s + 1 <= 9: self.w1_free(s + 1)
            for _ in range(self.o["hper"]):
                if nh <= 9 and nh <= s + HL - 1 and nh <= max(s, 1) + 5 + (1 if s >= 1 else 0) and (nh < 7 or nh - 7 < s):
                    hiss(nh); nh += 1
            if s >= self.o["e0"]: self.bg_issue(self.o["nE"])
            if s == 2:
                self.vwait("st")
                for n in range(1, 10): a(f"v_pk_add_f32 v[{SR}:{SR+1}], v[{SR}:{SR+1}], v[{SR+2*n}:{SR+1+2*n}]")
                a(f"v_mov_b32 v248, v{SR}\nv_mov_b32 v249, v{SR+1}")
                a(f"v_permlane32_swap_b32 v{SR}, v248\nv_permlane32_swap_b32 v{SR+1}, v249")
                a(f"v_add_f32 v{SR}, v{SR}, v248\nv_add_f32 v{SR+1}, v{SR+1}, v249")
                a(f"v_mul_f32 v249, {1.0/640!r}, v{SR}\nv_mul_f32 v{SR+1}, {1.0/640!r}, v{SR+1}")
                a(f"v_fma_f32 v{SR+1}, -v249, v249, v{SR+1}\nv_max_f32 v{SR+1}, 0, v{SR+1}\nv_add_f32 v{SR+1}, 1e-5, v{SR+1}\nv_rsq_f32 v248, v{SR+1}")
                self.w1_free(0); self.w1_free(1)
            if s == 4:
                a(f"v_and_b32 v2, 31, v1\nv_lshlrev_b32 v2, 3, v2\ns_lshl_b32 s3, s23, 8\ns_add_u32 s3, s3, {self.P3_ST}\nv_add_u32 v2, s3, v2")
                a("ds_write_b64 v2, v[248:249]")
            a("s_waitcnt lgkmcnt(0)")
            if s + 1 <= 9:
                assert nh > s + 1
                self.vwait([("h", s + 1)])
        self.bar()
        self.bg_issue(999, True)
        a("s_branch Lp4l")
        a("Lskip3l:")
        self.bg = self.bg_skip; self.busy = set()
        self.bg_issue(999, True)
        a("Lp4l:")
        a("s_waitcnt vmcnt(0)")
        self.vreset()

    P4_G = 32768
    def p4_w_setup(self):
        a = self.a
        self.w64_addr(17, 8)
        a("s_and_b32 s3, s23, 1\ns_lshl_b32 s3, s3, 4\ns_lshr_b32 s61, s23, 1\ns_lshl_b32 s61, s61, 2\ns_add_u32 s3, s3, s61\ns_mul_i32 s3, s3, 1280")
        a(f"s_cmp_ge_u32 s57, 30\ns_cselect_b32 s3, {OOB}, s3\nv_add_u32 v17, s3, v17")
        if self.o["rot4"]:
            a("s_mul_i32 s82, s67, 27*205\ns_lshr_b32 s82, s82, 11\ns_mul_i32 s3, s66, 9\ns_add_u32 s82, s82, s3")
            a("s_sub_u32 s3, s82, 27\ns_cmp_ge_u32 s82, 27\ns_cselect_b32 s82, s3, s82")
        else: a("s_mov_b32 s82, 0")
        a(f"s_mul_i32 s83, s82, {64*1280}")
    def p4c(self):
        a = self.a
        self.c24_addr(); self.c24_rowaddr()
        H = self.HREG
        self.c24_addr_rm(16)
        ACC = 100
        self.c24_loop(27, lambda s: (s % 4)*8192, lambda s: self.P4_G + (s % 10)*12288, ACC, 12)
        self.c24_sum(ACC, H, 40, 20, lambda t: a(f"buffer_store_dwordx4 v[{40+4*t}:{43+4*t}], v{16+t}, {srd(SOUT)}, 0 offen" + ["", " sc1", " nt", " sc0 sc1"][self.o["osc"]]))
        self.fin()
    def p4l(self):
        a = self.a
        for u in range(4): self.w2_flush(u)
        a(f"s_mul_i32 s75, s82, {8*CS}")
        a("s_cmp_eq_u32 s66, 2\ns_cselect_b32 s3, 14, 0\ns_mul_i32 s61, s56, 28\ns_add_u32 s61, s61, s3")
        a("s_cmp_eq_u32 s66, 1\ns_cselect_b32 s60, 28, 14")
        self.wait_flags(2, False)
        self.ts(12)
        GN = self.o["gn"]
        gis = lambda s: self.panel96_issue(11, G_BASE, 27, self.P4_G + (s % 10)*12288, ("g", s))
        for s in range(3): gis(s)
        ng = 3
        self.vwait([("g", 0)])
        a("s_waitcnt lgkmcnt(0)")
        for s in range(27):
            self.bar()
            fl = s >= 2 and s + 2 <= 26
            if fl and not self.o["ord4"]: self.w2_flush(s + 2)
            for _ in range(self.o["gper"]):
                if ng <= 26 and ng <= s + GN - 2 + (2 if s < 2 else 0) and (ng < 10 or ng - 10 <= s - 2):
                    gis(ng); ng += 1
            if fl and self.o["ord4"]: self.w2_flush(s + 2)
            if s + 1 <= 26: self.vwait([("g", s + 1)])
            a(f"s_waitcnt lgkmcnt({8 // self.o['wsz'] if fl and self.o['lazy'] else 0})")
        self.bar()
        self.fin()

    def build(self):
        a = self.a
        self.prologue()
        a("s_cmp_ge_u32 s22, 4\ns_cbranch_scc0 Lcomp")
        if self.o["lprio"]: a(f"s_setprio {self.o['lprio']}")
        self.p1l(); self.p2l(); self.p3l(); self.p4l()
        a("Lcomp:")
        if self.o["prio"]: a(f"s_setprio {self.o['prio']}")
        self.tprev = None; self.tn = 0
        self.p1c(); self.p2c(); self.p3c(); self.p4c()
        self.csum()
        for x in self.ool: a(x)
        a("Lend:\ns_endpgm")
    def text(self):
        L, n = hazard.fix(self.L)
        nm = self.name
        return "\n".join([f".globl {nm}", ".p2align 8", f".type {nm},@function", f"{nm}:"] + L) + "\n"
    def desc(self):
        return "\n".join([".p2align 6", f".amdhsa_kernel {self.name}",
            "  .amdhsa_next_free_vgpr 256", "  .amdhsa_next_free_sgpr 102", "  .amdhsa_accum_offset 256",
            "  .amdhsa_group_segment_fixed_size 0", "  .amdhsa_kernarg_size 72", "  .amdhsa_user_sgpr_count 2",
            "  .amdhsa_user_sgpr_kernarg_segment_ptr 1", "  .amdhsa_system_sgpr_workgroup_id_x 1",
            "  .amdhsa_float_denorm_mode_32 3",
            ".end_amdhsa_kernel"]) + "\n"

def header():
    ref = open(f"cdna_kernels/{NAME}.s.ref").read().split("\n")
    return [l for l in ref if l.startswith(";") and "@launch" not in l]
def build(dbg=False, opt=None):
    g = G(NAME + "_kernel", dbg, opt); g.build()
    out = header()
    out.append(f"; @launch grid=(256,1,1) block=(512,1,1) lds={LDS}")
    out += ['.amdgcn_target "amdgcn-amd-amdhsa--gfx950"', ".text", g.text(), '.section .rodata,"a"', g.desc()]
    return "\n".join(out)
if __name__ == "__main__":
    path = sys.argv[1]; dbg = False; opt = {}
    for x in sys.argv[2:]:
        if x == "dbg": dbg = True
        else:
            k, v = x.split("="); assert k in OPT, k; opt[k] = int(v)
    txt = build(dbg, opt)
    open(path, "w").write(txt)
    import subprocess
    r = subprocess.run(["clang", "-x", "assembler", "-target", "amdgcn-amd-amdhsa", "-mcpu=gfx950", "-c", path, "-o", "chk.o"], capture_output=True, text=True)
    print(r.stderr[:3000] if r.returncode else "assembled ok", len(txt))
```

```python
import sys
sys.path.insert(0, "dev")
import hazard

NAME = "sequential_preLN__sliding_local_dilated__dense_activation_silu__prompt"
S, D, F = 2048, 640, 1728
CS = 2048 * 16
O_BASE = 0
H_BASE = 80 * CS
ST_BASE = 160 * CS
G_BASE = 0x600000
FL_BASE = 0xE00000
TS_BASE = 0xF00000
WS_SIZE = 0x1200000
TS2 = 0x1000000
OOB = 0x80000000
LDS = 163840
SX, SWQ, SWO, SW1, SW2, SOUT, SDBG, SWS = 24, 28, 32, 36, 40, 44, 48, 52
def srd(n): return f"s[{n}:{n+3}]"
A16 = lambda k: 16384 * k

CSUM = 0xE80000
OPT = dict(la1=3, rot1=1, rot2=1, rot3=1, rot4=1, map1=0, fast=1, nA=24, nB=16, nC=2, c0=4, nD=0, nE=4, e0=1, hla=7, gn=10, wo0=16, lazy=1, ord4=0, gper=2, hper=2, prio=0, lprio=0, wsz=4, ldsc=1, pen=0, osc=0, amp=-1, ampw=37)

class G:
    NL = 0
    def __init__(self, name, dbg=False, opt=None):
        self.name = name; self.L = []; self.dbg = dbg
        self.o = dict(OPT); self.o.update(opt or {})
        self.vm = []; self.tprev = None; self.tn = 0; self.ool = []
    def a(self, s):
        for line in s.split("\n"):
            line = line.strip()
            if line: self.L.append(line if line.endswith(":") else "    " + line)
    def lab(self, b="L"):
        G.NL += 1; return f"{b}_{G.NL}"
    def vissue(self, tag): self.vm.append(tag)
    def vwait(self, tags):
        if not isinstance(tags, (list, set)): tags = [tags]
        last = -1
        for i, t in enumerate(self.vm):
            if t in tags: last = i
        if last < 0: return
        n = len(self.vm) - 1 - last
        assert n <= 63, n
        self.a(f"s_waitcnt vmcnt({n})")
        self.vm = self.vm[last + 1:]
    def vreset(self): self.vm = []
    def tc(self, i):
        if self.dbg: self.a(f"s_memtime s[80:81]\ns_waitcnt lgkmcnt(0)\nv_writelane_b32 v255, s80, {i}")
    def ts(self, i):
        if self.dbg: self.a(f"s_memrealtime s[80:81]\ns_waitcnt lgkmcnt(0)\nv_writelane_b32 v255, s80, {i}")
    def bar(self):
        if self.dbg:
            if self.tprev is not None: self.a(f"v_writelane_b32 v{253 + self.tprev // 64}, s84, {self.tprev % 64}")
            self.a("s_memtime s[84:85]")
            self.tprev = self.tn; self.tn += 1
        self.a("s_barrier")
    def prologue(self):
        a = self.a
        a("s_load_dwordx16 s[4:19], s[0:1], 0")
        a("s_load_dwordx2 s[20:21], s[0:1], 64")
        a("s_cmp_ge_u32 s2, 256")
        a("s_cbranch_scc1 Lend")
        a("v_and_b32 v1, 63, v0")
        a("v_lshrrev_b32 v2, 6, v0")
        a("v_readfirstlane_b32 s22, v2")
        a("s_and_b32 s56, s2, 7")
        a("s_lshr_b32 s57, s2, 3")
        a("s_and_b32 s23, s22, 3")
        if self.o["map1"]:
            a("s_and_b32 s58, s57, 7\ns_lshl_b32 s59, s56, 2\ns_lshr_b32 s3, s57, 3\ns_add_u32 s59, s59, s3")
        else:
            a("s_and_b32 s58, s56, 1\ns_lshl_b32 s58, s58, 2\ns_and_b32 s3, s57, 3\ns_add_u32 s58, s58, s3")
            a("s_lshr_b32 s59, s56, 1\ns_lshl_b32 s59, s59, 3\ns_lshr_b32 s3, s57, 2\ns_add_u32 s59, s59, s3")
        if self.dbg: a("v_mov_b32 v255, 0\nv_mov_b32 v254, 0\nv_mov_b32 v253, 0")
        self.ts(0); self.tc(16)
    def srds(self, which):
        self.a("s_waitcnt lgkmcnt(0)")
        T = {SX: (4, S*D*2), SWQ: (6, D*3*D*2), SWO: (8, D*D*2), SW1: (12, D*F*2), SW2: (14, F*D*2),
             SOUT: (16, S*D*2), SDBG: (18, 256), SWS: (20, WS_SIZE)}
        for d in which:
            b, n = T[d]
            self.a(f"s_mov_b32 s{d}, s{b}\ns_mov_b32 s{d+1}, s{b+1}\ns_mov_b32 s{d+2}, {n}\ns_mov_b32 s{d+3}, 0x00020000")
    def fin(self):
        if self.dbg:
            self.a("s_waitcnt vmcnt(0)")
            self.ts(15); self.tc(17)
            if self.o["amp"] >= 0:
                x, y = divmod(self.o["amp"], 100)
                L1 = self.lab("amp"); L2 = self.lab("ampl")
                self.a(f"s_cmp_lg_u32 s2, {self.o['ampw']}\ns_cbranch_scc1 {L1}\ns_cmp_lg_u32 s22, 0\ns_cbranch_scc1 {L1}")
                self.a(f"v_readlane_b32 s60, v255, {x}\nv_readlane_b32 s61, v255, {y}\ns_sub_u32 s60, s61, s60\ns_min_u32 s60, s60, 8000\ns_lshl_b32 s60, s60, 3\nv_readlane_b32 s61, v255, 15\ns_add_u32 s60, s60, s61")
                self.a(f"s_mov_b32 s62, 0x100000\n{L2}:\ns_memrealtime s[80:81]\ns_waitcnt lgkmcnt(0)\ns_sub_u32 s62, s62, 1\ns_cbranch_scc1 {L1}\ns_sub_u32 s61, s80, s60\ns_cmp_lt_i32 s61, 0\ns_cbranch_scc1 {L2}\n{L1}:")
            self.a(f"s_lshl_b32 s80, s2, 3\ns_add_u32 s80, s80, s22\ns_lshl_b32 s80, s80, 7\ns_add_u32 s80, s80, {TS_BASE}")
            self.a(f"v_writelane_b32 v{253 + self.tprev // 64}, s84, {self.tprev % 64}")
            self.a(f"v_lshlrev_b32 v2, 2, v1\ns_lshl_b32 s84, s2, 3\ns_add_u32 s84, s84, s22\ns_lshl_b32 s84, s84, 9\ns_add_u32 s84, s84, {TS2}")
            self.a(f"buffer_store_dword v253, v2, {srd(SWS)}, s84 offen\nbuffer_store_dword v254, v2, {srd(SWS)}, s84 offen offset:256")
            self.a(f"v_lshlrev_b32 v2, 2, v1\ns_mov_b32 exec_hi, 0\nbuffer_store_dword v255, v2, {srd(SWS)}, s80 offen")
        self.a("s_endpgm")

    FS = 64
    def flag_clear(self):
        a = self.a
        Lk = self.lab("fc")
        a("s_getreg_b32 s3, hwreg(HW_REG_XCC_ID, 0, 4)\ns_mul_i32 s88, s3, s3\ns_lshl_b32 s88, s88, 10\ns_add_u32 s88, s88, s3\ns_add_u32 s88, s88, 0x800000")
        a(f"s_cmp_lg_u32 s22, 0\ns_cbranch_scc1 {Lk}")
        a(f"v_lshrrev_b32 v2, 3, v1\nv_mul_u32_u24 v2, {256*self.FS}, v2\nv_and_b32 v3, 7, v1\nv_lshl_add_u32 v2, v3, 2, v2")
        a(f"v_mov_b32 v3, 0\ns_mul_i32 s61, s2, {self.FS}\ns_add_u32 s61, s61, {FL_BASE}")
        a(f"s_mov_b64 exec, 0xffffff\nbuffer_store_dword v3, v2, {srd(SWS)}, s61 offen sc1\ns_mov_b64 exec, -1")
        a("s_lshl_b32 s61, s56, 5\nv_mov_b32 v3, s88")
        a("s_waitcnt vmcnt(0)")
        a(f"s_mov_b64 exec, 1\nbuffer_atomic_add v3, off, {srd(SDBG)}, s61\ns_mov_b64 exec, -1")
        a(f"{Lk}:")
    def count_check(self):
        a = self.a
        Lk = self.lab("cp"); Lp = self.lab("cpl")
        a("s_mov_b64 exec, 255\ns_mov_b32 s60, 0x100000\ns_mov_b32 s61, 0x10000000")
        a(f"{Lp}:")
        a(f"s_waitcnt vmcnt(0)\nv_cmp_gt_u32 vcc, s61, v96\ns_cbranch_vccz {Lk}")
        a(f"buffer_load_dword v96, v97, {srd(SDBG)}, 0 offen sc1")
        a(f"s_sub_u32 s60, s60, 1\ns_cbranch_scc0 {Lp}")
        a(f"{Lk}:")
        a("s_mov_b64 exec, -1")
        a("s_waitcnt vmcnt(0)\nv_readlane_b32 s3, v96, s56\ns_lshl_b32 s88, s88, 5\ns_cmp_eq_u32 s3, s88\ns_cselect_b64 s[86:87], -1, 0")
        if not self.o["fast"]: a("s_mov_b64 s[86:87], 0")
        if self.o["pen"]:
            Lz = self.lab("pen")
            a(f"s_cmp_lg_u32 s86, 0\ns_cbranch_scc1 {Lz}")
            for _ in range(6): a("s_sleep 127")
            a(f"{Lz}:")
    def hst(self, txt, local=True):
        if not local:
            self.a(txt + " sc1"); return
        L1 = self.lab("slow"); L2 = self.lab("back")
        self.a(f"s_cbranch_vccz {L1}\n{txt}\n{L2}:")
        self.ool.append(f"{L1}:\ns_nop 7\n{txt} sc1\ns_branch {L2}")
    def signal(self, ph, wreg, local=True):
        a = self.a
        a(f"s_mul_i32 s61, s74, {self.FS}\ns_lshl_b32 s3, {wreg}, 2\ns_add_u32 s61, s61, s3\ns_add_u32 s61, s61, {FL_BASE + ph*256*self.FS}\nv_mov_b32 v3, 1")
        a("s_waitcnt vmcnt(0)")
        a("s_mov_b64 exec, 1")
        self.hst(f"buffer_store_dword v3, off, {srd(SWS)}, s61", local)
        a("s_mov_b64 exec, -1")
    def wait_flags(self, ph, two, extra=None):
        a = self.a
        a(f"s_mul_i32 s61, s61, {self.FS}\ns_add_u32 s61, s61, {FL_BASE + ph*256*self.FS}")
        Lp = self.lab("poll"); Lq = self.lab("pollx")
        if two: a(f"v_lshrrev_b32 v2, 1, v1\nv_mul_u32_u24 v2, {self.FS}, v2\nv_and_b32 v3, 1, v1\nv_lshl_add_u32 v2, v3, 4, v2")
        else: a(f"v_mul_u32_u24 v2, {self.FS}, v1")
        if extra: a(extra)
        a("s_bfm_b64 exec, s60, 0\ns_mov_b32 s60, 0x100000")
        a(f"{Lp}:")
        a(f"buffer_load_dwordx4 v[4:7], v2, {srd(SWS)}, s61 offen sc1")
        a(f"s_sub_u32 s60, s60, 1\ns_cbranch_scc1 {Lq}")
        a("s_waitcnt vmcnt(0)")
        a("v_and_b32 v4, v4, v5\nv_and_b32 v6, v6, v7\nv_and_b32 v4, v4, v6")
        a(f"v_cmp_ne_u32 vcc, 1, v4\ns_cbranch_vccnz {Lp}")
        a(f"{Lq}:")
        a("s_waitcnt vmcnt(0)\ns_mov_b64 exec, -1")
        self.vreset()
    def adv(self, sreg, stride, n):
        self.a(f"s_add_u32 s{sreg}, s{sreg}, {stride}\ns_cmp_eq_u32 s{sreg}, {stride*n}\ns_cselect_b32 s{sreg}, 0, s{sreg}")
    def mk3(self, r):
        self.a(f"v_add_u32 v{r+1}, 0x10000, v{r}\nv_add_u32 v{r+2}, 0x20000, v{r}")
    def ad(self, r, off):
        return f"v{r + (off >> 16)} offset:{off & 0xffff}"

    P1_SLOT = 40960; P1_W = 10240; P1_WS = 15360; P1_ST = 0; P1_QKV = 1024; P1_QS = 488
    def p1x(self, s): return (s % 4) * self.P1_SLOT
    def p1w(self, u): return ((u // 2) % 4) * self.P1_SLOT + self.P1_W + (u % 2) * self.P1_WS
    def p1c(self):
        a = self.a
        a(f"v_lshrrev_b32 v2, 3, v1\nv_and_b32 v2, 3, v2\nv_mul_u32_u24 v2, {self.P1_SLOT}, v2\nv_and_b32 v3, 7, v1\nv_lshl_add_u32 v2, v3, 4, v2")
        for r in range(4): a(f"v_mov_b32 v{20+r}, 0x3f803f80")
        a("ds_write_b128 v2, v[20:23]")
        a("v_lshrrev_b32 v10, 2, v1\nv_mul_u32_u24 v10, 480, v10\nv_and_b32 v3, 3, v1\nv_lshl_add_u32 v10, v3, 3, v10")
        a("s_lshl_b32 s3, s23, 7\nv_add_u32 v10, s3, v10")
        a("v_and_b32 v3, 15, v1\nv_lshrrev_b32 v13, 1, v3\nv_lshrrev_b32 v4, 4, v1\nv_xor_b32 v4, v4, v13\nv_lshlrev_b32 v4, 4, v4\nv_lshl_add_u32 v4, v3, 7, v4")
        a("v_xor_b32 v7, 64, v4")
        self.mk3(4); self.mk3(7); self.mk3(10)
        self.srds([SWS, SDBG, SX, SWO, SW1, SW2, SOUT])
        self.flag_clear()
        ACC = 100; FB = [20, 56]
        a("s_waitcnt lgkmcnt(0)")
        self.ts(1)
        def reads(u):
            fb = FB[u % 2]; r = []
            for t in range(5):
                r.append(f"ds_read_b128 v[{fb+16+4*t}:{fb+19+4*t}], {self.ad(4 + 3*(u % 2), self.p1x(u//2) + 2048*t)}")
            for j in range(4):
                for rd in range(2):
                    r.append(f"ds_read_b64_tr_b16 v[{fb+4*j+2*rd}:{fb+4*j+2*rd+1}], {self.ad(10, self.p1w(u) + 32*j + 7680*rd)}")
            return r
        def mfmas(u):
            fb = FB[u % 2]; r = []
            for j in range(4):
                for t in range(5):
                    c = ACC + (j*5+t)*4
                    cs = "0" if u == 0 else f"v[{c}:{c+3}]"
                    r.append(f"v_mfma_f32_16x16x32_bf16 v[{c}:{c+3}], v[{fb+4*j}:{fb+4*j+3}], v[{fb+16+4*t}:{fb+19+4*t}], {cs}")
            return r
        for u in range(20):
            self.bar()
            if u == 0: self.ts(2)
            if u == 10: self.ts(3)
            if u == 12:
                a(f"v_lshlrev_b32 v97, 5, v1\nbuffer_load_dword v96, v97, {srd(SDBG)}, 0 offen sc1")
            rd = reads(u); mf = mfmas(u-1) if u else []
            for i in range(max(len(rd), len(mf))):
                if i < len(rd): a(rd[i])
                if i < len(mf): a(mf[i])
            a("s_waitcnt lgkmcnt(0)")
        STR = 20; CSR = 32
        a("v_and_b32 v3, 15, v1\nv_lshlrev_b32 v13, 3, v3")
        mf = mfmas(19)
        for m in mf[:14]: a(m)
        self.bar()
        self.ts(4)
        for t in range(5): a(f"ds_read_b64 v[{STR+2*t}:{STR+2*t+1}], v13 offset:{self.P1_ST + 128*t}")
        for m in mf[14:]: a(m)
        a(f"v_mul_u32_u24 v2, {self.P1_QS}, v3\nv_lshrrev_b32 v3, 4, v1\nv_lshl_add_u32 v2, v3, 3, v2")
        a(f"s_lshl_b32 s3, s23, 7\ns_add_u32 s3, s3, {self.P1_QKV}\nv_add_u32 v2, s3, v2")
        a("s_waitcnt lgkmcnt(0)")
        Lsk = self.lab("P1sk")
        for j in range(4):
            if j == 3:
                a(f"s_cmp_eq_u32 s23, 3\ns_cbranch_scc1 {Lsk}")
            for r in range(4): a(f"v_mov_b32_dpp v{CSR+4*j+r}, v{ACC+j*20+r} row_newbcast:0 row_mask:0xf bank_mask:0xf")
            for t in range(5):
                c = ACC + (j*5+t)*4
                for p in (0, 2):
                    a(f"v_pk_fma_f32 v[{c+p}:{c+p+1}], v[{CSR+4*j+p}:{CSR+4*j+p+1}], v[{STR+2*t}:{STR+2*t+1}], v[{c+p}:{c+p+1}] op_sel:[0,1,0] op_sel_hi:[1,1,1] neg_lo:[0,1,0] neg_hi:[0,1,0]")
            for t in range(5):
                c = ACC + (j*5+t)*4
                for p in (0, 2):
                    a(f"v_pk_mul_f32 v[{c+p}:{c+p+1}], v[{c+p}:{c+p+1}], v[{STR+2*t}:{STR+2*t+1}] op_sel_hi:[1,0]")
            for t in range(5):
                c = ACC + (j*5+t)*4
                a(f"v_cvt_pk_bf16_f32 v{c}, v{c}, v{c+1}\nv_cvt_pk_bf16_f32 v{c+1}, v{c+2}, v{c+3}")
                a(f"ds_write_b64 v2, v[{c}:{c+1}] offset:{t*16*self.P1_QS + 32*j}")
        a(f"{Lsk}:")
        self.count_check()
        if self.o["map1"]: a("v_mov_b32 v2, 768\nv_mov_b32 v3, s86\nds_write_b32 v2, v3")
        a("s_waitcnt lgkmcnt(0)")
        self.p1tail()
    def p1tail(self, post=None):
        a = self.a
        self.bar()
        self.ts(5)
        self.attention()
        self.ts(6)
        a("s_lshl_b32 s74, s59, 3\ns_add_u32 s74, s74, s58")
        self.signal(0, "s22", self.o["map1"])
        self.vreset()
        self.ts(18)
        if post: post()
        self.bar()
        a("s_cmp_ge_u32 s57, 30\ns_cbranch_scc1 Lcsum")
    def csum(self):
        a = self.a
        a("Lcsum:")
        a("s_sub_u32 s60, s57, 30\ns_lshl_b32 s60, s60, 3\ns_add_u32 s60, s60, s56")
        a("s_cmp_ge_u32 s60, 14\ns_cbranch_scc1 Lcsx")
        a("v_lshrrev_b32 v2, 4, v1\nv_and_b32 v3, 15, v1\nv_mul_u32_u24 v4, 3456, v2\nv_lshl_add_u32 v4, v3, 4, v4")
        a(f"s_mul_i32 s61, s22, {80*3456}\ns_lshl_b32 s3, s60, 8\ns_add_u32 s61, s61, s3")
        a("s_waitcnt vmcnt(0)")
        for n in range(20):
            a(f"buffer_load_dwordx4 v[{20+4*n}:{23+4*n}], v4, {srd(SW1)}, s61 offen\ns_add_u32 s61, s61, {4*3456}")
        for e in range(8): a(f"v_mov_b32 v{10+e}, 0")
        a("v_mov_b32 v8, 0x00003f80\nv_mov_b32 v9, 0x3f800000")
        for n in range(20):
            a(f"s_waitcnt vmcnt({19-n})")
            for d in range(4):
                a(f"v_dot2c_f32_bf16 v{10+2*d}, v{20+4*n+d}, v8\nv_dot2c_f32_bf16 v{11+2*d}, v{20+4*n+d}, v9")
        for e in range(4): a(f"v_permlane32_swap_b32 v{10+e}, v{14+e}")
        for e in range(4): a(f"v_add_f32 v{10+e}, v{10+e}, v{14+e}")
        for e in range(2): a(f"v_permlane16_swap_b32 v{10+e}, v{12+e}")
        for e in range(2): a(f"v_add_f32 v{10+e}, v{10+e}, v{12+e}")
        a("v_lshlrev_b32 v3, 5, v3\nv_lshl_add_u32 v3, v2, 3, v3\ns_lshl_b32 s3, s22, 9\nv_add_u32 v3, s3, v3")
        a("ds_write_b64 v3, v[10:11]\ns_waitcnt lgkmcnt(0)\ns_barrier")
        a("s_cmp_lg_u32 s22, 0\ns_cbranch_scc1 Lcsx")
        a("v_lshlrev_b32 v3, 3, v1")
        for w in range(8): a(f"ds_read_b64 v[{20+2*w}:{21+2*w}], v3 offset:{512*w}")
        a("s_waitcnt lgkmcnt(0)")
        for w in range(1, 8): a(f"v_pk_add_f32 v[20:21], v[20:21], v[{20+2*w}:{21+2*w}]")
        a(f"s_lshl_b32 s61, s60, 9\ns_add_u32 s61, s61, {CSUM}")
        a(f"buffer_store_dwordx2 v[20:21], v3, {srd(SWS)}, s61 offen sc1")
        a(f"s_mul_i32 s61, s60, {self.FS}\ns_add_u32 s61, s61, {FL_BASE + (256 + 240)*self.FS}\nv_mov_b32 v4, 1\nv_lshlrev_b32 v3, 2, v1")
        a("s_waitcnt vmcnt(0)")
        a(f"s_mov_b64 exec, 15\nbuffer_store_dword v4, v3, {srd(SWS)}, s61 offen sc1\ns_mov_b64 exec, -1")
        a("Lcsx:")
        self.tprev = 22
        self.fin()
    W1R = [152, 168, 184, 200, 216, 232, 20, 36, 52, 68]
    W2R = [84 + 8*i for i in range(8)] + [184, 192, 200, 208, 152, 160, 168, 176, 216, 224, 232, 240] + [20 + 8*i for i in range(7)]
    def bg_init(self):
        self.bg = [("w1", s, n) for s in range(10) for n in range(4)] + [("w2", u, k) for u in range(27) for k in range(2)]
        self.busy = set(range(20, 150))
    def bg_issue(self, cnt, must=False):
        a = self.a
        while cnt > 0 and self.bg:
            k, s, n = self.bg[0]
            r = (self.W1R[s] if k == "w1" else self.W2R[s]) + 4*n
            if self.busy & set(range(r, r+4)):
                assert not must, (k, s, n)
                return
            self.bg.pop(0); cnt -= 1
            self.busy |= set(range(r, r+4))
            if k == "w1":
                a(f"s_add_u32 s61, s76, {4*n*3456}")
                a(f"buffer_load_dwordx4 v[{r}:{r+3}], v150, {srd(SW1)}, s61 offen")
                if n == 3: self.adv(76, 64*3456, 10)
            else:
                a(f"s_add_u32 s61, s83, {32*n*1280}")
                a(f"buffer_load_dwordx4 v[{r}:{r+3}], v17, {srd(SW2)}, s61 offen")
                if n == 1: self.adv(83, 64*1280, 27)
            self.vissue((k, s))
    def w1_flush(self, s):
        assert ("w1", s, 3) not in self.bg
        self.vwait([("w1", s)])
        r = self.W1R[s]
        for n in range(4): self.a(f"ds_write_b128 v{14 + (self.p3w(s) >> 16)}, v[{r+4*n}:{r+4*n+3}] offset:{(self.p3w(s) & 0xffff) + n*1024}")
    def w1_free(self, s): self.busy -= set(range(self.W1R[s], self.W1R[s] + 16))
    def w2_flush(self, u):
        assert ("w2", u, 1) not in self.bg
        self.vwait([("w2", u)])
        r = self.W2R[u]
        for k in range(2):
            o = (u % 4)*8192 + k*4096
            if self.o["wsz"] == 4: self.a(f"ds_write_b128 v19, v[{r+4*k}:{r+4*k+3}] offset:{o}")
            elif self.o["wsz"] == 2:
                for d in range(2): self.a(f"ds_write_b64 v19, v[{r+4*k+2*d}:{r+4*k+2*d+1}] offset:{o+8*d}")
            else:
                for d in range(4): self.a(f"ds_write_b32 v19, v{r+4*k+d} offset:{o+4*d}")
    def p1l(self):
        a = self.a
        LA = self.o["la1"]
        self.vreset()
        a("s_lshl_b32 s60, s59, 6\ns_sub_u32 s60, s60, 16")
        a("s_mul_i32 s3, s23, 20\nv_lshrrev_b32 v14, 3, v1\nv_add_u32 v14, s3, v14\nv_and_b32 v13, 7, v1")
        for n in range(3):
            a(f"v_add_u32 v2, {8*n}, v14\nv_lshrrev_b32 v3, 1, v2\nv_and_b32 v3, 7, v3\nv_xor_b32 v3, v3, v13")
            a(f"v_add_u32 v2, s60, v2\nv_max_i32 v2, 0, v2\nv_mul_u32_u24 v2, 1280, v2\nv_lshl_add_u32 v{15+n}, v3, 4, v2")
        a("v_cmp_le_u32 vcc, 30, v1\nv_cndmask_b32 v2, 0, 1, vcc")
        a("v_mul_u32_u24 v3, 30, v2\nv_sub_u32 v3, v1, v3")
        a("v_mul_u32_u24 v4, 26, v3\nv_lshrrev_b32 v4, 8, v4")
        a("v_mul_u32_u24 v5, 10, v4\nv_sub_u32 v5, v3, v5")
        a("v_mul_u32_u24 v18, 3840, v2\nv_mul_u32_u24 v4, 1280, v4\nv_add_u32 v18, v18, v4\nv_lshl_add_u32 v18, v5, 4, v18")
        a("s_and_b32 s3, s23, 1\ns_lshl_b32 s3, s3, 4\ns_lshr_b32 s61, s23, 1\ns_lshl_b32 s61, s61, 2\ns_add_u32 s3, s3, s61")
        a("s_mul_i32 s3, s3, 3840\ns_mul_i32 s61, s58, 160\ns_add_u32 s3, s3, s61\nv_add_u32 v18, s3, v18")
        a(f"s_mul_i32 s64, s23, {4*960}\ns_mul_i32 s65, s23, 2560")
        a("s_cmp_eq_u32 s23, 0\ns_cselect_b32 s78, 0xffff0000, -1")
        if self.o["rot1"]:
            if self.o["map1"]: a("s_and_b32 s3, s57, 7\ns_lshr_b32 s61, s57, 3")
            else: a("s_lshr_b32 s3, s57, 2\ns_and_b32 s61, s57, 3")
            a("s_mul_i32 s3, s3, 5\ns_lshr_b32 s3, s3, 2")
            if self.o["rot1"] == 1:
                a("s_mul_i32 s61, s61, 5\ns_lshr_b32 s61, s61, 1\ns_add_u32 s3, s3, s61")
                a("s_sub_u32 s61, s3, 10\ns_cmp_ge_u32 s3, 10\ns_cselect_b32 s3, s61, s3")
            a(f"s_lshl_b32 s75, s3, 7\ns_mul_i32 s76, s3, {64*3840}")
        else:
            a("s_mov_b32 s75, 0\ns_mov_b32 s76, 0")
        self.srds([SX, SWQ])
        def xiss(s):
            for n in range(3):
                a(f"s_add_u32 m0, s65, {self.p1x(s) + n*1024}")
                if n == 0: a("s_mov_b32 exec_lo, s78")
                if n == 1: a("s_mov_b32 exec_lo, -1")
                if n == 2: a("s_mov_b32 exec_hi, 0")
                a(f"buffer_load_dwordx4 v{15+n}, {srd(SX)}, s75 offen lds")
                self.vissue(("x", s))
            a("s_mov_b32 exec_hi, -1")
            self.adv(75, 128, 10)
        def wiss(u):
            a("s_mov_b32 exec_hi, 0x0fffffff")
            for jj in range(4):
                a(f"s_add_u32 m0, s64, {self.p1w(u) + jj*960}")
                a(f"s_add_u32 s61, s76, {[0, 2, 8, 10][jj] * 3840}")
                a(f"buffer_load_dwordx4 v18, {srd(SWQ)}, s61 offen lds")
                self.vissue(("w", u))
            a("s_mov_b32 exec_hi, -1")
            self.adv(76, 32*3840, 20)
        def iss(u):
            if u % 2 == 0: xiss(u // 2)
            wiss(u)
        for u in range(LA + 1): iss(u)
        self.srds([SWS, SWO, SW1, SW2])
        for r in range(6): a(f"v_mov_b32 v{20+r}, 0")
        a("v_lshlrev_b32 v26, 4, v1\nv_add_u32 v26, s65, v26\nv_mov_b32 v12, 0x3f803f80")
        self.mk3(26)
        self.p24_ids()
        self.p2_wo_setup()
        self.vwait([("w", 0)])
        nwo = 0
        for u in range(20):
            self.bar()
            if u >= 1 and u + LA <= 19: iss(u + LA)
            if u >= self.o["wo0"]: self.p2_wo_issue(nwo); nwo += 1
            if u % 2 == 0:
                for n in range(3): a(f"ds_read_b128 v[{32+4*n}:{35+4*n}], {self.ad(26, self.p1x(u//2) + n*1024)}")
                a("s_waitcnt lgkmcnt(0)")
                for d in range(4):
                    for n in range(3):
                        a(f"v_dot2c_f32_bf16 v{20+2*n}, v{32+4*n+d}, v12\nv_dot2c_f32_bf16 v{21+2*n}, v{32+4*n+d}, v{32+4*n+d}")
            if u == 19:
                for m in ("quad_perm:[1,0,3,2]", "quad_perm:[2,3,0,1]", "row_half_mirror"):
                    for r in range(6): a(f"v_add_f32_dpp v{20+r}, v{20+r}, v{20+r} {m} row_mask:0xf bank_mask:0xf")
                for n in range(3):
                    m_, q_ = 33 + 2*n, 21 + 2*n
                    a(f"v_mul_f32 v{m_}, {1.0/640!r}, v{20+2*n}\nv_mul_f32 v{q_}, {1.0/640!r}, v{q_}")
                    a(f"v_fma_f32 v{q_}, -v{m_}, v{m_}, v{q_}\nv_max_f32 v{q_}, 0, v{q_}\nv_add_f32 v{q_}, 1e-5, v{q_}\nv_rsq_f32 v{m_-1}, v{q_}")
                a("v_lshlrev_b32 v2, 3, v14")
                a(f"ds_write_b64 v2, v[32:33] offset:{self.P1_ST}\nds_write_b64 v2, v[34:35] offset:{self.P1_ST+64}")
                a(f"s_mov_b32 exec_hi, 0\nds_write_b64 v2, v[36:37] offset:{self.P1_ST+128}\ns_mov_b32 exec_hi, -1")
                a("s_waitcnt lgkmcnt(0)")
            if u + 1 <= 19: self.vwait([("w", u + 1)])
        self.bar()
        for k in range(nwo, 5): self.p2_wo_issue(k)
        self.p3_w_setup()
        self.bg_init()
        self.bg_issue(self.o["nA"])
        def post():
            self.busy -= set(range(20, 150))
            self.p4_w_setup()
            self.bg_issue(self.o["nB"])
        self.p1tail(post)

    def attention(self):
        a = self.a
        QS = self.P1_QS
        a("s_lshr_b32 s3, s22, 2\ns_lshl_b32 s3, s3, 5")
        a("v_and_b32 v2, 31, v1\nv_add_u32 v2, s3, v2")
        a("v_lshrrev_b32 v3, 5, v1")
        a(f"v_mul_u32_u24 v4, {QS}, v2")
        a(f"s_mul_i32 s3, s23, 40\ns_add_u32 s3, s3, {self.P1_QKV + 16*QS}\nv_add_u32 v4, s3, v4")
        a(f"v_mul_u32_u24 v5, {8*QS}, v3\nv_sub_u32 v5, v4, v5\nv_subrev_u32 v5, {6*QS}, v5")
        Q = 20; Kr = 30; V = 70; P = 110; T = 120; AC = 130
        if self.o["map1"]: a("v_mov_b32 v11, 768\nds_read_b32 v11, v11")
        for c in range(5): a(f"ds_read_b64 v[{Q+2*c}:{Q+2*c+1}], v4 offset:{8*c}")
        for jj in range(4):
            for c in range(5): a(f"ds_read_b64 v[{Kr+10*jj+2*c}:{Kr+10*jj+2*c+1}], v5 offset:{(6-2*jj)*QS + 160 + 8*c}")
        a("s_lshl_b32 s3, s59, 6\nv_add_u32 v6, s3, v2")
        a("v_lshlrev_b32 v7, 3, v3\nv_sub_u32 v7, v6, v7")
        for jj in range(4): a(f"v_mov_b32 v{P+jj}, 0")
        a("s_waitcnt lgkmcnt(0)")
        for jj in range(4):
            for c in range(5): a(f"ds_read_b64 v[{V+10*jj+2*c}:{V+10*jj+2*c+1}], v5 offset:{(6-2*jj)*QS + 320 + 8*c}")
        for d in range(10):
            for jj in range(4): a(f"v_dot2c_f32_bf16 v{P+jj}, v{Q+d}, v{Kr+10*jj+d}")
        SCL = 20 ** -0.5 * 1.4426950408889634
        a("v_mov_b32 v8, 0xceac0000")
        for jj in range(4):
            a(f"v_mul_f32 v{P+jj}, {SCL!r}, v{P+jj}")
            a(f"v_cmp_le_i32 vcc, {2*jj}, v7")
            a(f"v_cndmask_b32 v{P+jj}, v8, v{P+jj}, vcc")
        a(f"v_max3_f32 v9, v{P}, v{P+1}, v{P+2}\nv_max_f32 v9, v9, v{P+3}\nv_mov_b32 v10, v9")
        a("v_permlane32_swap_b32 v9, v10\nv_max_f32 v9, v9, v10")
        for jj in range(4): a(f"v_sub_f32 v{P+jj}, v{P+jj}, v9")
        for jj in range(4): a(f"v_exp_f32 v{P+jj}, v{P+jj}")
        a(f"v_add_f32 v9, v{P}, v{P+1}\nv_add_f32 v10, v{P+2}, v{P+3}\nv_add_f32 v9, v9, v10\nv_mov_b32 v10, v9")
        a("v_permlane32_swap_b32 v9, v10\nv_add_f32 v9, v9, v10\nv_rcp_f32 v9, v9")
        for jj in range(4): a(f"v_mul_f32 v{P+jj}, v{P+jj}, v9")
        a(f"v_cvt_pk_bf16_f32 v{P}, v{P}, v{P+1}\nv_cvt_pk_bf16_f32 v{P+1}, v{P+2}, v{P+3}")
        a("s_mov_b32 s60, 0x05040100\ns_mov_b32 s61, 0x07060302")
        a("s_waitcnt lgkmcnt(0)")
        for d in range(10):
            t = T + 4 * (d % 2)
            a(f"v_perm_b32 v{t}, v{V+10+d}, v{V+d}, s60\nv_perm_b32 v{t+1}, v{V+10+d}, v{V+d}, s61")
            a(f"v_perm_b32 v{t+2}, v{V+30+d}, v{V+20+d}, s60\nv_perm_b32 v{t+3}, v{V+30+d}, v{V+20+d}, s61")
            a(f"v_dot2_f32_bf16 v{AC+2*d}, v{t}, v{P}, 0\nv_dot2_f32_bf16 v{AC+2*d+1}, v{t+1}, v{P}, 0")
            a(f"v_dot2_f32_bf16 v{AC+2*d}, v{t+2}, v{P+1}, v{AC+2*d}\nv_dot2_f32_bf16 v{AC+2*d+1}, v{t+3}, v{P+1}, v{AC+2*d+1}")
        pairs = [(d, d + 8) for d in range(8)] + [(16, 18), (17, 19)]
        for x, y in pairs: a(f"v_permlane32_swap_b32 v{AC+x}, v{AC+y}")
        for x, y in pairs: a(f"v_add_f32 v{AC+x}, v{AC+x}, v{AC+y}")
        for d in range(4): a(f"v_cvt_pk_bf16_f32 v{T+d}, v{AC+2*d}, v{AC+2*d+1}")
        a(f"v_cvt_pk_bf16_f32 v{T+4}, v{AC+16}, v{AC+17}")
        a("v_lshlrev_b32 v6, 4, v6")
        a(f"v_mul_u32_u24 v7, {CS}, v3\nv_add_u32 v7, v7, v6")
        a("v_lshl_add_u32 v8, v3, 2, v6")
        a(f"s_mul_i32 s60, s58, 10\ns_lshl_b32 s3, s23, 1\ns_add_u32 s61, s60, s3\ns_mul_i32 s61, s61, {CS}")
        if self.o["map1"]: a("v_readfirstlane_b32 s86, v11\ns_mov_b32 s87, s86\ns_mov_b64 vcc, s[86:87]")
        self.hst(f"buffer_store_dwordx4 v[{T}:{T+3}], v7, {srd(SWS)}, s61 offen", self.o["map1"])
        a(f"s_lshr_b32 s3, s23, 1\ns_add_u32 s60, s60, s3\ns_add_u32 s60, s60, 8\ns_mul_i32 s60, s60, {CS}")
        a(f"s_and_b32 s3, s23, 1\ns_lshl_b32 s3, s3, 3\ns_add_u32 s60, s60, s3")
        self.hst(f"buffer_store_dword v{T+4}, v8, {srd(SWS)}, s60 offen", self.o["map1"])

    def p24_ids(self):
        a = self.a
        a("s_mul_i32 s66, s57, 26\ns_lshr_b32 s66, s66, 8\ns_mul_i32 s3, s66, 10\ns_sub_u32 s67, s57, s3")
        a("s_lshl_b32 s68, s56, 8\ns_mul_i32 s3, s66, 88\ns_add_u32 s68, s68, s3")
        a("s_cmp_eq_u32 s66, 2\ns_cselect_b32 s69, 0, 8\ns_add_u32 s69, s69, 80")
    def w64_addr(self, dst, Drows):
        a = self.a
        a("v_lshrrev_b32 v2, 3, v1\nv_and_b32 v3, 3, v2\nv_lshrrev_b32 v4, 2, v2")
        a(f"v_mul_u32_u24 v4, {Drows}, v4\nv_add_u32 v3, v3, v4\nv_mul_u32_u24 v{dst}, 1280, v3")
        a("v_lshrrev_b32 v2, 4, v1\nv_lshlrev_b32 v2, 1, v2\nv_and_b32 v3, 7, v1\nv_xor_b32 v3, v3, v2")
        a(f"v_lshl_add_u32 v{dst}, v3, 4, v{dst}")
        a(f"s_lshl_b32 s3, s67, 7\nv_add_u32 v{dst}, s3, v{dst}")
    def panel96_addr(self, dst):
        a = self.a
        for n in range(3):
            a(f"v_add_u32 v2, {64*n}, v1\nv_cmp_le_u32 vcc, 96, v2\nv_cndmask_b32 v3, 0, 1, vcc")
            a("v_mul_u32_u24 v4, 96, v3\nv_sub_u32 v2, v2, v4")
            a("s_lshl_b32 s3, s23, 1\nv_add_u32 v3, s3, v3")
            a(f"v_mul_u32_u24 v3, {CS}, v3\nv_add_u32 v4, s68, v2\nv_lshl_add_u32 v3, v4, 4, v3")
            a(f"v_cmp_gt_u32 vcc, s69, v2\nv_mov_b32 v4, {OOB}\nv_cndmask_b32 v{dst+n}, v4, v3, vcc")
    def panel96_issue(self, areg, gbase, nst, ldsbase, tag):
        a = self.a
        a(f"s_add_u32 s61, s75, {gbase}")
        for n in range(3):
            a(f"s_add_u32 m0, s65, {ldsbase + n*1024}")
            a(f"buffer_load_dwordx4 v{areg+n}, {srd(SWS)}, s61 offen {'sc1' if self.o['ldsc'] else ''} lds")
            self.vissue(tag)
        self.adv(75, 8*CS, nst)
    def c24_addr(self):
        a = self.a
        a("s_lshr_b32 s70, s23, 1\ns_and_b32 s71, s23, 1")
        a("v_lshrrev_b32 v11, 3, v1\nv_and_b32 v11, 3, v11\ns_lshl_b32 s3, s71, 1\nv_xor_b32 v11, s3, v11")
        a("v_lshrrev_b32 v2, 2, v1\nv_lshlrev_b32 v2, 7, v2\nv_and_b32 v3, 3, v1\nv_lshl_add_u32 v2, v3, 3, v2")
        a("v_xor_b32 v3, 1, v11\nv_lshl_add_u32 v5, v3, 5, v2\nv_lshl_add_u32 v2, v11, 5, v2")
        self.mk3(2); self.mk3(5)
        a("v_lshrrev_b32 v8, 4, v1\nv_mul_u32_u24 v8, 1536, v8\nv_and_b32 v11, 15, v1\nv_lshl_add_u32 v8, v11, 4, v8")
        a("s_mul_i32 s3, s70, 768\nv_add_u32 v8, s3, v8")
        self.mk3(8)
    def c24_loop(self, nst, aoff, boff, ACC, tsb):
        a = self.a
        def reads(u):
            s, ks = divmod(u, 2); f = 20 + 20*(u % 4); r = []
            for j in range(2):
                for rd in range(2):
                    r.append(f"ds_read_b64_tr_b16 v[{f+4*j+2*rd}:{f+4*j+2*rd+1}], {self.ad(2+3*j, aoff(s) + ks*4096 + rd*2048)}")
            for t in range(3):
                r.append(f"ds_read_b128 v[{f+8+4*t}:{f+11+4*t}], {self.ad(8, boff(s) + ks*4*1536 + t*256)}")
            return [r[0], r[4], r[1], r[5], r[2], r[3], r[6]]
        def mfmas(u):
            f = 20 + 20*(u % 4); r = []
            for j in range(2):
                for t in range(3):
                    c = ACC + (t*2+j)*4
                    cs = "0" if u == 0 else f"v[{c}:{c+3}]"
                    r.append(f"v_mfma_f32_16x16x32_bf16 v[{c}:{c+3}], v[{f+4*j}:{f+4*j+3}], v[{f+8+4*t}:{f+11+4*t}], {cs}")
            return r
        n = 2*nst
        self.bar()
        self.ts(tsb)
        for x in reads(0) + reads(1): a(x)
        for u in range(n):
            nu = u + 2
            if nu < n and nu % 2 == 0: self.bar()
            if u == nst: self.ts(tsb+1)
            a(f"s_waitcnt lgkmcnt({7 if u + 1 < n else 0})")
            if u == n - 1:
                self.bar(); self.ts(tsb+2)
            rd = reads(nu) if nu < n else []
            mf = mfmas(u)
            for i, m in enumerate(mf):
                a(m)
                if i < len(rd): a(rd[i])
            for x in rd[len(mf):]: a(x)
    def c24_rowaddr(self):
        a = self.a
        a("v_and_b32 v12, 15, v1\ns_mul_i32 s3, s70, 48\nv_add_u32 v12, s3, v12")
        a("v_lshrrev_b32 v13, 4, v1\nv_and_b32 v14, 1, v13\nv_lshlrev_b32 v14, 1, v14\nv_lshrrev_b32 v11, 1, v13\nv_add_u32 v14, v14, v11")
        a("s_lshl_b32 s3, s71, 2\nv_add_u32 v14, s3, v14")
    def c24_addr_rm(self, dst):
        a = self.a
        for t in range(3):
            a(f"v_add_u32 v11, {16*t}, v12\nv_cmp_gt_u32 vcc, s69, v11\nv_add_u32 v11, s68, v11\nv_mul_u32_u24 v11, 1280, v11")
            a(f"v_lshl_add_u32 v11, v14, 4, v11\ns_lshl_b32 s3, s67, 7\nv_add_u32 v11, s3, v11")
            a(f"v_mov_b32 v{dst+t}, {OOB}\nv_cndmask_b32 v{dst+t}, v{dst+t}, v11, vcc")
    def c24_addr_panel(self, dst):
        a = self.a
        for t in range(3):
            a(f"s_lshl_b32 s3, s67, 3\nv_add_u32 v{dst+t}, s3, v14\nv_mul_u32_u24 v{dst+t}, {CS}, v{dst+t}")
            a(f"v_add_u32 v11, {16*t}, v12\nv_cmp_gt_u32 vcc, s69, v11\nv_add_u32 v11, s68, v11")
            a(f"v_lshl_add_u32 v11, v11, 4, v{dst+t}")
            a(f"v_mov_b32 v{dst+t}, {OOB}\nv_cndmask_b32 v{dst+t}, v{dst+t}, v11, vcc")
    def c24_sum(self, ACC, RES, OUT, T, store):
        a = self.a
        for t in range(3):
            A = ACC + t*8; B = A + 4
            for d in range(4):
                a(f"v_lshlrev_b32 v{T+2*d}, 16, v{RES+4*t+d}\nv_and_b32 v{T+2*d+1}, 0xffff0000, v{RES+4*t+d}")
            for r in range(4): a(f"v_permlane16_swap_b32 v{A+r}, v{B+r}")
            for d in range(4):
                a(f"v_pk_add_f32 v[{T+2*d}:{T+2*d+1}], v[{T+2*d}:{T+2*d+1}], v[{A+2*d}:{A+2*d+1}]")
            for d in range(4):
                a(f"v_cvt_pk_bf16_f32 v{OUT+4*t+d}, v{T+2*d}, v{T+2*d+1}")
            store(t)

    P2_WO = 81920; P2_RING = 0; P2_NS = 6
    HREG = 240
    def p2_wo_setup(self):
        a = self.a
        self.w64_addr(44, 8); self.w64_addr(45, 40)
        a(f"s_cmp_ge_u32 s57, 30\ns_cselect_b32 s3, {OOB}, 0\nv_or_b32 v44, s3, v44\nv_or_b32 v45, s3, v45")
        a(f"s_mul_i32 s77, s23, {160*1280}\ns_mul_i32 s79, s23, 5")
        if self.o["rot2"]:
            a("s_lshl_b32 s3, s67, 1\ns_add_u32 s79, s79, 20\ns_sub_u32 s79, s79, s3\ns_sub_u32 s3, s79, 20\ns_cmp_ge_u32 s79, 20\ns_cselect_b32 s79, s3, s79")
        a("s_lshl_b32 s79, s79, 12")
    def p2_wo_issue(self, kk):
        a = self.a
        for io in range(4):
            q = 4*kk + 2*(io % 2); rd = io // 2; hg = q // 10; c = q % 10
            if c < 8: row = 80*hg + 20*(c//2) + 4*rd; reg = 44
            else: row = 80*hg + 20*rd + 16; reg = 45
            a(f"s_add_u32 m0, s79, {self.P2_WO + io*1024}")
            a(f"s_add_u32 s61, s77, {row*1280}")
            a(f"buffer_load_dwordx4 v{reg}, {srd(SWO)}, s61 offen lds")
            self.vissue("wo")
        self.adv(79, 4096, 20)
    def p2c(self):
        a = self.a
        self.p24_ids(); self.c24_addr(); self.c24_rowaddr()
        XR = 220
        self.c24_addr_rm(16)
        for t in range(3):
            a(f"buffer_load_dwordx4 v[{XR+4*t}:{XR+4*t+3}], v{16+t}, {srd(SX)}, 0 offen")
        self.c24_addr_panel(16)
        a("v_and_b32 v232, 1, v13\nv_lshl_add_u32 v232, v232, 4, v12\nv_add_u32 v233, 32, v12\nv_lshrrev_b32 v11, 1, v13\nv_lshlrev_b32 v11, 2, v11")
        a(f"v_mov_b32 v15, {OOB}")
        for r in (232, 233):
            a(f"v_cmp_gt_u32 vcc, s69, v{r}\nv_add_u32 v{r}, s68, v{r}\nv_lshl_add_u32 v{r}, v{r}, 3, v11\nv_cndmask_b32 v{r}, v15, v{r}, vcc")
        a(f"s_lshl_b32 s60, s67, 1\ns_add_u32 s60, s60, s71\ns_lshl_b32 s60, s60, 14\ns_add_u32 s60, s60, {ST_BASE}")
        a("s_mul_i32 s74, s56, 30\ns_add_u32 s74, s74, s57")
        ACC = 100
        self.c24_loop(10, lambda s: self.P2_WO + s*8192, lambda s: self.P2_RING + (s % self.P2_NS)*12288, ACC, 7)
        a("s_waitcnt vmcnt(0)")
        H = self.HREG
        a(f"s_mov_b32 s61, {H_BASE}")
        a("v_mov_b32 v30, 0x3f803f80")
        for t in range(6): a(f"v_mov_b32 v{20+t}, 0")
        a("s_mov_b64 vcc, s[86:87]")
        self.c24_sum(ACC, XR, H, 32, lambda t: self.hst(f"buffer_store_dwordx4 v[{H+4*t}:{H+4*t+3}], v{16+t}, {srd(SWS)}, s61 offen"))
        for d in range(4):
            for t in range(3):
                a(f"v_dot2c_f32_bf16 v{20+2*t}, v{H+4*t+d}, v30\nv_dot2c_f32_bf16 v{21+2*t}, v{H+4*t+d}, v{H+4*t+d}")
        for t in range(3): a(f"v_permlane32_swap_b32 v{20+2*t}, v{21+2*t}")
        for t in range(3): a(f"v_add_f32 v{20+2*t}, v{20+2*t}, v{21+2*t}")
        a("v_mov_b32 v25, v24")
        a("v_permlane16_swap_b32 v20, v22\nv_permlane16_swap_b32 v24, v25")
        a("v_add_f32 v20, v20, v22\nv_add_f32 v24, v24, v25")
        self.hst(f"buffer_store_dword v20, v232, {srd(SWS)}, s60 offen")
        self.hst(f"buffer_store_dword v24, v233, {srd(SWS)}, s60 offen")
        self.ts(19)
        self.signal(1, "s23")
        self.ts(20)
    def p2l(self):
        a = self.a
        self.panel96_addr(11)
        a("s_mul_i32 s65, s23, 3072")
        a(f"s_mul_i32 s75, s67, {8*CS}" if self.o["rot2"] else "s_mov_b32 s75, 0")
        a("v_lshlrev_b32 v14, 4, v1\ns_lshl_b32 s3, s23, 10\nv_add_u32 v19, s3, v14\nv_add_u32 v14, s64, v14")
        a("s_lshl_b32 s61, s56, 2\ns_add_u32 s61, s61, s66\ns_lshl_b32 s61, s61, 3\ns_mov_b32 s60, 32")
        self.wait_flags(0, True)
        self.ts(7)
        NS = self.P2_NS
        iss = lambda s: self.panel96_issue(11, O_BASE, 10, self.P2_RING + (s % NS)*12288, ("o", s))
        for s in range(NS): iss(s)
        self.vwait([("o", 0)])
        for s in range(10):
            self.bar()
            if s >= 2 and s + NS - 2 <= 9: iss(s + NS - 2)
            if s >= self.o["c0"]: self.bg_issue(self.o["nC"])
            if s + 1 <= 9: self.vwait([("o", s + 1)])
        self.bar()
        a("s_cmp_ge_u32 s57, 28\ns_cbranch_scc1 Lskip3l")
        self.bg_skip = [x for x in self.bg if x[0] == "w2"]

    def p3w(self, s): return A16(s % 3)
    def p3h(self, s): return A16([3, 4, 5, 9, 6, 7, 8][s % 7])
    P3_ST = 159744
    def p3_ids(self):
        a = self.a
        a("s_cmp_ge_u32 s57, 14\ns_cselect_b32 s3, 1, 0\ns_cselect_b32 s73, 14, 0\ns_sub_u32 s73, s57, s73")
        a("s_lshl_b32 s72, s56, 1\ns_add_u32 s72, s72, s3\ns_lshl_b32 s72, s72, 7")
    def p3_w_setup(self):
        a = self.a
        self.p3_ids()
        a("v_lshrrev_b32 v2, 4, v1\nv_lshlrev_b32 v3, 2, v2\nv_and_b32 v4, 15, v1\nv_xor_b32 v4, v4, v3")
        a("v_mul_u32_u24 v150, 3456, v2\nv_lshl_add_u32 v150, v4, 4, v150")
        a(f"s_lshl_b32 s3, s73, 8\ns_mul_i32 s61, s23, {16*3456}\ns_add_u32 s3, s3, s61")
        a(f"s_cmp_ge_u32 s57, 28\ns_cselect_b32 s3, {OOB}, s3\nv_add_u32 v150, s3, v150")
        a("s_lshl_b32 s64, s23, 12")
        if self.o["rot3"]:
            a("s_mul_i32 s77, s73, 183\ns_lshr_b32 s77, s77, 8\ns_cmp_ge_u32 s57, 14\ns_cselect_b32 s3, 5, 0\ns_add_u32 s77, s77, s3")
            a("s_sub_u32 s3, s77, 10\ns_cmp_ge_u32 s77, 10\ns_cselect_b32 s77, s3, s77")
        else: a("s_mov_b32 s77, 0")
        a(f"s_mul_i32 s76, s77, {64*3456}")
    def p3c(self):
        a = self.a
        Lsig = self.lab("P3sig")
        a("s_cmp_ge_u32 s57, 28\ns_cbranch_scc1 Lskip3c")
        self.p3_ids()
        a("v_lshrrev_b32 v11, 2, v1\nv_and_b32 v11, 3, v11")
        a("v_lshrrev_b32 v2, 5, v1\nv_lshl_add_u32 v2, v2, 3, v11\nv_lshlrev_b32 v2, 8, v2")
        a("v_lshrrev_b32 v3, 4, v1\nv_and_b32 v3, 1, v3\nv_lshl_add_u32 v2, v3, 5, v2\nv_and_b32 v3, 3, v1\nv_lshl_add_u32 v2, v3, 3, v2")
        a("s_lshl_b32 s3, s71, 1\nv_xor_b32 v11, s3, v11")
        a("v_xor_b32 v3, 1, v11\nv_lshl_add_u32 v5, v3, 6, v2\nv_lshl_add_u32 v2, v11, 6, v2")
        self.mk3(2); self.mk3(5)
        a("v_lshrrev_b32 v8, 5, v1\nv_lshlrev_b32 v8, 11, v8\nv_and_b32 v11, 31, v1\nv_lshl_add_u32 v8, v11, 4, v8")
        a("s_lshl_b32 s3, s70, 10\nv_add_u32 v8, s3, v8")
        self.mk3(8)
        a("v_lshrrev_b32 v15, 5, v1\nv_lshlrev_b32 v12, 4, v15")
        a(f"s_lshl_b32 s62, s71, 8\ns_lshl_b32 s3, s73, 9\ns_add_u32 s62, s62, s3\ns_add_u32 s62, s62, {CSUM}")
        a("v_lshlrev_b32 v13, 3, v11")
        a(f"s_lshl_b32 s3, s70, 9\ns_add_u32 s3, s3, {self.P3_ST}\nv_add_u32 v13, s3, v13")
        a(f"v_mul_u32_u24 v14, {CS}, v15\nv_lshl_add_u32 v14, v11, 4, v14")
        a("s_lshl_b32 s77, s73, 1\ns_add_u32 s77, s77, s71")
        a(f"s_mul_i32 s60, s77, {8*CS}\ns_lshl_b32 s3, s70, 6\ns_add_u32 s3, s3, s72\ns_lshl_b32 s3, s3, 4\ns_add_u32 s60, s60, s3\ns_add_u32 s60, s60, {G_BASE}")
        a("s_mul_i32 s74, s56, 28\ns_add_u32 s74, s74, s57")
        a("v_mov_b32 v16, 1.0")
        ACC = 100; FB = [20, 36]; CSR = 52; STR = 84
        def reads(u):
            s, ks = divmod(u, 4); f = FB[u % 2]; r = []
            for t in range(2):
                r.append(f"ds_read_b128 v[{f+8+4*t}:{f+11+4*t}], {self.ad(8, self.p3h(s) + ks*4096 + t*512)}")
            for j in range(2):
                for rd in range(2):
                    r.append(f"ds_read_b64_tr_b16 v[{f+4*j+2*rd}:{f+4*j+2*rd+1}], {self.ad(2+3*j, self.p3w(s) + ks*4096 + rd*1024)}")
            return [r[0], r[2], r[3], r[1], r[4], r[5]]
        def mfmas(u):
            f = FB[u % 2]; r = []
            for j in range(2):
                for t in range(2):
                    c = ACC + (j*2+t)*16
                    cs = "0" if u == 0 else f"v[{c}:{c+15}]"
                    r.append(f"v_mfma_f32_32x32x16_bf16 v[{c}:{c+15}], v[{f+4*j}:{f+4*j+3}], v[{f+8+4*t}:{f+11+4*t}], {cs}")
            return r
        for u in range(40):
            rd = reads(u); mf = mfmas(u-1) if u else []
            if u % 4 == 0:
                if mf: a(mf.pop(0))
                self.bar()
            if u == 0: self.ts(10)
            if u == 20: self.ts(23)
            if u == 17:
                for j in range(2):
                    for q in range(4): a(f"buffer_load_dwordx4 v[{CSR+16*j+4*q}:{CSR+16*j+4*q+3}], v12, {srd(SWS)}, s62 offen offset:{128*j + 32*q} sc1")
            i = 0
            for m in mf:
                if u % 4 == 0:
                    for x in rd[i:i+3]: a(x)
                    i += 3
                    a(m)
                else:
                    a(m)
                    for x in rd[i:i+3]: a(x)
                    i += 3
            for x in rd[i:]: a(x)
            a("s_waitcnt lgkmcnt(0)")
        mf = mfmas(39)
        a(mf.pop(0))
        self.bar()
        self.ts(11)
        for t in range(2): a(f"ds_read_b64 v[{STR+4*t}:{STR+4*t+1}], v13 offset:{256*t}")
        for m in mf: a(m)
        a("s_waitcnt vmcnt(0) lgkmcnt(0)\ns_mov_b64 vcc, s[86:87]")
        a(f"s_cmp_ge_u32 s77, 27\ns_cbranch_scc1 {Lsig}")
        for t in range(2):
            a(f"v_mul_f32 v{STR+4*t+2}, -1.4426950408889634, v{STR+4*t}")
        T = 20
        for j in range(2):
            for t in range(2):
                c = ACC + (j*2+t)*16
                A_ = STR + 4*t
                for qq in range(0, 4, 2):
                    o = T + 16 + 4*((qq//2) % 2)
                    for p in range(4):
                        x = c + 4*qq + 2*p; k = CSR + 16*j + 4*qq + 2*p
                        a(f"v_pk_fma_f32 v[{x}:{x+1}], v[{k}:{k+1}], v[{A_}:{A_+1}], v[{x}:{x+1}] op_sel:[0,1,0] op_sel_hi:[1,1,1] neg_lo:[0,1,0] neg_hi:[0,1,0]")
                    for p in range(4):
                        x = c + 4*qq + 2*p
                        a(f"v_pk_mul_f32 v[{T+2*p}:{T+2*p+1}], v[{x}:{x+1}], v[{A_+2}:{A_+3}] op_sel_hi:[1,0]")
                    for p in range(8): a(f"v_exp_f32 v{T+p}, v{T+p}")
                    for p in range(4):
                        x = c + 4*qq + 2*p
                        a(f"v_pk_mul_f32 v[{x}:{x+1}], v[{x}:{x+1}], v[{A_}:{A_+1}] op_sel_hi:[1,0]")
                    for p in range(4):
                        a(f"v_pk_add_f32 v[{T+2*p}:{T+2*p+1}], v[{T+2*p}:{T+2*p+1}], v[16:17] op_sel_hi:[1,0]")
                    for p in range(8): a(f"v_rcp_f32 v{T+p}, v{T+p}")
                    for p in range(4):
                        x = c + 4*qq + 2*p
                        a(f"v_pk_mul_f32 v[{x}:{x+1}], v[{x}:{x+1}], v[{T+2*p}:{T+2*p+1}]")
                    for p in range(4):
                        x = c + 4*qq + 2*p
                        a(f"v_cvt_pk_bf16_f32 v{o+p}, v{x}, v{x+1}")
                    a(f"v_permlane32_swap_b32 v{o}, v{o+2}\nv_permlane32_swap_b32 v{o+1}, v{o+3}")
                    a(f"s_add_u32 s61, s60, {(4*j + qq)*CS + 512*t}")
                    self.hst(f"buffer_store_dwordx4 v[{o}:{o+3}], v14, {srd(SWS)}, s61 offen")
        a(f"{Lsig}:")
        self.ts(21)
        self.signal(2, "s23")
        self.ts(22)
        a("Lskip3c:")
    def p3l(self):
        a = self.a
        self.bg_issue(sum(1 for x in self.bg if x[0] == "w1" and x[1] < 3), True)
        for s in range(3): self.w1_flush(s)
        a(f"s_mul_i32 s3, s23, {2*CS}\ns_lshl_b32 s61, s72, 4\ns_add_u32 s3, s3, s61\nv_lshl_add_u32 v18, v1, 4, s3")
        a(f"s_mul_i32 s75, s77, {8*CS}")
        a("v_and_b32 v2, 31, v1\nv_lshrrev_b32 v3, 5, v1\nv_lshlrev_b32 v3, 14, v3\nv_lshl_add_u32 v10, v2, 3, v3")
        a("s_lshl_b32 s3, s23, 5\ns_add_u32 s3, s3, s72\ns_lshl_b32 s3, s3, 3\nv_add_u32 v10, s3, v10")
        a("s_waitcnt lgkmcnt(0)")
        self.w1_free(2)
        self.bg_issue(self.o["nD"])
        def hiss(s):
            for n in range(4):
                a(f"s_add_u32 m0, s64, {self.p3h(s) + n*1024}")
                a(f"s_add_u32 s61, s75, {H_BASE + (n//2)*CS + (n % 2)*1024}")
                a(f"buffer_load_dwordx4 v18, {srd(SWS)}, s61 offen {'sc1' if self.o['ldsc'] else ''} lds")
                self.vissue(("h", s))
            self.adv(75, 8*CS, 10)
        a("s_cmp_ge_u32 s57, 14\ns_cselect_b32 s3, 10, 0\ns_mul_i32 s61, s56, 30\ns_add_u32 s61, s61, s3\ns_mov_b32 s60, 21")
        a(f"s_add_u32 s62, s73, 240\ns_sub_u32 s62, s62, s61\ns_mul_i32 s62, s62, {self.FS}")
        self.wait_flags(1, False, "v_writelane_b32 v2, s62, 20")
        self.ts(10)
        HL = self.o["hla"]; SR = 152
        hiss(0); hiss(1)
        self.vwait([("h", 0)])
        nh = 2
        for s in range(10):
            self.bar()
            if s == 0:
                for n in range(10):
                    a(f"s_mov_b32 s61, {ST_BASE + n*32768}")
                    a(f"buffer_load_dwordx2 v[{SR+2*n}:{SR+1+2*n}], v10, {srd(SWS)}, s61 offen sc1")
                    self.vissue("st")
            if s >= 1 and s + 2 <= 9:
                self.bg_issue(sum(1 for x in self.bg if x[0] == "w1" and x[1] <= s + 2), True)
                self.w1_flush(s + 2)
            if s >= 2 and s + 1 <= 9: self.w1_free(s + 1)
            for _ in range(self.o["hper"]):
                if nh <= 9 and nh <= s + HL - 1 and nh <= max(s, 1) + 5 + (1 if s >= 1 else 0) and (nh < 7 or nh - 7 < s):
                    hiss(nh); nh += 1
            if s >= self.o["e0"]: self.bg_issue(self.o["nE"])
            if s == 2:
                self.vwait("st")
                for n in range(1, 10): a(f"v_pk_add_f32 v[{SR}:{SR+1}], v[{SR}:{SR+1}], v[{SR+2*n}:{SR+1+2*n}]")
                a(f"v_mov_b32 v248, v{SR}\nv_mov_b32 v249, v{SR+1}")
                a(f"v_permlane32_swap_b32 v{SR}, v248\nv_permlane32_swap_b32 v{SR+1}, v249")
                a(f"v_add_f32 v{SR}, v{SR}, v248\nv_add_f32 v{SR+1}, v{SR+1}, v249")
                a(f"v_mul_f32 v249, {1.0/640!r}, v{SR}\nv_mul_f32 v{SR+1}, {1.0/640!r}, v{SR+1}")
                a(f"v_fma_f32 v{SR+1}, -v249, v249, v{SR+1}\nv_max_f32 v{SR+1}, 0, v{SR+1}\nv_add_f32 v{SR+1}, 1e-5, v{SR+1}\nv_rsq_f32 v248, v{SR+1}")
                self.w1_free(0); self.w1_free(1)
            if s == 4:
                a(f"v_and_b32 v2, 31, v1\nv_lshlrev_b32 v2, 3, v2\ns_lshl_b32 s3, s23, 8\ns_add_u32 s3, s3, {self.P3_ST}\nv_add_u32 v2, s3, v2")
                a("ds_write_b64 v2, v[248:249]")
            a("s_waitcnt lgkmcnt(0)")
            if s + 1 <= 9:
                assert nh > s + 1
                self.vwait([("h", s + 1)])
        self.bar()
        self.bg_issue(999, True)
        a("s_branch Lp4l")
        a("Lskip3l:")
        self.bg = self.bg_skip; self.busy = set()
        self.bg_issue(999, True)
        a("Lp4l:")
        a("s_waitcnt vmcnt(0)")
        self.vreset()

    P4_G = 32768
    def p4_w_setup(self):
        a = self.a
        self.w64_addr(17, 8)
        a("s_and_b32 s3, s23, 1\ns_lshl_b32 s3, s3, 4\ns_lshr_b32 s61, s23, 1\ns_lshl_b32 s61, s61, 2\ns_add_u32 s3, s3, s61\ns_mul_i32 s3, s3, 1280")
        a(f"s_cmp_ge_u32 s57, 30\ns_cselect_b32 s3, {OOB}, s3\nv_add_u32 v17, s3, v17")
        if self.o["rot4"]:
            a("s_mul_i32 s82, s67, 27*205\ns_lshr_b32 s82, s82, 11\ns_mul_i32 s3, s66, 9\ns_add_u32 s82, s82, s3")
            a("s_sub_u32 s3, s82, 27\ns_cmp_ge_u32 s82, 27\ns_cselect_b32 s82, s3, s82")
        else: a("s_mov_b32 s82, 0")
        a(f"s_mul_i32 s83, s82, {64*1280}")
    def p4c(self):
        a = self.a
        self.c24_addr(); self.c24_rowaddr()
        H = self.HREG
        self.c24_addr_rm(16)
        ACC = 100
        self.c24_loop(27, lambda s: (s % 4)*8192, lambda s: self.P4_G + (s % 10)*12288, ACC, 12)
        self.c24_sum(ACC, H, 40, 20, lambda t: a(f"buffer_store_dwordx4 v[{40+4*t}:{43+4*t}], v{16+t}, {srd(SOUT)}, 0 offen" + ["", " sc1", " nt", " sc0 sc1"][self.o["osc"]]))
        self.fin()
    def p4l(self):
        a = self.a
        for u in range(4): self.w2_flush(u)
        a(f"s_mul_i32 s75, s82, {8*CS}")
        a("s_cmp_eq_u32 s66, 2\ns_cselect_b32 s3, 14, 0\ns_mul_i32 s61, s56, 28\ns_add_u32 s61, s61, s3")
        a("s_cmp_eq_u32 s66, 1\ns_cselect_b32 s60, 28, 14")
        self.wait_flags(2, False)
        self.ts(12)
        GN = self.o["gn"]
        gis = lambda s: self.panel96_issue(11, G_BASE, 27, self.P4_G + (s % 10)*12288, ("g", s))
        for s in range(3): gis(s)
        ng = 3
        self.vwait([("g", 0)])
        a("s_waitcnt lgkmcnt(0)")
        for s in range(27):
            self.bar()
            fl = s >= 2 and s + 2 <= 26
            if fl and not self.o["ord4"]: self.w2_flush(s + 2)
            for _ in range(self.o["gper"]):
                if ng <= 26 and ng <= s + GN - 2 + (2 if s < 2 else 0) and (ng < 10 or ng - 10 <= s - 2):
                    gis(ng); ng += 1
            if fl and self.o["ord4"]: self.w2_flush(s + 2)
            if s + 1 <= 26: self.vwait([("g", s + 1)])
            a(f"s_waitcnt lgkmcnt({8 // self.o['wsz'] if fl and self.o['lazy'] else 0})")
        self.bar()
        self.fin()

    def build(self):
        a = self.a
        self.prologue()
        a("s_cmp_ge_u32 s22, 4\ns_cbranch_scc0 Lcomp")
        if self.o["lprio"]: a(f"s_setprio {self.o['lprio']}")
        self.p1l(); self.p2l(); self.p3l(); self.p4l()
        a("Lcomp:")
        if self.o["prio"]: a(f"s_setprio {self.o['prio']}")
        self.tprev = None; self.tn = 0
        self.p1c(); self.p2c(); self.p3c(); self.p4c()
        self.csum()
        for x in self.ool: a(x)
        a("Lend:\ns_endpgm")
    def text(self):
        L, n = hazard.fix(self.L)
        nm = self.name
        return "\n".join([f".globl {nm}", ".p2align 8", f".type {nm},@function", f"{nm}:"] + L) + "\n"
    def desc(self):
        return "\n".join([".p2align 6", f".amdhsa_kernel {self.name}",
            "  .amdhsa_next_free_vgpr 256", "  .amdhsa_next_free_sgpr 102", "  .amdhsa_accum_offset 256",
            "  .amdhsa_group_segment_fixed_size 0", "  .amdhsa_kernarg_size 72", "  .amdhsa_user_sgpr_count 2",
            "  .amdhsa_user_sgpr_kernarg_segment_ptr 1", "  .amdhsa_system_sgpr_workgroup_id_x 1",
            "  .amdhsa_float_denorm_mode_32 3",
            ".end_amdhsa_kernel"]) + "\n"

def header():
    ref = open(f"cdna_kernels/{NAME}.s.ref").read().split("\n")
    return [l for l in ref if l.startswith(";") and "@launch" not in l]
def build(dbg=False, opt=None):
    g = G(NAME + "_kernel", dbg, opt); g.build()
    out = header()
    out.append(f"; @launch grid=(256,1,1) block=(512,1,1) lds={LDS}")
    out += ['.amdgcn_target "amdgcn-amd-amdhsa--gfx950"', ".text", g.text(), '.section .rodata,"a"', g.desc()]
    return "\n".join(out)
if __name__ == "__main__":
    path = sys.argv[1]; dbg = False; opt = {}
    for x in sys.argv[2:]:
        if x == "dbg": dbg = True
        else:
            k, v = x.split("="); assert k in OPT, k; opt[k] = int(v)
    txt = build(dbg, opt)
    open(path, "w").write(txt)
    import subprocess
    r = subprocess.run(["clang", "-x", "assembler", "-target", "amdgcn-amd-amdhsa", "-mcpu=gfx950", "-c", path, "-o", "chk.o"], capture_output=True, text=True)
    print(r.stderr[:3000] if r.returncode else "assembled ok", len(txt))
```

```python
import sys
sys.path.insert(0, "dev")
import hazard

NAME = "sequential_preLN__sliding_local_dilated__dense_activation_silu__prompt"
S, D, F = 2048, 640, 1728
CS = 256 * 16
GS = 0x200000
O_BASE = 0
H_BASE = 80 * CS
ST_BASE = 160 * CS
G_BASE = 0xB0000
FL_BASE = 0x190000
TS_BASE = 0x1400000
WS_SIZE = 0x1800000
TS2 = 0x1500000
OOB = 0x80000000
LDS = 163840
SX, SWQ, SWO, SW1, SW2, SOUT, SDBG, SWS, SWG = 24, 28, 32, 36, 40, 44, 48, 52, 92
def srd(n): return f"s[{n}:{n+3}]"
A16 = lambda k: 16384 * k

CSUM = 0x194000
OPT = dict(la1=3, rot1=1, rot2=1, rot3=1, rot4=1, fast=1, nA=8, nB=8, nC=2, c0=4, wo0=16, prio=0, lprio=0, ldsc=1, pen=0, osc=1, amp=-1, ampw=37, wb=0, tlb=0, nv=6, w2e=1, h0=2, g0=3, o0=3, per=2, gn=5, ws0=2, wper=2, hfl=0, pt=0)

class G:
    NL = 0
    def __init__(self, name, dbg=False, opt=None):
        self.name = name; self.L = []; self.dbg = dbg
        self.o = dict(OPT); self.o.update(opt or {})
        self.GN = self.o["gn"]; self.NW = 14 if self.GN == 4 else 12
        self.vm = []; self.tprev = None; self.tn = 0; self.ool = []
    def a(self, s):
        for line in s.split("\n"):
            line = line.strip()
            if line: self.L.append(line if line.endswith(":") else "    " + line)
    def lab(self, b="L"):
        G.NL += 1; return f"{b}_{G.NL}"
    def vissue(self, tag): self.vm.append(tag)
    def vwait(self, tags):
        if not isinstance(tags, (list, set)): tags = [tags]
        last = -1
        for i, t in enumerate(self.vm):
            if t in tags: last = i
        if last < 0: return
        n = len(self.vm) - 1 - last
        assert n <= 63, n
        self.a(f"s_waitcnt vmcnt({n})")
        self.vm = self.vm[last + 1:]
    def vreset(self): self.vm = []
    def tc(self, i):
        if self.dbg: self.a(f"s_memtime s[80:81]\ns_waitcnt lgkmcnt(0)\nv_writelane_b32 v255, s80, {i}")
    def ts(self, i):
        if self.dbg: self.a(f"s_memrealtime s[80:81]\ns_waitcnt lgkmcnt(0)\nv_writelane_b32 v255, s80, {i}")
    def bar(self):
        if self.dbg:
            if self.tprev is not None: self.a(f"v_writelane_b32 v{253 + self.tprev // 64}, s84, {self.tprev % 64}")
            self.a("s_memtime s[84:85]")
            self.tprev = self.tn; self.tn += 1
        self.a("s_barrier")
    def prologue(self):
        a = self.a
        a("s_load_dwordx16 s[4:19], s[0:1], 0")
        a("s_load_dwordx2 s[20:21], s[0:1], 64")
        a("s_cmp_ge_u32 s2, 256")
        a("s_cbranch_scc1 Lend")
        a("v_and_b32 v1, 63, v0")
        a("v_lshrrev_b32 v2, 6, v0")
        a("v_readfirstlane_b32 s22, v2")
        a("s_and_b32 s56, s2, 7")
        a("s_lshr_b32 s57, s2, 3")
        a("s_and_b32 s23, s22, 3")
        a("s_and_b32 s58, s57, 7\ns_lshl_b32 s59, s56, 2\ns_lshr_b32 s3, s57, 3\ns_add_u32 s59, s59, s3")
        if self.dbg: a("v_mov_b32 v255, 0\nv_mov_b32 v254, 0\nv_mov_b32 v253, 0")
        self.ts(0); self.tc(16)
    def srds(self, which):
        self.a("s_waitcnt lgkmcnt(0)")
        T = {SX: (4, S*D*2), SWQ: (6, D*3*D*2), SWO: (8, D*D*2), SW1: (12, D*F*2), SW2: (14, F*D*2),
             SOUT: (16, S*D*2), SDBG: (18, 256), SWG: (20, WS_SIZE)}
        for d in which:
            if d == SWS:
                self.a(f"s_lshl_b32 s3, s56, 21\ns_add_u32 s{d}, s20, s3\ns_addc_u32 s{d+1}, s21, 0\ns_mov_b32 s{d+2}, {GS}\ns_mov_b32 s{d+3}, 0x00020000")
                continue
            b, n = T[d]
            self.a(f"s_mov_b32 s{d}, s{b}\ns_mov_b32 s{d+1}, s{b+1}\ns_mov_b32 s{d+2}, {n}\ns_mov_b32 s{d+3}, 0x00020000")
    def fin(self):
        if self.dbg:
            self.a("s_waitcnt vmcnt(0)")
            self.ts(15); self.tc(17)
            if self.o["amp"] >= 0:
                x, y = divmod(self.o["amp"], 100)
                L1 = self.lab("amp"); L2 = self.lab("ampl")
                self.a(f"s_cmp_lg_u32 s2, {self.o['ampw']}\ns_cbranch_scc1 {L1}\ns_cmp_lg_u32 s22, 0\ns_cbranch_scc1 {L1}")
                self.a(f"v_readlane_b32 s60, v255, {x}\nv_readlane_b32 s61, v255, {y}\ns_sub_u32 s60, s61, s60\ns_min_u32 s60, s60, 8000\ns_lshl_b32 s60, s60, 3\nv_readlane_b32 s61, v255, 15\ns_add_u32 s60, s60, s61")
                self.a(f"s_mov_b32 s62, 0x100000\n{L2}:\ns_memrealtime s[80:81]\ns_waitcnt lgkmcnt(0)\ns_sub_u32 s62, s62, 1\ns_cbranch_scc1 {L1}\ns_sub_u32 s61, s80, s60\ns_cmp_lt_i32 s61, 0\ns_cbranch_scc1 {L2}\n{L1}:")
            self.srds([SWG])
            self.a(f"s_lshl_b32 s80, s2, 3\ns_add_u32 s80, s80, s22\ns_lshl_b32 s80, s80, 7\ns_add_u32 s80, s80, {TS_BASE}")
            self.a(f"v_writelane_b32 v{253 + self.tprev // 64}, s84, {self.tprev % 64}")
            self.a(f"v_lshlrev_b32 v2, 2, v1\ns_lshl_b32 s84, s2, 3\ns_add_u32 s84, s84, s22\ns_lshl_b32 s84, s84, 9\ns_add_u32 s84, s84, {TS2}")
            self.a(f"buffer_store_dword v253, v2, {srd(SWG)}, s84 offen\nbuffer_store_dword v254, v2, {srd(SWG)}, s84 offen offset:256")
            self.a(f"v_lshlrev_b32 v2, 2, v1\ns_mov_b32 exec_hi, 0\nbuffer_store_dword v255, v2, {srd(SWG)}, s80 offen")
        self.a("s_endpgm")

    FS = 64
    def flag_clear(self):
        a = self.a
        Lk = self.lab("fc")
        a("s_getreg_b32 s3, hwreg(HW_REG_XCC_ID, 0, 4)\ns_mul_i32 s88, s3, s3\ns_lshl_b32 s88, s88, 10\ns_add_u32 s88, s88, s3\ns_add_u32 s88, s88, 0x800000")
        a(f"s_cmp_lg_u32 s22, 0\ns_cbranch_scc1 {Lk}")
        a(f"v_lshrrev_b32 v2, 3, v1\nv_lshlrev_b32 v2, 11, v2\nv_and_b32 v3, 7, v1\nv_lshl_add_u32 v2, v3, 2, v2")
        a(f"v_mov_b32 v3, 0\ns_mul_i32 s61, s57, {self.FS}\ns_add_u32 s61, s61, {FL_BASE}")
        a(f"s_mov_b32 exec_hi, 0xffff\nbuffer_store_dword v3, v2, {srd(SWS)}, s61 offen sc1\ns_mov_b64 exec, -1")
        a("s_lshl_b32 s61, s56, 5\nv_mov_b32 v3, s88")
        a("s_waitcnt vmcnt(0)")
        a(f"s_mov_b64 exec, 1\nbuffer_atomic_add v3, off, {srd(SDBG)}, s61\ns_mov_b64 exec, -1")
        a(f"{Lk}:")
    def count_check(self):
        a = self.a
        Lk = self.lab("cp"); Lp = self.lab("cpl")
        a("s_mov_b64 exec, 255\ns_mov_b32 s60, 0x100000\ns_mov_b32 s61, 0x10000000")
        a(f"{Lp}:")
        a(f"s_waitcnt vmcnt(0)\nv_cmp_gt_u32 vcc, s61, v96\ns_cbranch_vccz {Lk}")
        a(f"buffer_load_dword v96, v97, {srd(SDBG)}, 0 offen sc1")
        a(f"s_sub_u32 s60, s60, 1\ns_cbranch_scc0 {Lp}")
        a(f"{Lk}:")
        a("s_mov_b64 exec, -1")
        a("s_waitcnt vmcnt(0)\nv_readlane_b32 s3, v96, s56\ns_lshl_b32 s88, s88, 5\ns_cmp_eq_u32 s3, s88\ns_cselect_b64 s[86:87], -1, 0")
        if not self.o["fast"]: a("s_mov_b64 s[86:87], 0")
        if self.o["pen"]:
            Lz = self.lab("pen")
            a(f"s_cmp_lg_u32 s86, 0\ns_cbranch_scc1 {Lz}")
            for _ in range(6): a("s_sleep 127")
            a(f"{Lz}:")
    def hst(self, txt, local=True):
        if not local:
            self.a(txt + " sc1"); return
        L1 = self.lab("slow"); L2 = self.lab("back")
        self.a(f"s_cbranch_vccz {L1}\n{txt}{['', ' nt', ' sc0', ' sc0 nt'][self.o['hfl']]}\n{L2}:")
        self.ool.append(f"{L1}:\ns_nop 7\n{txt} sc1\ns_branch {L2}")
    def signal(self, ph, wreg, local=True):
        a = self.a
        a(f"s_mul_i32 s61, s57, {self.FS}\ns_lshl_b32 s3, {wreg}, 2\ns_add_u32 s61, s61, s3\ns_add_u32 s61, s61, {FL_BASE + ph*64*self.FS}\nv_mov_b32 v3, 1")
        a("s_waitcnt vmcnt(0)")
        a("s_mov_b64 exec, 1")
        self.hst(f"buffer_store_dword v3, off, {srd(SWS)}, s61", local)
        a("s_mov_b64 exec, -1")
    def wait_flags(self, ph, two, extra=None):
        a = self.a
        a(f"s_mul_i32 s61, s61, {self.FS}\ns_add_u32 s61, s61, {FL_BASE + ph*64*self.FS}")
        Lp = self.lab("poll"); Lq = self.lab("pollx")
        if two: a(f"v_lshrrev_b32 v2, 1, v1\nv_mul_u32_u24 v2, {self.FS}, v2\nv_and_b32 v3, 1, v1\nv_lshl_add_u32 v2, v3, 4, v2")
        else: a(f"v_mul_u32_u24 v2, {self.FS}, v1")
        if extra: a(extra)
        a("s_bfm_b64 exec, s60, 0\ns_mov_b32 s60, 0x100000")
        a(f"{Lp}:")
        a(f"buffer_load_dwordx4 v[4:7], v2, {srd(SWS)}, s61 offen sc1")
        a(f"s_sub_u32 s60, s60, 1\ns_cbranch_scc1 {Lq}")
        a("s_waitcnt vmcnt(0)")
        a("v_and_b32 v4, v4, v5\nv_and_b32 v6, v6, v7\nv_and_b32 v4, v4, v6")
        a(f"v_cmp_ne_u32 vcc, 1, v4\ns_cbranch_vccnz {Lp}")
        a(f"{Lq}:")
        a("s_waitcnt vmcnt(0)\ns_mov_b64 exec, -1")
        self.vreset()
    def adv(self, sreg, stride, n):
        self.a(f"s_add_u32 s{sreg}, s{sreg}, {stride}\ns_cmp_eq_u32 s{sreg}, {stride*n}\ns_cselect_b32 s{sreg}, 0, s{sreg}")
    def mk3(self, r):
        self.a(f"v_add_u32 v{r+1}, 0x10000, v{r}\nv_add_u32 v{r+2}, 0x20000, v{r}")
    def ad(self, r, off):
        return f"v{r + (off >> 16)} offset:{off & 0xffff}"

    P1_SLOT = 40960; P1_W = 10240; P1_WS = 15360; P1_ST = 0; P1_QKV = 1024; P1_QS = 488
    def p1x(self, s): return (s % 4) * self.P1_SLOT
    def p1w(self, u): return ((u // 2) % 4) * self.P1_SLOT + self.P1_W + (u % 2) * self.P1_WS
    def p1c(self):
        a = self.a
        a(f"v_lshrrev_b32 v2, 3, v1\nv_and_b32 v2, 3, v2\nv_mul_u32_u24 v2, {self.P1_SLOT}, v2\nv_and_b32 v3, 7, v1\nv_lshl_add_u32 v2, v3, 4, v2")
        for r in range(4): a(f"v_mov_b32 v{20+r}, 0x3f803f80")
        a("ds_write_b128 v2, v[20:23]")
        a("v_lshrrev_b32 v10, 2, v1\nv_mul_u32_u24 v10, 480, v10\nv_and_b32 v3, 3, v1\nv_lshl_add_u32 v10, v3, 3, v10")
        a("s_lshl_b32 s3, s23, 7\nv_add_u32 v10, s3, v10")
        a("v_and_b32 v3, 15, v1\nv_lshrrev_b32 v13, 1, v3\nv_lshrrev_b32 v4, 4, v1\nv_xor_b32 v4, v4, v13\nv_lshlrev_b32 v4, 4, v4\nv_lshl_add_u32 v4, v3, 7, v4")
        a("v_xor_b32 v7, 64, v4")
        self.mk3(4); self.mk3(7); self.mk3(10)
        self.srds([SWS, SDBG, SX, SWO, SW1, SW2, SOUT])
        self.flag_clear()
        ACC = 100; FB = [20, 56]
        a("s_waitcnt lgkmcnt(0)")
        self.ts(1)
        def reads(u):
            fb = FB[u % 2]; r = []
            for t in range(5):
                r.append(f"ds_read_b128 v[{fb+16+4*t}:{fb+19+4*t}], {self.ad(4 + 3*(u % 2), self.p1x(u//2) + 2048*t)}")
            for j in range(4):
                for rd in range(2):
                    r.append(f"ds_read_b64_tr_b16 v[{fb+4*j+2*rd}:{fb+4*j+2*rd+1}], {self.ad(10, self.p1w(u) + 32*j + 7680*rd)}")
            return r
        def mfmas(u):
            fb = FB[u % 2]; r = []
            for j in range(4):
                for t in range(5):
                    c = ACC + (j*5+t)*4
                    cs = "0" if u == 0 else f"v[{c}:{c+3}]"
                    r.append(f"v_mfma_f32_16x16x32_bf16 v[{c}:{c+3}], v[{fb+4*j}:{fb+4*j+3}], v[{fb+16+4*t}:{fb+19+4*t}], {cs}")
            return r
        for u in range(20):
            self.bar()
            if u == 0: self.ts(2)
            if u == 10: self.ts(3)
            if u == 12:
                a(f"v_lshlrev_b32 v97, 5, v1\nbuffer_load_dword v96, v97, {srd(SDBG)}, 0 offen sc1")
            rd = reads(u); mf = mfmas(u-1) if u else []
            for i in range(max(len(rd), len(mf))):
                if i < len(rd): a(rd[i])
                if i < len(mf): a(mf[i])
            a("s_waitcnt lgkmcnt(0)")
        STR = 20; CSR = 32
        a("v_and_b32 v3, 15, v1\nv_lshlrev_b32 v13, 3, v3")
        mf = mfmas(19)
        for m in mf[:14]: a(m)
        self.bar()
        self.ts(4)
        for t in range(5): a(f"ds_read_b64 v[{STR+2*t}:{STR+2*t+1}], v13 offset:{self.P1_ST + 128*t}")
        for m in mf[14:]: a(m)
        a(f"v_mul_u32_u24 v2, {self.P1_QS}, v3\nv_lshrrev_b32 v3, 4, v1\nv_lshl_add_u32 v2, v3, 3, v2")
        a(f"s_lshl_b32 s3, s23, 7\ns_add_u32 s3, s3, {self.P1_QKV}\nv_add_u32 v2, s3, v2")
        a("s_waitcnt lgkmcnt(0)")
        Lsk = self.lab("P1sk")
        for j in range(4):
            if j == 3:
                a(f"s_cmp_eq_u32 s23, 3\ns_cbranch_scc1 {Lsk}")
            for r in range(4): a(f"v_mov_b32_dpp v{CSR+4*j+r}, v{ACC+j*20+r} row_newbcast:0 row_mask:0xf bank_mask:0xf")
            for t in range(5):
                c = ACC + (j*5+t)*4
                for p in (0, 2):
                    a(f"v_pk_fma_f32 v[{c+p}:{c+p+1}], v[{CSR+4*j+p}:{CSR+4*j+p+1}], v[{STR+2*t}:{STR+2*t+1}], v[{c+p}:{c+p+1}] op_sel:[0,1,0] op_sel_hi:[1,1,1] neg_lo:[0,1,0] neg_hi:[0,1,0]")
            for t in range(5):
                c = ACC + (j*5+t)*4
                for p in (0, 2):
                    a(f"v_pk_mul_f32 v[{c+p}:{c+p+1}], v[{c+p}:{c+p+1}], v[{STR+2*t}:{STR+2*t+1}] op_sel_hi:[1,0]")
            for t in range(5):
                c = ACC + (j*5+t)*4
                a(f"v_cvt_pk_bf16_f32 v{c}, v{c}, v{c+1}\nv_cvt_pk_bf16_f32 v{c+1}, v{c+2}, v{c+3}")
                a(f"ds_write_b64 v2, v[{c}:{c+1}] offset:{t*16*self.P1_QS + 32*j}")
        a(f"{Lsk}:")
        self.count_check()
        a("v_mov_b32 v2, 768\nv_mov_b32 v3, s86\nds_write_b32 v2, v3")
        a("s_waitcnt lgkmcnt(0)")
        self.p1tail()
    def p1tail(self, post=None):
        a = self.a
        self.bar()
        self.ts(5)
        self.attention()
        self.ts(6)
        self.signal(0, "s22")
        self.vreset()
        self.ts(18)
        if post: post()
        self.bar()
        a("s_cmp_ge_u32 s57, 30\ns_cbranch_scc1 Lcsum")
    def csum(self):
        a = self.a
        a("Lcsum:")
        a("s_sub_u32 s60, s57, 30\ns_lshl_b32 s60, s60, 3\ns_add_u32 s60, s60, s56")
        a("s_cmp_ge_u32 s60, 14\ns_cbranch_scc1 Lcsx")
        a("v_lshrrev_b32 v2, 4, v1\nv_and_b32 v3, 15, v1\nv_mul_u32_u24 v4, 3456, v2\nv_lshl_add_u32 v4, v3, 4, v4")
        a(f"s_mul_i32 s61, s22, {80*3456}\ns_lshl_b32 s3, s60, 8\ns_add_u32 s61, s61, s3")
        a("s_waitcnt vmcnt(0)")
        for n in range(20):
            a(f"buffer_load_dwordx4 v[{20+4*n}:{23+4*n}], v4, {srd(SW1)}, s61 offen\ns_add_u32 s61, s61, {4*3456}")
        for e in range(8): a(f"v_mov_b32 v{10+e}, 0")
        a("v_mov_b32 v8, 0x00003f80\nv_mov_b32 v9, 0x3f800000")
        for n in range(20):
            a(f"s_waitcnt vmcnt({19-n})")
            for d in range(4):
                a(f"v_dot2c_f32_bf16 v{10+2*d}, v{20+4*n+d}, v8\nv_dot2c_f32_bf16 v{11+2*d}, v{20+4*n+d}, v9")
        for e in range(4): a(f"v_permlane32_swap_b32 v{10+e}, v{14+e}")
        for e in range(4): a(f"v_add_f32 v{10+e}, v{10+e}, v{14+e}")
        for e in range(2): a(f"v_permlane16_swap_b32 v{10+e}, v{12+e}")
        for e in range(2): a(f"v_add_f32 v{10+e}, v{10+e}, v{12+e}")
        a("v_lshlrev_b32 v3, 5, v3\nv_lshl_add_u32 v3, v2, 3, v3\ns_lshl_b32 s3, s22, 9\nv_add_u32 v3, s3, v3")
        a("ds_write_b64 v3, v[10:11]\ns_waitcnt lgkmcnt(0)\ns_barrier")
        a("s_cmp_lg_u32 s22, 0\ns_cbranch_scc1 Lcsx")
        a("v_lshlrev_b32 v3, 3, v1")
        for w in range(8): a(f"ds_read_b64 v[{20+2*w}:{21+2*w}], v3 offset:{512*w}")
        a("s_waitcnt lgkmcnt(0)")
        for w in range(1, 8): a(f"v_pk_add_f32 v[20:21], v[20:21], v[{20+2*w}:{21+2*w}]")
        self.srds([SWG])
        a(f"s_lshl_b32 s61, s60, 9\ns_add_u32 s61, s61, {CSUM}")
        for g in range(8):
            a(f"buffer_store_dwordx2 v[20:21], v3, {srd(SWG)}, s61 offen sc1\ns_add_u32 s61, s61, {GS}")
        a(f"s_mul_i32 s61, s60, {self.FS}\ns_add_u32 s61, s61, {FL_BASE + (64 + 32)*self.FS}\nv_mov_b32 v4, 1")
        a("v_lshrrev_b32 v3, 2, v1\nv_lshlrev_b32 v3, 21, v3\nv_and_b32 v5, 3, v1\nv_lshl_add_u32 v3, v5, 2, v3")
        a("s_waitcnt vmcnt(0)")
        a(f"s_mov_b32 exec_hi, 0\nbuffer_store_dword v4, v3, {srd(SWG)}, s61 offen sc1\ns_mov_b64 exec, -1")
        a("Lcsx:")
        if self.o["wb"]:
            a("s_cmp_lg_u32 s22, 0\ns_cbranch_scc1 Lcsy\ns_cmp_lg_u32 s57, 31\ns_cbranch_scc1 Lcsy")
            if self.o["wb"] & 2:
                a("s_mov_b32 s61, 0\ns_mov_b32 s60, 30")
                self.wait_flags(1, False)
                a("buffer_wbl2 sc1\ns_waitcnt vmcnt(0)")
            a("s_mov_b32 s61, 0\ns_mov_b32 s60, 28")
            self.wait_flags(2, False)
            self.ts(24)
            a("buffer_wbl2 sc1\ns_waitcnt vmcnt(0)")
            self.ts(25)
            a("Lcsy:")
        self.tprev = 22
        self.fin()
    W1R = [152, 168, 184, 200, 216, 232]
    def bg_init(self):
        self.bg = [(s, n) for s in range(self.o["nv"]) for n in range(4)]
    def bg_issue(self, cnt):
        a = self.a
        while cnt > 0 and self.bg:
            s, n = self.bg.pop(0); cnt -= 1
            r = self.W1R[s] + 4*n
            a(f"s_add_u32 s61, s76, {4*n*3456}")
            a(f"buffer_load_dwordx4 v[{r}:{r+3}], v150, {srd(SW1)}, s61 offen")
            if n == 3: self.adv(76, 64*3456, 10)
            self.vissue(("w1", s))
    def w1_flush(self, s):
        self.vwait([("w1", s)])
        r = self.W1R[s]
        for n in range(4): self.a(f"ds_write_b128 v{14 + (self.p3w(s) >> 16)}, v[{r+4*n}:{r+4*n+3}] offset:{(self.p3w(s) & 0xffff) + n*1024}")
    def w1_dma(self, s):
        a = self.a
        for n in range(4):
            a(f"s_add_u32 m0, s64, {self.p3w(s) + n*1024}")
            a(f"s_add_u32 s61, s76, {4*n*3456}")
            a(f"buffer_load_dwordx4 v150, {srd(SW1)}, s61 offen lds")
            self.vissue(("w1", s))
        self.adv(76, 64*3456, 10)
    def w2_dma(self, u):
        a = self.a
        for ks in range(2):
            a(f"s_add_u32 m0, s79, {self.p4w(u) + ks*4096}")
            a(f"s_add_u32 s61, s83, {32*ks*1280}")
            a(f"buffer_load_dwordx4 v17, {srd(SW2)}, s61 offen lds")
            self.vissue(("w2", u))
        self.adv(83, 64*1280, 27)
    def p1l(self):
        a = self.a
        LA = self.o["la1"]
        self.vreset()
        a("s_lshl_b32 s60, s59, 6\ns_sub_u32 s60, s60, 16")
        a("s_mul_i32 s3, s23, 20\nv_lshrrev_b32 v14, 3, v1\nv_add_u32 v14, s3, v14\nv_and_b32 v13, 7, v1")
        for n in range(3):
            a(f"v_add_u32 v2, {8*n}, v14\nv_lshrrev_b32 v3, 1, v2\nv_and_b32 v3, 7, v3\nv_xor_b32 v3, v3, v13")
            a(f"v_add_u32 v2, s60, v2\nv_max_i32 v2, 0, v2\nv_mul_u32_u24 v2, 1280, v2\nv_lshl_add_u32 v{15+n}, v3, 4, v2")
        a("v_cmp_le_u32 vcc, 30, v1\nv_cndmask_b32 v2, 0, 1, vcc")
        a("v_mul_u32_u24 v3, 30, v2\nv_sub_u32 v3, v1, v3")
        a("v_mul_u32_u24 v4, 26, v3\nv_lshrrev_b32 v4, 8, v4")
        a("v_mul_u32_u24 v5, 10, v4\nv_sub_u32 v5, v3, v5")
        a("v_mul_u32_u24 v18, 3840, v2\nv_mul_u32_u24 v4, 1280, v4\nv_add_u32 v18, v18, v4\nv_lshl_add_u32 v18, v5, 4, v18")
        a("s_and_b32 s3, s23, 1\ns_lshl_b32 s3, s3, 4\ns_lshr_b32 s61, s23, 1\ns_lshl_b32 s61, s61, 2\ns_add_u32 s3, s3, s61")
        a("s_mul_i32 s3, s3, 3840\ns_mul_i32 s61, s58, 160\ns_add_u32 s3, s3, s61\nv_add_u32 v18, s3, v18")
        a(f"s_mul_i32 s64, s23, {4*960}\ns_mul_i32 s65, s23, 2560")
        a("s_cmp_eq_u32 s23, 0\ns_cselect_b32 s78, 0xffff0000, -1")
        if self.o["rot1"]:
            a("s_and_b32 s3, s57, 7\ns_lshr_b32 s61, s57, 3")
            a("s_mul_i32 s3, s3, 5\ns_lshr_b32 s3, s3, 2")
            if self.o["rot1"] == 1:
                a("s_mul_i32 s61, s61, 5\ns_lshr_b32 s61, s61, 1\ns_add_u32 s3, s3, s61")
                a("s_sub_u32 s61, s3, 10\ns_cmp_ge_u32 s3, 10\ns_cselect_b32 s3, s61, s3")
            a(f"s_lshl_b32 s75, s3, 7\ns_mul_i32 s76, s3, {64*3840}")
        else:
            a("s_mov_b32 s75, 0\ns_mov_b32 s76, 0")
        self.srds([SX, SWQ])
        def xiss(s):
            for n in range(3):
                a(f"s_add_u32 m0, s65, {self.p1x(s) + n*1024}")
                if n == 0: a("s_mov_b32 exec_lo, s78")
                if n == 1: a("s_mov_b32 exec_lo, -1")
                if n == 2: a("s_mov_b32 exec_hi, 0")
                a(f"buffer_load_dwordx4 v{15+n}, {srd(SX)}, s75 offen lds")
                self.vissue(("x", s))
            a("s_mov_b32 exec_hi, -1")
            self.adv(75, 128, 10)
        def wiss(u):
            a("s_mov_b32 exec_hi, 0x0fffffff")
            for jj in range(4):
                a(f"s_add_u32 m0, s64, {self.p1w(u) + jj*960}")
                a(f"s_add_u32 s61, s76, {[0, 2, 8, 10][jj] * 3840}")
                a(f"buffer_load_dwordx4 v18, {srd(SWQ)}, s61 offen lds")
                self.vissue(("w", u))
            a("s_mov_b32 exec_hi, -1")
            self.adv(76, 32*3840, 20)
        def iss(u):
            if u % 2 == 0: xiss(u // 2)
            wiss(u)
        for u in range(LA + 1): iss(u)
        self.srds([SWS, SWO, SW1, SW2])
        for r in range(6): a(f"v_mov_b32 v{20+r}, 0")
        a("v_lshlrev_b32 v26, 4, v1\nv_add_u32 v26, s65, v26\nv_mov_b32 v12, 0x3f803f80")
        self.mk3(26)
        self.p24_ids()
        self.p2_wo_setup()
        self.vwait([("w", 0)])
        nwo = 0
        for u in range(20):
            self.bar()
            if u >= 1 and u + LA <= 19: iss(u + LA)
            if u >= self.o["wo0"]: self.p2_wo_issue(nwo); nwo += 1
            if u % 2 == 0:
                for n in range(3): a(f"ds_read_b128 v[{32+4*n}:{35+4*n}], {self.ad(26, self.p1x(u//2) + n*1024)}")
                a("s_waitcnt lgkmcnt(0)")
                for d in range(4):
                    for n in range(3):
                        a(f"v_dot2c_f32_bf16 v{20+2*n}, v{32+4*n+d}, v12\nv_dot2c_f32_bf16 v{21+2*n}, v{32+4*n+d}, v{32+4*n+d}")
            if u == 19:
                for m in ("quad_perm:[1,0,3,2]", "quad_perm:[2,3,0,1]", "row_half_mirror"):
                    for r in range(6): a(f"v_add_f32_dpp v{20+r}, v{20+r}, v{20+r} {m} row_mask:0xf bank_mask:0xf")
                for n in range(3):
                    m_, q_ = 33 + 2*n, 21 + 2*n
                    a(f"v_mul_f32 v{m_}, {1.0/640!r}, v{20+2*n}\nv_mul_f32 v{q_}, {1.0/640!r}, v{q_}")
                    a(f"v_fma_f32 v{q_}, -v{m_}, v{m_}, v{q_}\nv_max_f32 v{q_}, 0, v{q_}\nv_add_f32 v{q_}, 1e-5, v{q_}\nv_rsq_f32 v{m_-1}, v{q_}")
                a("v_lshlrev_b32 v2, 3, v14")
                a(f"ds_write_b64 v2, v[32:33] offset:{self.P1_ST}\nds_write_b64 v2, v[34:35] offset:{self.P1_ST+64}")
                a(f"s_mov_b32 exec_hi, 0\nds_write_b64 v2, v[36:37] offset:{self.P1_ST+128}\ns_mov_b32 exec_hi, -1")
                a("s_waitcnt lgkmcnt(0)")
            if u + 1 <= 19: self.vwait([("w", u + 1)])
        self.bar()
        for k in range(nwo, 5): self.p2_wo_issue(k)
        self.p3_w_setup()
        self.bg_init()
        self.bg_issue(self.o["nA"])
        def post():
            self.p4_w_setup()
            self.bg_issue(self.o["nB"])
        self.p1tail(post)

    def attention(self):
        a = self.a
        QS = self.P1_QS
        a("s_lshr_b32 s3, s22, 2\ns_lshl_b32 s3, s3, 5")
        a("v_and_b32 v2, 31, v1\nv_add_u32 v2, s3, v2")
        a("v_lshrrev_b32 v3, 5, v1")
        a(f"v_mul_u32_u24 v4, {QS}, v2")
        a(f"s_mul_i32 s3, s23, 40\ns_add_u32 s3, s3, {self.P1_QKV + 16*QS}\nv_add_u32 v4, s3, v4")
        a(f"v_mul_u32_u24 v5, {8*QS}, v3\nv_sub_u32 v5, v4, v5\nv_subrev_u32 v5, {6*QS}, v5")
        Q = 20; Kr = 30; V = 70; P = 110; T = 120; AC = 130
        a("v_mov_b32 v11, 768\nds_read_b32 v11, v11")
        for c in range(5): a(f"ds_read_b64 v[{Q+2*c}:{Q+2*c+1}], v4 offset:{8*c}")
        for jj in range(4):
            for c in range(5): a(f"ds_read_b64 v[{Kr+10*jj+2*c}:{Kr+10*jj+2*c+1}], v5 offset:{(6-2*jj)*QS + 160 + 8*c}")
        a("s_lshl_b32 s3, s59, 6\nv_add_u32 v6, s3, v2")
        a("v_lshlrev_b32 v7, 3, v3\nv_sub_u32 v7, v6, v7")
        for jj in range(4): a(f"v_mov_b32 v{P+jj}, 0")
        a("s_waitcnt lgkmcnt(0)")
        for jj in range(4):
            for c in range(5): a(f"ds_read_b64 v[{V+10*jj+2*c}:{V+10*jj+2*c+1}], v5 offset:{(6-2*jj)*QS + 320 + 8*c}")
        for d in range(10):
            for jj in range(4): a(f"v_dot2c_f32_bf16 v{P+jj}, v{Q+d}, v{Kr+10*jj+d}")
        SCL = 20 ** -0.5 * 1.4426950408889634
        a("v_mov_b32 v8, 0xceac0000")
        for jj in range(4):
            a(f"v_mul_f32 v{P+jj}, {SCL!r}, v{P+jj}")
            a(f"v_cmp_le_i32 vcc, {2*jj}, v7")
            a(f"v_cndmask_b32 v{P+jj}, v8, v{P+jj}, vcc")
        a(f"v_max3_f32 v9, v{P}, v{P+1}, v{P+2}\nv_max_f32 v9, v9, v{P+3}\nv_mov_b32 v10, v9")
        a("v_permlane32_swap_b32 v9, v10\nv_max_f32 v9, v9, v10")
        for jj in range(4): a(f"v_sub_f32 v{P+jj}, v{P+jj}, v9")
        for jj in range(4): a(f"v_exp_f32 v{P+jj}, v{P+jj}")
        a(f"v_add_f32 v9, v{P}, v{P+1}\nv_add_f32 v10, v{P+2}, v{P+3}\nv_add_f32 v9, v9, v10\nv_mov_b32 v10, v9")
        a("v_permlane32_swap_b32 v9, v10\nv_add_f32 v9, v9, v10\nv_rcp_f32 v9, v9")
        for jj in range(4): a(f"v_mul_f32 v{P+jj}, v{P+jj}, v9")
        a(f"v_cvt_pk_bf16_f32 v{P}, v{P}, v{P+1}\nv_cvt_pk_bf16_f32 v{P+1}, v{P+2}, v{P+3}")
        a("s_mov_b32 s60, 0x05040100\ns_mov_b32 s61, 0x07060302")
        a("s_waitcnt lgkmcnt(0)")
        for d in range(10):
            t = T + 4 * (d % 2)
            a(f"v_perm_b32 v{t}, v{V+10+d}, v{V+d}, s60\nv_perm_b32 v{t+1}, v{V+10+d}, v{V+d}, s61")
            a(f"v_perm_b32 v{t+2}, v{V+30+d}, v{V+20+d}, s60\nv_perm_b32 v{t+3}, v{V+30+d}, v{V+20+d}, s61")
            a(f"v_dot2_f32_bf16 v{AC+2*d}, v{t}, v{P}, 0\nv_dot2_f32_bf16 v{AC+2*d+1}, v{t+1}, v{P}, 0")
            a(f"v_dot2_f32_bf16 v{AC+2*d}, v{t+2}, v{P+1}, v{AC+2*d}\nv_dot2_f32_bf16 v{AC+2*d+1}, v{t+3}, v{P+1}, v{AC+2*d+1}")
        pairs = [(d, d + 8) for d in range(8)] + [(16, 18), (17, 19)]
        for x, y in pairs: a(f"v_permlane32_swap_b32 v{AC+x}, v{AC+y}")
        for x, y in pairs: a(f"v_add_f32 v{AC+x}, v{AC+x}, v{AC+y}")
        for d in range(4): a(f"v_cvt_pk_bf16_f32 v{T+d}, v{AC+2*d}, v{AC+2*d+1}")
        a(f"v_cvt_pk_bf16_f32 v{T+4}, v{AC+16}, v{AC+17}")
        a("v_and_b32 v6, 255, v6\nv_lshlrev_b32 v6, 4, v6")
        a(f"v_mul_u32_u24 v7, {CS}, v3\nv_add_u32 v7, v7, v6")
        a("v_lshl_add_u32 v8, v3, 2, v6")
        a(f"s_mul_i32 s60, s58, 10\ns_lshl_b32 s3, s23, 1\ns_add_u32 s61, s60, s3\ns_mul_i32 s61, s61, {CS}")
        a("v_readfirstlane_b32 s86, v11\ns_mov_b32 s87, s86\ns_mov_b64 vcc, s[86:87]")
        self.hst(f"buffer_store_dwordx4 v[{T}:{T+3}], v7, {srd(SWS)}, s61 offen")
        a(f"s_lshr_b32 s3, s23, 1\ns_add_u32 s60, s60, s3\ns_add_u32 s60, s60, 8\ns_mul_i32 s60, s60, {CS}")
        a(f"s_and_b32 s3, s23, 1\ns_lshl_b32 s3, s3, 3\ns_add_u32 s60, s60, s3")
        self.hst(f"buffer_store_dword v{T+4}, v8, {srd(SWS)}, s60 offen")

    def p24_ids(self):
        a = self.a
        a("s_mul_i32 s66, s57, 26\ns_lshr_b32 s66, s66, 8\ns_mul_i32 s3, s66, 10\ns_sub_u32 s67, s57, s3")
        a("s_lshl_b32 s68, s56, 8\ns_mul_i32 s63, s66, 88\ns_add_u32 s68, s68, s63")
        a("s_cmp_eq_u32 s66, 2\ns_cselect_b32 s69, 0, 8\ns_add_u32 s69, s69, 80")
    def w64_addr(self, dst, Drows):
        a = self.a
        a("v_lshrrev_b32 v2, 3, v1\nv_and_b32 v3, 3, v2\nv_lshrrev_b32 v4, 2, v2")
        a(f"v_mul_u32_u24 v4, {Drows}, v4\nv_add_u32 v3, v3, v4\nv_mul_u32_u24 v{dst}, 1280, v3")
        a("v_lshrrev_b32 v2, 4, v1\nv_lshlrev_b32 v2, 1, v2\nv_and_b32 v3, 7, v1\nv_xor_b32 v3, v3, v2")
        a(f"v_lshl_add_u32 v{dst}, v3, 4, v{dst}")
        a(f"s_lshl_b32 s3, s67, 7\nv_add_u32 v{dst}, s3, v{dst}")
    def panel96_addr(self, dst):
        a = self.a
        for n in range(3):
            a(f"v_add_u32 v2, {64*n}, v1\nv_cmp_le_u32 vcc, 96, v2\nv_cndmask_b32 v3, 0, 1, vcc")
            a("v_mul_u32_u24 v4, 96, v3\nv_sub_u32 v2, v2, v4")
            a("s_lshl_b32 s3, s23, 1\nv_add_u32 v3, s3, v3")
            a(f"v_mul_u32_u24 v3, {CS}, v3\nv_add_u32 v4, s63, v2\nv_lshl_add_u32 v3, v4, 4, v3")
            a(f"v_cmp_gt_u32 vcc, s69, v2\nv_mov_b32 v4, {OOB}\nv_cndmask_b32 v{dst+n}, v4, v3, vcc")
    def panel96_issue(self, areg, gbase, nst, ldsbase, tag):
        a = self.a
        a(f"s_add_u32 s61, s75, {gbase}")
        for n in range(3):
            a(f"s_add_u32 m0, s65, {ldsbase + n*1024}")
            a(f"buffer_load_dwordx4 v{areg+n}, {srd(SWS)}, s61 offen {['', 'sc1', 'nt', 'sc0 sc1', 'sc1 nt'][self.o['ldsc']]} lds")
            self.vissue(tag)
        self.adv(75, 8*CS, nst)
    def c24_addr(self):
        a = self.a
        a("s_lshr_b32 s70, s23, 1\ns_and_b32 s71, s23, 1")
        a("v_lshrrev_b32 v11, 3, v1\nv_and_b32 v11, 3, v11\ns_lshl_b32 s3, s71, 1\nv_xor_b32 v11, s3, v11")
        a("v_lshrrev_b32 v2, 2, v1\nv_lshlrev_b32 v2, 7, v2\nv_and_b32 v3, 3, v1\nv_lshl_add_u32 v2, v3, 3, v2")
        a("v_xor_b32 v3, 1, v11\nv_lshl_add_u32 v5, v3, 5, v2\nv_lshl_add_u32 v2, v11, 5, v2")
        self.mk3(2); self.mk3(5)
        a("v_lshrrev_b32 v8, 4, v1\nv_mul_u32_u24 v8, 1536, v8\nv_and_b32 v11, 15, v1\nv_lshl_add_u32 v8, v11, 4, v8")
        a("s_mul_i32 s3, s70, 768\nv_add_u32 v8, s3, v8")
        self.mk3(8)
    def c24_loop(self, nst, aoff, boff, ACC, tsb):
        a = self.a
        def reads(u):
            s, ks = divmod(u, 2); f = 20 + 20*(u % 4); r = []
            for j in range(2):
                for rd in range(2):
                    r.append(f"ds_read_b64_tr_b16 v[{f+4*j+2*rd}:{f+4*j+2*rd+1}], {self.ad(2+3*j, aoff(s) + ks*4096 + rd*2048)}")
            for t in range(3):
                r.append(f"ds_read_b128 v[{f+8+4*t}:{f+11+4*t}], {self.ad(8, boff(s) + ks*4*1536 + t*256)}")
            return [r[0], r[4], r[1], r[5], r[2], r[3], r[6]]
        def mfmas(u):
            f = 20 + 20*(u % 4); r = []
            for j in range(2):
                for t in range(3):
                    c = ACC + (t*2+j)*4
                    cs = "0" if u == 0 else f"v[{c}:{c+3}]"
                    r.append(f"v_mfma_f32_16x16x32_bf16 v[{c}:{c+3}], v[{f+4*j}:{f+4*j+3}], v[{f+8+4*t}:{f+11+4*t}], {cs}")
            return r
        n = 2*nst
        self.bar()
        self.ts(tsb)
        for x in reads(0) + reads(1): a(x)
        for u in range(n):
            nu = u + 2
            if nu < n and nu % 2 == 0: self.bar()
            if u == nst: self.ts(tsb+1)
            a(f"s_waitcnt lgkmcnt({7 if u + 1 < n else 0})")
            if u == n - 1:
                self.bar(); self.ts(tsb+2)
            rd = reads(nu) if nu < n else []
            mf = mfmas(u)
            for i, m in enumerate(mf):
                a(m)
                if i < len(rd): a(rd[i])
            for x in rd[len(mf):]: a(x)
    def c24_rowaddr(self):
        a = self.a
        a("v_and_b32 v12, 15, v1\ns_mul_i32 s3, s70, 48\nv_add_u32 v12, s3, v12")
        a("v_lshrrev_b32 v13, 4, v1\nv_and_b32 v14, 1, v13\nv_lshlrev_b32 v14, 1, v14\nv_lshrrev_b32 v11, 1, v13\nv_add_u32 v14, v14, v11")
        a("s_lshl_b32 s3, s71, 2\nv_add_u32 v14, s3, v14")
    def c24_addr_rm(self, dst):
        a = self.a
        for t in range(3):
            a(f"v_add_u32 v11, {16*t}, v12\nv_cmp_gt_u32 vcc, s69, v11\nv_add_u32 v11, s68, v11\nv_mul_u32_u24 v11, 1280, v11")
            a(f"v_lshl_add_u32 v11, v14, 4, v11\ns_lshl_b32 s3, s67, 7\nv_add_u32 v11, s3, v11")
            a(f"v_mov_b32 v{dst+t}, {OOB}\nv_cndmask_b32 v{dst+t}, v{dst+t}, v11, vcc")
    def c24_addr_panel(self, dst):
        a = self.a
        for t in range(3):
            a(f"s_lshl_b32 s3, s67, 3\nv_add_u32 v{dst+t}, s3, v14\nv_mul_u32_u24 v{dst+t}, {CS}, v{dst+t}")
            a(f"v_add_u32 v11, {16*t}, v12\nv_cmp_gt_u32 vcc, s69, v11\nv_add_u32 v11, s63, v11")
            a(f"v_lshl_add_u32 v11, v11, 4, v{dst+t}")
            a(f"v_mov_b32 v{dst+t}, {OOB}\nv_cndmask_b32 v{dst+t}, v{dst+t}, v11, vcc")
    def c24_sum(self, ACC, RES, OUT, T, store):
        a = self.a
        for t in range(3):
            A = ACC + t*8; B = A + 4
            for d in range(4):
                a(f"v_lshlrev_b32 v{T+2*d}, 16, v{RES+4*t+d}\nv_and_b32 v{T+2*d+1}, 0xffff0000, v{RES+4*t+d}")
            for r in range(4): a(f"v_permlane16_swap_b32 v{A+r}, v{B+r}")
            for d in range(4):
                a(f"v_pk_add_f32 v[{T+2*d}:{T+2*d+1}], v[{T+2*d}:{T+2*d+1}], v[{A+2*d}:{A+2*d+1}]")
            for d in range(4):
                a(f"v_cvt_pk_bf16_f32 v{OUT+4*t+d}, v{T+2*d}, v{T+2*d+1}")
            store(t)

    P2_WO = 81920; P2_RING = 0; P2_NS = 6
    HREG = 240
    def p2_wo_setup(self):
        a = self.a
        self.w64_addr(44, 8); self.w64_addr(45, 40)
        a(f"s_cmp_ge_u32 s57, 30\ns_cselect_b32 s3, {OOB}, 0\nv_or_b32 v44, s3, v44\nv_or_b32 v45, s3, v45")
        a(f"s_mul_i32 s77, s23, {160*1280}\ns_mul_i32 s79, s23, 5")
        if self.o["rot2"]:
            a("s_lshl_b32 s3, s67, 1\ns_add_u32 s79, s79, 20\ns_sub_u32 s79, s79, s3\ns_sub_u32 s3, s79, 20\ns_cmp_ge_u32 s79, 20\ns_cselect_b32 s79, s3, s79")
        a("s_lshl_b32 s79, s79, 12")
    def p2_wo_issue(self, kk):
        a = self.a
        for io in range(4):
            q = 4*kk + 2*(io % 2); rd = io // 2; hg = q // 10; c = q % 10
            if c < 8: row = 80*hg + 20*(c//2) + 4*rd; reg = 44
            else: row = 80*hg + 20*rd + 16; reg = 45
            a(f"s_add_u32 m0, s79, {self.P2_WO + io*1024}")
            a(f"s_add_u32 s61, s77, {row*1280}")
            a(f"buffer_load_dwordx4 v{reg}, {srd(SWO)}, s61 offen lds")
            self.vissue("wo")
        self.adv(79, 4096, 20)
    def p2c(self):
        a = self.a
        self.p24_ids(); self.c24_addr(); self.c24_rowaddr()
        XR = 220
        self.c24_addr_rm(16)
        for t in range(3):
            a(f"buffer_load_dwordx4 v[{XR+4*t}:{XR+4*t+3}], v{16+t}, {srd(SX)}, 0 offen")
        self.c24_addr_panel(16)
        a("v_and_b32 v232, 1, v13\nv_lshl_add_u32 v232, v232, 4, v12\nv_add_u32 v233, 32, v12\nv_lshrrev_b32 v11, 1, v13\nv_lshlrev_b32 v11, 2, v11")
        a(f"v_mov_b32 v15, {OOB}")
        for r in (232, 233):
            a(f"v_cmp_gt_u32 vcc, s69, v{r}\nv_add_u32 v{r}, s63, v{r}\nv_lshl_add_u32 v{r}, v{r}, 3, v11\nv_cndmask_b32 v{r}, v15, v{r}, vcc")
        a(f"s_lshl_b32 s60, s67, 1\ns_add_u32 s60, s60, s71\ns_lshl_b32 s60, s60, 11\ns_add_u32 s60, s60, {ST_BASE}")
        ACC = 100
        self.c24_loop(10, lambda s: self.P2_WO + s*8192, lambda s: self.P2_RING + (s % self.P2_NS)*12288, ACC, 7)
        a("s_waitcnt vmcnt(0)")
        H = self.HREG
        a(f"s_mov_b32 s61, {H_BASE}")
        a("v_mov_b32 v30, 0x3f803f80")
        for t in range(6): a(f"v_mov_b32 v{20+t}, 0")
        a("s_mov_b64 vcc, s[86:87]")
        self.c24_sum(ACC, XR, H, 32, lambda t: self.hst(f"buffer_store_dwordx4 v[{H+4*t}:{H+4*t+3}], v{16+t}, {srd(SWS)}, s61 offen"))
        for d in range(4):
            for t in range(3):
                a(f"v_dot2c_f32_bf16 v{20+2*t}, v{H+4*t+d}, v30\nv_dot2c_f32_bf16 v{21+2*t}, v{H+4*t+d}, v{H+4*t+d}")
        for t in range(3): a(f"v_permlane32_swap_b32 v{20+2*t}, v{21+2*t}")
        for t in range(3): a(f"v_add_f32 v{20+2*t}, v{20+2*t}, v{21+2*t}")
        a("v_mov_b32 v25, v24")
        a("v_permlane16_swap_b32 v20, v22\nv_permlane16_swap_b32 v24, v25")
        a("v_add_f32 v20, v20, v22\nv_add_f32 v24, v24, v25")
        self.hst(f"buffer_store_dword v20, v232, {srd(SWS)}, s60 offen")
        self.hst(f"buffer_store_dword v24, v233, {srd(SWS)}, s60 offen")
        self.ts(19)
        self.signal(1, "s23")
        self.ts(20)
    def p2l(self):
        a = self.a
        self.panel96_addr(11)
        a("s_mul_i32 s65, s23, 3072")
        a(f"s_mul_i32 s75, s67, {8*CS}" if self.o["rot2"] else "s_mov_b32 s75, 0")
        a("v_lshlrev_b32 v14, 4, v1\nv_add_u32 v14, s64, v14\nv_add_u32 v15, 0x10000, v14\ns_lshl_b32 s79, s23, 10")
        a("s_lshl_b32 s61, s66, 3\ns_mov_b32 s60, 32")
        self.wait_flags(0, True)
        self.ts(7)
        NS = self.P2_NS
        iss = lambda s: self.panel96_issue(11, O_BASE, 10, self.P2_RING + (s % NS)*12288, ("o", s))
        no = self.o["o0"]
        for s in range(no): iss(s)
        self.vwait([("o", 0)])
        for s in range(10):
            self.bar()
            for _ in range(self.o["per"]):
                if no <= min(9, max(s - 2, -1) + NS): iss(no); no += 1
            if s >= self.o["c0"]: self.bg_issue(self.o["nC"])
            if s + 1 <= 9: self.vwait([("o", s + 1)])
        self.bar()
        a("s_cmp_ge_u32 s57, 28\ns_cbranch_scc1 Lskip3l")

    def p3w(self, s): return A16(s % 6)
    def p3h(self, s): return A16(6 + s % 4)
    P3_ST = A16(4)
    def p3_ids(self):
        a = self.a
        a("s_cmp_ge_u32 s57, 14\ns_cselect_b32 s3, 1, 0\ns_cselect_b32 s73, 14, 0\ns_sub_u32 s73, s57, s73")
        a("s_lshl_b32 s72, s3, 7")
    def p3_w_setup(self):
        a = self.a
        self.p3_ids()
        a("v_lshrrev_b32 v2, 4, v1\nv_lshlrev_b32 v3, 2, v2\nv_and_b32 v4, 15, v1\nv_xor_b32 v4, v4, v3")
        a("v_mul_u32_u24 v150, 3456, v2\nv_lshl_add_u32 v150, v4, 4, v150")
        a(f"s_lshl_b32 s3, s73, 8\ns_mul_i32 s61, s23, {16*3456}\ns_add_u32 s3, s3, s61")
        a(f"s_cmp_ge_u32 s57, 28\ns_cselect_b32 s3, {OOB}, s3\nv_add_u32 v150, s3, v150")
        a("s_lshl_b32 s64, s23, 12")
        if self.o["rot3"]:
            a("s_mul_i32 s77, s73, 183\ns_lshr_b32 s77, s77, 8\ns_cmp_ge_u32 s57, 14\ns_cselect_b32 s3, 5, 0\ns_add_u32 s77, s77, s3")
            a("s_sub_u32 s3, s77, 10\ns_cmp_ge_u32 s77, 10\ns_cselect_b32 s77, s3, s77")
        else: a("s_mov_b32 s77, 0")
        a(f"s_mul_i32 s76, s77, {64*3456}")
    def p3c(self):
        a = self.a
        Lsig = self.lab("P3sig")
        a("s_cmp_ge_u32 s57, 28\ns_cbranch_scc1 Lskip3c")
        self.p3_ids()
        a("v_lshrrev_b32 v11, 2, v1\nv_and_b32 v11, 3, v11")
        a("v_lshrrev_b32 v2, 5, v1\nv_lshl_add_u32 v2, v2, 3, v11\nv_lshlrev_b32 v2, 8, v2")
        a("v_lshrrev_b32 v3, 4, v1\nv_and_b32 v3, 1, v3\nv_lshl_add_u32 v2, v3, 5, v2\nv_and_b32 v3, 3, v1\nv_lshl_add_u32 v2, v3, 3, v2")
        a("s_lshl_b32 s3, s71, 1\nv_xor_b32 v11, s3, v11")
        a("v_xor_b32 v3, 1, v11\nv_lshl_add_u32 v5, v3, 6, v2\nv_lshl_add_u32 v2, v11, 6, v2")
        self.mk3(2); self.mk3(5)
        a("v_lshrrev_b32 v8, 5, v1\nv_lshlrev_b32 v8, 11, v8\nv_and_b32 v11, 31, v1\nv_lshl_add_u32 v8, v11, 4, v8")
        a("s_lshl_b32 s3, s70, 10\nv_add_u32 v8, s3, v8")
        self.mk3(8)
        a("v_lshrrev_b32 v15, 5, v1\nv_lshlrev_b32 v12, 4, v15")
        a(f"s_lshl_b32 s3, s71, 8\ns_add_u32 s3, s3, {self.P3_ST + 1024}\nv_add_u32 v12, s3, v12")
        a("v_lshlrev_b32 v13, 3, v11")
        a(f"s_lshl_b32 s3, s70, 9\ns_add_u32 s3, s3, {self.P3_ST}\nv_add_u32 v13, s3, v13")
        a(f"v_mul_u32_u24 v14, {CS}, v15\nv_lshl_add_u32 v14, v11, 4, v14")
        a("s_lshl_b32 s77, s73, 1\ns_add_u32 s77, s77, s71")
        a(f"s_mul_i32 s60, s77, {8*CS}\ns_lshl_b32 s3, s70, 6\ns_add_u32 s3, s3, s72\ns_lshl_b32 s3, s3, 4\ns_add_u32 s60, s60, s3\ns_add_u32 s60, s60, {G_BASE}")
        a("v_mov_b32 v16, -1.4426950408889634")
        ACC = 100; FB = [20, 36]; CSR = 52; STR = 84
        def reads(u):
            s, ks = divmod(u, 4); f = FB[u % 2]; r = []
            for t in range(2):
                r.append(f"ds_read_b128 v[{f+8+4*t}:{f+11+4*t}], {self.ad(8, self.p3h(s) + ks*4096 + t*512)}")
            for j in range(2):
                for rd in range(2):
                    r.append(f"ds_read_b64_tr_b16 v[{f+4*j+2*rd}:{f+4*j+2*rd+1}], {self.ad(2+3*j, self.p3w(s) + ks*4096 + rd*1024)}")
            return [r[0], r[2], r[3], r[1], r[4], r[5]]
        def mfmas(u):
            f = FB[u % 2]; r = []
            for j in range(2):
                for t in range(2):
                    c = ACC + (j*2+t)*16
                    cs = "0" if u == 0 else f"v[{c}:{c+15}]"
                    r.append(f"v_mfma_f32_32x32x16_bf16 v[{c}:{c+15}], v[{f+4*j}:{f+4*j+3}], v[{f+8+4*t}:{f+11+4*t}], {cs}")
            return r
        for u in range(40):
            rd = reads(u); mf = mfmas(u-1) if u else []
            if u % 4 == 0:
                if mf: a(mf.pop(0))
                self.bar()
            if u == 0: self.ts(10)
            if u == 33:
                for t in range(2): a(f"ds_read_b64 v[{STR+4*t}:{STR+4*t+1}], v13 offset:{256*t}")
            if u in (34, 35, 37, 38):
                k = {34: 0, 35: 1, 37: 2, 38: 3}[u]
                for j in range(2): rd.append(f"ds_read_b128 v[{CSR+16*j+4*k}:{CSR+16*j+4*k+3}], v12 offset:{128*j + 32*k}")
            i = 0
            for m in mf:
                if u % 4 == 0:
                    for x in rd[i:i+3]: a(x)
                    i += 3
                    a(m)
                else:
                    a(m)
                    for x in rd[i:i+3]: a(x)
                    i += 3
            for x in rd[i:]: a(x)
            a("s_waitcnt lgkmcnt(0)")
        mf = mfmas(39)
        a(mf.pop(0))
        self.bar()
        self.ts(11)
        for m in mf: a(m)
        a("s_waitcnt vmcnt(0) lgkmcnt(0)\ns_mov_b64 vcc, s[86:87]")
        a(f"s_cmp_ge_u32 s77, 27\ns_cbranch_scc1 {Lsig}")
        for t in range(2):
            a(f"v_mul_f32 v{STR+4*t+2}, -1.4426950408889634, v{STR+4*t}")
        T = 20
        for j in range(2):
            for t in range(2):
                c = ACC + (j*2+t)*16
                A_ = STR + 4*t
                for qq in range(0, 4, 2):
                    o = T + 16 + 4*((qq//2) % 2)
                    for p in range(4):
                        x = c + 4*qq + 2*p; k = CSR + 16*j + 4*qq + 2*p
                        a(f"v_pk_fma_f32 v[{x}:{x+1}], v[{k}:{k+1}], v[{A_}:{A_+1}], v[{x}:{x+1}] op_sel:[0,1,0] op_sel_hi:[1,1,1] neg_lo:[0,1,0] neg_hi:[0,1,0]")
                    for p in range(4):
                        x = c + 4*qq + 2*p
                        a(f"v_pk_mul_f32 v[{x}:{x+1}], v[{x}:{x+1}], v[{A_+2}:{A_+3}] op_sel_hi:[1,0]")
                    for p in range(8): a(f"v_exp_f32 v{T+p}, v{c + 4*qq + p}")
                    for p in range(4):
                        a(f"v_pk_fma_f32 v[{T+2*p}:{T+2*p+1}], v[{T+2*p}:{T+2*p+1}], v[16:17], v[16:17] op_sel_hi:[1,0,0]")
                    for p in range(8): a(f"v_rcp_f32 v{T+p}, v{T+p}")
                    for p in range(4):
                        x = c + 4*qq + 2*p
                        a(f"v_pk_mul_f32 v[{x}:{x+1}], v[{x}:{x+1}], v[{T+2*p}:{T+2*p+1}]")
                    for p in range(4):
                        x = c + 4*qq + 2*p
                        a(f"v_cvt_pk_bf16_f32 v{o+p}, v{x}, v{x+1}")
                    a(f"v_permlane32_swap_b32 v{o}, v{o+2}\nv_permlane32_swap_b32 v{o+1}, v{o+3}")
                    a(f"s_add_u32 s61, s60, {(4*j + qq)*CS + 512*t}")
                    self.hst(f"buffer_store_dwordx4 v[{o}:{o+3}], v14, {srd(SWS)}, s61 offen")
        a(f"{Lsig}:")
        self.ts(21)
        self.signal(2, "s23")
        self.ts(22)
        a("Lskip3c:")
    def p3l(self):
        a = self.a
        NV = self.o["nv"]
        if self.o["pt"] & 4:
            a(f"v_lshrrev_b32 v2, 4, v1\nv_lshlrev_b32 v2, 12, v2\nv_and_b32 v3, 15, v1\nv_lshl_add_u32 v2, v3, 7, v2")
            a(f"s_lshl_b32 s61, s73, 2\ns_add_u32 s61, s61, s23\ns_lshl_b32 s61, s61, 14\ns_lshl_b32 s3, s72, 4\ns_add_u32 s61, s61, s3\ns_add_u32 s61, s61, {G_BASE}")
            a(f"buffer_load_dword v60, v2, {srd(SWS)}, s61 offen")
            self.vissue("pt")
        self.bg_issue(99)
        for s in range(NV, 6): self.w1_dma(s)
        for s in range(NV): self.w1_flush(s)
        a(f"s_mul_i32 s3, s23, {2*CS}\ns_lshl_b32 s61, s72, 4\ns_add_u32 s3, s3, s61\nv_lshl_add_u32 v18, v1, 4, s3")
        a(f"s_mul_i32 s75, s77, {8*CS}")
        a("v_and_b32 v2, 31, v1\nv_lshrrev_b32 v3, 5, v1\nv_lshlrev_b32 v3, 11, v3\nv_lshl_add_u32 v10, v2, 3, v3")
        a("s_lshl_b32 s3, s23, 5\ns_add_u32 s3, s3, s72\ns_lshl_b32 s3, s3, 3\nv_add_u32 v10, s3, v10")
        def hiss(s):
            for n in range(4):
                a(f"s_add_u32 m0, s64, {self.p3h(s) + n*1024}")
                a(f"s_add_u32 s61, s75, {H_BASE + (n//2)*CS + (n % 2)*1024}")
                a(f"buffer_load_dwordx4 v18, {srd(SWS)}, s61 offen {['', 'sc1', 'nt', 'sc0 sc1', 'sc1 nt'][self.o['ldsc']]} lds")
                self.vissue(("h", s))
            self.adv(75, 8*CS, 10)
        a("s_cmp_ge_u32 s57, 14\ns_cselect_b32 s61, 10, 0\ns_mov_b32 s60, 21")
        a(f"s_add_u32 s62, s73, 32\ns_sub_u32 s62, s62, s61\ns_mul_i32 s62, s62, {self.FS}")
        self.ts(26)
        self.wait_flags(1, False, "v_writelane_b32 v2, s62, 20")
        self.ts(10)
        SR = 20
        H0 = self.o["h0"]
        for s in range(H0): hiss(s)
        self.ts(30)
        self.vwait([("h", 0)])
        a("s_waitcnt lgkmcnt(0)")
        self.ts(31)
        nh = H0; nw = 0
        NW = self.NW
        sched = {7: 5, 8: 2, 9: 4 if NW == 14 else 2} if self.o["w2e"] else {}
        for s in range(10):
            self.bar()
            if s == 7: a("ds_write_b64 v2, v[48:49]")
            for _ in range(self.o["per"]):
                if nh <= min(9, s + 3): hiss(nh); nh += 1
            if s == 5:
                for n in range(10):
                    a(f"s_mov_b32 s61, {ST_BASE + n*4096}")
                    a(f"buffer_load_dwordx2 v[{SR+2*n}:{SR+1+2*n}], v10, {srd(SWS)}, s61 offen sc1")
                    self.vissue("st")
                a(f"s_lshl_b32 s3, s23, 7\ns_add_u32 m0, s3, {self.P3_ST + 1024}\ns_lshl_b32 s61, s73, 9\ns_add_u32 s61, s61, s3\ns_add_u32 s61, s61, {CSUM}")
                a(f"v_lshlrev_b32 v3, 4, v1\ns_mov_b64 exec, 255\nbuffer_load_dwordx4 v3, {srd(SWS)}, s61 offen sc1 lds\ns_mov_b64 exec, -1")
                self.vissue("st")
            if 1 <= s <= 4: self.w1_dma(s + 5)
            for _ in range(sched.get(s, 0)): self.w2_dma(nw); nw += 1
            if s == 6:
                self.vwait("st")
                for n in range(1, 10): a(f"v_pk_add_f32 v[{SR}:{SR+1}], v[{SR}:{SR+1}], v[{SR+2*n}:{SR+1+2*n}]")
                a(f"v_mov_b32 v48, v{SR}\nv_mov_b32 v49, v{SR+1}")
                a(f"v_permlane32_swap_b32 v{SR}, v48\nv_permlane32_swap_b32 v{SR+1}, v49")
                a(f"v_add_f32 v{SR}, v{SR}, v48\nv_add_f32 v{SR+1}, v{SR+1}, v49")
                a(f"v_mul_f32 v49, {1.0/640!r}, v{SR}\nv_mul_f32 v{SR+1}, {1.0/640!r}, v{SR+1}")
                a(f"v_fma_f32 v{SR+1}, -v49, v49, v{SR+1}\nv_max_f32 v{SR+1}, 0, v{SR+1}\nv_add_f32 v{SR+1}, 1e-5, v{SR+1}\nv_rsq_f32 v48, v{SR+1}")
                a(f"v_and_b32 v2, 31, v1\nv_lshlrev_b32 v2, 3, v2\ns_lshl_b32 s3, s23, 8\ns_add_u32 s3, s3, {self.P3_ST}\nv_add_u32 v2, s3, v2")
            if s == 7: a("s_waitcnt lgkmcnt(0)")
            if s + 1 <= 9: self.vwait([("h", s + 1), ("w1", s + 1)])
        self.bar()
        for u in range(nw, NW): self.w2_dma(u)
        a("s_branch Lp4l")
        a("Lskip3l:")
        for u in range(NW): self.w2_dma(u)
        a("Lp4l:")
        self.vreset()

    def p4w(self, u):
        M = [9, 10, 11, 0, 1, 2, 3, 4, 5, 12, 13, 6, 7, 8] if self.NW == 14 else [9, 10, 11, 0, 1, 2, 3, 4, 5, 6, 7, 8]
        return M[u % self.NW] * 8192
    def p4g(self, s): return LDS - self.GN*12288 + (s % self.GN)*12288
    def p4_w_setup(self):
        a = self.a
        self.w64_addr(17, 8)
        a("s_and_b32 s3, s23, 1\ns_lshl_b32 s3, s3, 4\ns_lshr_b32 s61, s23, 1\ns_lshl_b32 s61, s61, 2\ns_add_u32 s3, s3, s61\ns_mul_i32 s3, s3, 1280")
        a(f"s_cmp_ge_u32 s57, 30\ns_cselect_b32 s3, {OOB}, s3\nv_add_u32 v17, s3, v17")
        if self.o["rot4"]:
            a("s_mul_i32 s82, s67, 27*205\ns_lshr_b32 s82, s82, 11\ns_mul_i32 s3, s66, 9\ns_add_u32 s82, s82, s3")
            a("s_sub_u32 s3, s82, 27\ns_cmp_ge_u32 s82, 27\ns_cselect_b32 s82, s3, s82")
        else: a("s_mov_b32 s82, 0")
        a(f"s_mul_i32 s83, s82, {64*1280}")
    def p4c(self):
        a = self.a
        self.c24_addr(); self.c24_rowaddr()
        H = self.HREG
        self.c24_addr_rm(16)
        ACC = 100
        self.c24_loop(27, self.p4w, self.p4g, ACC, 12)
        self.c24_sum(ACC, H, 40, 20, lambda t: a(f"buffer_store_dwordx4 v[{40+4*t}:{43+4*t}], v{16+t}, {srd(SOUT)}, 0 offen" + ["", " sc1", " nt", " sc0 sc1"][self.o["osc"]]))
        self.fin()
    def p4l(self):
        a = self.a
        a(f"s_mul_i32 s75, s82, {8*CS}")
        a("s_cmp_eq_u32 s66, 2\ns_cselect_b32 s61, 14, 0")
        a("s_cmp_eq_u32 s66, 1\ns_cselect_b32 s60, 28, 14")
        self.ts(27)
        self.wait_flags(2, False)
        self.ts(12)
        GN = self.GN; NW = self.NW
        gis = lambda s: self.panel96_issue(11, G_BASE, 27, self.p4g(s), ("g", s))
        G0 = min(self.o["g0"], GN)
        for s in range(G0): gis(s)
        ng = G0; nw = NW
        self.ts(28)
        self.vwait([("g", 0)])
        self.ts(29)
        for s in range(27):
            self.bar()
            for _ in range(self.o["per"]):
                if ng <= min(26, max(s - 2, -1) + GN): gis(ng); ng += 1
            if nw <= min(26, s - 2 + NW) and s >= self.o["ws0"] and (s - self.o["ws0"]) % 2 < self.o["wper"]: self.w2_dma(nw); nw += 1
            while nw <= min(26, s + 4): self.w2_dma(nw); nw += 1
            if s + 1 <= 26: self.vwait([("g", s + 1), ("w2", s + 1)])
        self.bar()
        self.fin()

    def build(self):
        a = self.a
        self.prologue()
        a("s_cmp_ge_u32 s22, 4\ns_cbranch_scc0 Lcomp")
        if self.o["lprio"]: a(f"s_setprio {self.o['lprio']}")
        self.p1l(); self.p2l(); self.p3l(); self.p4l()
        a("Lcomp:")
        if self.o["prio"]: a(f"s_setprio {self.o['prio']}")
        self.tprev = None; self.tn = 0
        self.p1c(); self.p2c(); self.p3c(); self.p4c()
        self.csum()
        for x in self.ool: a(x)
        a("Lend:\ns_endpgm")
    def text(self):
        L, n = hazard.fix(self.L)
        nm = self.name
        return "\n".join([f".globl {nm}", ".p2align 8", f".type {nm},@function", f"{nm}:"] + L) + "\n"
    def desc(self):
        return "\n".join([".p2align 6", f".amdhsa_kernel {self.name}",
            "  .amdhsa_next_free_vgpr 256", "  .amdhsa_next_free_sgpr 102", "  .amdhsa_accum_offset 256",
            "  .amdhsa_group_segment_fixed_size 0", "  .amdhsa_kernarg_size 72", "  .amdhsa_user_sgpr_count 2",
            "  .amdhsa_user_sgpr_kernarg_segment_ptr 1", "  .amdhsa_system_sgpr_workgroup_id_x 1",
            "  .amdhsa_float_denorm_mode_32 3",
            ".end_amdhsa_kernel"]) + "\n"

def header():
    ref = open(f"cdna_kernels/{NAME}.s.ref").read().split("\n")
    return [l for l in ref if l.startswith(";") and "@launch" not in l]
def build(dbg=False, opt=None):
    g = G(NAME + "_kernel", dbg, opt); g.build()
    out = header()
    out.append(f"; @launch grid=(256,1,1) block=(512,1,1) lds={LDS}")
    out += ['.amdgcn_target "amdgcn-amd-amdhsa--gfx950"', ".text", g.text(), '.section .rodata,"a"', g.desc()]
    return "\n".join(out)
if __name__ == "__main__":
    path = sys.argv[1]; dbg = False; opt = {}
    for x in sys.argv[2:]:
        if x == "dbg": dbg = True
        else:
            k, v = x.split("="); assert k in OPT, k; opt[k] = int(v)
    txt = build(dbg, opt)
    open(path, "w").write(txt)
    import subprocess
    r = subprocess.run(["clang", "-x", "assembler", "-target", "amdgcn-amd-amdhsa", "-mcpu=gfx950", "-c", path, "-o", "chk.o"], capture_output=True, text=True)
    print(r.stderr[:3000] if r.returncode else "assembled ok", len(txt))
```

```python
import sys
sys.path.insert(0, "dev")
import hazard

NAME = "sequential_preLN__sliding_local_dilated__dense_activation_silu__prompt"
S, D, F = 2048, 640, 1728
CS = 256 * 16
GS = 0x200000
O_BASE = 0
G_BASE = 0
H_BASE = 224 * CS
ST_BASE = 304 * CS
FL_BASE = 0x190000
TS_BASE = 0x1400000
WS_SIZE = 0x1800000
TS2 = 0x1500000
OOB = 0x80000000
LDS = 163840
SX, SWQ, SWO, SW1, SW2, SOUT, SDBG, SWS, SWG = 24, 28, 32, 36, 40, 44, 48, 52, 92
def srd(n): return f"s[{n}:{n+3}]"
A16 = lambda k: 16384 * k

CSUM = 0x194000
OPT = dict(la1=3, rot1=1, rot2=1, rot3=1, rot4=1, fast=1, nA=8, nB=8, nC=2, c0=4, wo0=16, prio=0, lprio=0, ldsc=1, pen=0, osc=1, amp=-1, ampw=37, wb=0, tlb=0, nv=6, w2e=1, h0=2, g0=3, o0=3, per=2, gn=5, ws0=2, wper=2, hfl=0, pt=0, gts=6, sfs=3, ots=-1, gc=64, gtu=-1, i0=2, la2=3, lasw=99, w2v=0, hts=19, pf=0, pb=0, g3u=-1, pth=0, pe=34, tw=0, tst=7, gtp=0, w7=5, w8=2, w9=2, cs0=1, cs1=6, hs8=2, hs9=3)

class G:
    NL = 0
    def __init__(self, name, dbg=False, opt=None):
        self.name = name; self.L = []; self.dbg = dbg
        self.o = dict(OPT); self.o.update(opt or {})
        self.GN = self.o["gn"]; self.NW = 14 if self.GN == 4 else 12
        self.vm = []; self.tprev = None; self.tn = 0; self.ool = []
    def a(self, s):
        for line in s.split("\n"):
            line = line.strip()
            if line: self.L.append(line if line.endswith(":") else "    " + line)
    def lab(self, b="L"):
        G.NL += 1; return f"{b}_{G.NL}"
    def vissue(self, tag): self.vm.append(tag)
    def vwait(self, tags):
        if not isinstance(tags, (list, set)): tags = [tags]
        last = -1
        for i, t in enumerate(self.vm):
            if t in tags: last = i
        if last < 0: return
        n = len(self.vm) - 1 - last
        assert n <= 63, n
        self.a(f"s_waitcnt vmcnt({n})")
        self.vm = self.vm[last + 1:]
    def vreset(self): self.vm = []
    def tc(self, i):
        if self.dbg: self.a(f"s_memtime s[80:81]\ns_waitcnt lgkmcnt(0)\nv_writelane_b32 v255, s80, {i}")
    def ts(self, i):
        if self.dbg: self.a(f"s_memrealtime s[80:81]\ns_waitcnt lgkmcnt(0)\nv_writelane_b32 v255, s80, {i}")
    def bar(self):
        if self.dbg:
            if self.tprev is not None: self.a(f"v_writelane_b32 v{253 + self.tprev // 64}, s84, {self.tprev % 64}")
            self.a("s_memtime s[84:85]")
            self.tprev = self.tn; self.tn += 1
        self.a("s_barrier")
    def prologue(self):
        a = self.a
        a("s_load_dwordx16 s[4:19], s[0:1], 0")
        a("s_load_dwordx2 s[20:21], s[0:1], 64")
        a("s_cmp_ge_u32 s2, 256")
        a("s_cbranch_scc1 Lend")
        a("v_and_b32 v1, 63, v0")
        a("v_lshrrev_b32 v2, 6, v0")
        a("v_readfirstlane_b32 s22, v2")
        a("s_and_b32 s56, s2, 7")
        a("s_lshr_b32 s57, s2, 3")
        a("s_and_b32 s23, s22, 3")
        a("s_and_b32 s58, s57, 7\ns_lshl_b32 s59, s56, 2\ns_lshr_b32 s3, s57, 3\ns_add_u32 s59, s59, s3")
        if self.dbg: a("v_mov_b32 v255, 0\nv_mov_b32 v254, 0\nv_mov_b32 v253, 0")
        self.ts(0); self.tc(16)
    def srds(self, which):
        self.a("s_waitcnt lgkmcnt(0)")
        T = {SX: (4, S*D*2), SWQ: (6, D*3*D*2), SWO: (8, D*D*2), SW1: (12, D*F*2), SW2: (14, F*D*2),
             SOUT: (16, S*D*2), SDBG: (18, 256), SWG: (20, WS_SIZE)}
        for d in which:
            if d == SWS:
                self.a(f"s_lshl_b32 s3, s56, 21\ns_add_u32 s{d}, s20, s3\ns_addc_u32 s{d+1}, s21, 0\ns_mov_b32 s{d+2}, {GS}\ns_mov_b32 s{d+3}, 0x00020000")
                continue
            b, n = T[d]
            self.a(f"s_mov_b32 s{d}, s{b}\ns_mov_b32 s{d+1}, s{b+1}\ns_mov_b32 s{d+2}, {n}\ns_mov_b32 s{d+3}, 0x00020000")
    def fin(self):
        if self.dbg:
            self.a("s_waitcnt vmcnt(0)")
            self.ts(15); self.tc(17)
            if self.o["amp"] >= 0:
                x, y = divmod(self.o["amp"], 100)
                L1 = self.lab("amp"); L2 = self.lab("ampl")
                self.a(f"s_cmp_lg_u32 s2, {self.o['ampw']}\ns_cbranch_scc1 {L1}\ns_cmp_lg_u32 s22, 0\ns_cbranch_scc1 {L1}")
                self.a(f"v_readlane_b32 s60, v255, {x}\nv_readlane_b32 s61, v255, {y}\ns_sub_u32 s60, s61, s60\ns_min_u32 s60, s60, 8000\ns_lshl_b32 s60, s60, 3\nv_readlane_b32 s61, v255, 15\ns_add_u32 s60, s60, s61")
                self.a(f"s_mov_b32 s62, 0x100000\n{L2}:\ns_memrealtime s[80:81]\ns_waitcnt lgkmcnt(0)\ns_sub_u32 s62, s62, 1\ns_cbranch_scc1 {L1}\ns_sub_u32 s61, s80, s60\ns_cmp_lt_i32 s61, 0\ns_cbranch_scc1 {L2}\n{L1}:")
            self.srds([SWG])
            self.a(f"s_lshl_b32 s80, s2, 3\ns_add_u32 s80, s80, s22\ns_lshl_b32 s80, s80, 7\ns_add_u32 s80, s80, {TS_BASE}")
            self.a(f"v_writelane_b32 v{253 + self.tprev // 64}, s84, {self.tprev % 64}")
            self.a(f"v_lshlrev_b32 v2, 2, v1\ns_lshl_b32 s84, s2, 3\ns_add_u32 s84, s84, s22\ns_lshl_b32 s84, s84, 9\ns_add_u32 s84, s84, {TS2}")
            self.a(f"buffer_store_dword v253, v2, {srd(SWG)}, s84 offen\nbuffer_store_dword v254, v2, {srd(SWG)}, s84 offen offset:256")
            self.a(f"v_lshlrev_b32 v2, 2, v1\ns_mov_b32 exec_hi, 0\nbuffer_store_dword v255, v2, {srd(SWG)}, s80 offen")
        self.a("s_endpgm")

    FS = 64
    def flag_clear(self):
        a = self.a
        Lk = self.lab("fc")
        a("s_getreg_b32 s3, hwreg(HW_REG_XCC_ID, 0, 4)\ns_mul_i32 s88, s3, s3\ns_lshl_b32 s88, s88, 10\ns_add_u32 s88, s88, s3\ns_add_u32 s88, s88, 0x800000")
        a(f"s_cmp_lg_u32 s22, 0\ns_cbranch_scc1 {Lk}")
        a(f"v_lshrrev_b32 v2, 3, v1\nv_lshlrev_b32 v2, 11, v2\nv_and_b32 v3, 7, v1\nv_lshl_add_u32 v2, v3, 2, v2")
        a(f"v_mov_b32 v3, 0\ns_mul_i32 s61, s57, {self.FS}\ns_add_u32 s61, s61, {FL_BASE}")
        a(f"s_mov_b32 exec_hi, 0xffff\nbuffer_store_dword v3, v2, {srd(SWS)}, s61 offen sc1\ns_mov_b64 exec, -1")
        a("s_lshl_b32 s61, s56, 5\nv_mov_b32 v3, s88")
        a("s_waitcnt vmcnt(0)")
        a(f"s_mov_b64 exec, 1\nbuffer_atomic_add v3, off, {srd(SDBG)}, s61\ns_mov_b64 exec, -1")
        a(f"{Lk}:")
    def count_check(self):
        a = self.a
        Lk = self.lab("cp"); Lp = self.lab("cpl")
        a("s_mov_b64 exec, 255\ns_mov_b32 s60, 0x100000\ns_mov_b32 s61, 0x10000000")
        a(f"{Lp}:")
        a(f"s_waitcnt vmcnt(0)\nv_cmp_gt_u32 vcc, s61, v96\ns_cbranch_vccz {Lk}")
        a(f"buffer_load_dword v96, v97, {srd(SDBG)}, 0 offen sc1")
        a(f"s_sub_u32 s60, s60, 1\ns_cbranch_scc0 {Lp}")
        a(f"{Lk}:")
        a("s_mov_b64 exec, -1")
        a("s_waitcnt vmcnt(0)\nv_readlane_b32 s3, v96, s56\ns_lshl_b32 s88, s88, 5\ns_cmp_eq_u32 s3, s88\ns_cselect_b64 s[86:87], -1, 0")
        if not self.o["fast"]: a("s_mov_b64 s[86:87], 0")
        if self.o["pen"]:
            Lz = self.lab("pen")
            a(f"s_cmp_lg_u32 s86, 0\ns_cbranch_scc1 {Lz}")
            for _ in range(6): a("s_sleep 127")
            a(f"{Lz}:")
    def hst(self, txt, local=True):
        if not local:
            self.a(txt + " sc1"); return
        L1 = self.lab("slow"); L2 = self.lab("back")
        self.a(f"s_cbranch_vccz {L1}\n{txt}{['', ' nt', ' sc0', ' sc0 nt'][self.o['hfl']]}\n{L2}:")
        self.ool.append(f"{L1}:\ns_nop 7\n{txt} sc1\ns_branch {L2}")
    def signal(self, ph, wreg, local=True):
        a = self.a
        a(f"s_mul_i32 s61, s57, {self.FS}\ns_lshl_b32 s3, {wreg}, 2\ns_add_u32 s61, s61, s3\ns_add_u32 s61, s61, {FL_BASE + ph*64*self.FS}\nv_mov_b32 v3, 1")
        a("s_waitcnt vmcnt(0)")
        a("s_mov_b64 exec, 1")
        self.hst(f"buffer_store_dword v3, off, {srd(SWS)}, s61", local)
        a("s_mov_b64 exec, -1")
    def wait_flags(self, ph, two, extra=None):
        a = self.a
        a(f"s_mul_i32 s61, s61, {self.FS}\ns_add_u32 s61, s61, {FL_BASE + ph*64*self.FS}")
        Lp = self.lab("poll"); Lq = self.lab("pollx")
        if two: a(f"v_lshrrev_b32 v2, 1, v1\nv_mul_u32_u24 v2, {self.FS}, v2\nv_and_b32 v3, 1, v1\nv_lshl_add_u32 v2, v3, 4, v2")
        else: a(f"v_mul_u32_u24 v2, {self.FS}, v1")
        if extra: a(extra)
        a("s_bfm_b64 exec, s60, 0\ns_mov_b32 s60, 0x100000")
        a(f"{Lp}:")
        a(f"buffer_load_dwordx4 v[4:7], v2, {srd(SWS)}, s61 offen sc1")
        a(f"s_sub_u32 s60, s60, 1\ns_cbranch_scc1 {Lq}")
        a("s_waitcnt vmcnt(0)")
        a("v_and_b32 v4, v4, v5\nv_and_b32 v6, v6, v7\nv_and_b32 v4, v4, v6")
        a(f"v_cmp_ne_u32 vcc, 1, v4\ns_cbranch_vccnz {Lp}")
        a(f"{Lq}:")
        a("s_waitcnt vmcnt(0)\ns_mov_b64 exec, -1")
        self.vreset()
    def adv(self, sreg, stride, n):
        self.a(f"s_add_u32 s{sreg}, s{sreg}, {stride}\ns_cmp_eq_u32 s{sreg}, {stride*n}\ns_cselect_b32 s{sreg}, 0, s{sreg}")
    def mk3(self, r):
        self.a(f"v_add_u32 v{r+1}, 0x10000, v{r}\nv_add_u32 v{r+2}, 0x20000, v{r}")
    def ad(self, r, off):
        return f"v{r + (off >> 16)} offset:{off & 0xffff}"

    P1_SLOT = 40960; P1_W = 10240; P1_WS = 15360; P1_ST = 0; P1_QKV = 1024; P1_QS = 488
    def p1x(self, s): return (s % 4) * self.P1_SLOT
    def p1w(self, u): return ((u // 2) % 4) * self.P1_SLOT + self.P1_W + (u % 2) * self.P1_WS
    def p1c(self):
        a = self.a
        KK = 220; MC = 240; MP = 244; MP1 = 248; PM = 92; STT = 180
        self.warm()
        a(f"v_lshrrev_b32 v2, 3, v1\nv_and_b32 v2, 3, v2\nv_mul_u32_u24 v2, {self.P1_SLOT}, v2\nv_and_b32 v3, 7, v1\nv_lshl_add_u32 v2, v3, 4, v2")
        for r in range(4): a(f"v_mov_b32 v{20+r}, 0x3f803f80")
        a("ds_write_b128 v2, v[20:23]")
        self.srds([SWS, SDBG, SX, SWO, SW1, SW2, SOUT])
        self.flag_clear()
        a("v_lshrrev_b32 v10, 2, v1\nv_mul_u32_u24 v10, 480, v10\ns_mul_i32 s3, s23, 40\nv_add_u32 v10, s3, v10\nv_and_b32 v3, 3, v1")
        a("v_add_u32 v13, 1, v3\nv_mul_u32_u24 v13, 160, v13\nv_cmp_gt_u32 vcc, 2, v3\nv_cndmask_b32 v13, 0, v13, vcc\nv_add3_u32 v13, v13, v10, 32")
        a("v_lshl_add_u32 v10, v3, 3, v10")
        a("v_and_b32 v3, 15, v1\nv_lshrrev_b32 v2, 1, v3\nv_lshrrev_b32 v4, 4, v1\nv_xor_b32 v4, v4, v2\nv_lshlrev_b32 v4, 4, v4\nv_lshl_add_u32 v4, v3, 7, v4")
        if self.o["rot1"] == 3: a("s_and_b32 s3, s57, 8\ns_lshl_b32 s3, s3, 3\nv_xor_b32 v4, s3, v4")
        a("v_xor_b32 v7, 64, v4")
        self.mk3(4); self.mk3(7); self.mk3(10); self.mk3(13)
        a("v_lshrrev_b32 v2, 4, v1\nv_mov_b32 v20, 0xf149f2ca\nv_and_b32 v21, 1, v3")
        for r in range(4):
            a(f"v_lshl_add_u32 v22, v2, 2, {r}\nv_cmp_le_u32 vcc, v22, v3\nv_cndmask_b32 v{MC+r}, v20, 0, vcc\nv_cndmask_b32 v{MP+r}, 0, v20, vcc")
            a(f"v_cmp_eq_u32 vcc, {r & 1}, v21\nv_cndmask_b32 v{MC+r}, v20, v{MC+r}, vcc\nv_cndmask_b32 v{MP+r}, v20, v{MP+r}, vcc")
        a("s_cmp_eq_u32 s59, 0\ns_cselect_b64 vcc, -1, 0")
        for r in range(4): a(f"v_cndmask_b32 v{MP1+r}, v{MP+r}, v20, vcc")
        a("v_lshlrev_b32 v23, 4, v21\nv_mov_b32 v24, 0xffff\nv_lshlrev_b32 v23, v23, v24")
        for i in range(2):
            a(f"v_lshl_add_u32 v22, v2, 2, {2*i}\nv_add_u32 v22, v22, v21\nv_cmp_le_u32 vcc, v22, v3")
            a(f"v_cndmask_b32 v{PM+2+i}, 0, v23, vcc\nv_cndmask_b32 v{PM+i}, v23, 0, vcc")
        for t in range(5): a(f"v_mov_b32 v{KK+4*t+2}, 0\nv_mov_b32 v{KK+4*t+3}, 0")
        a(f"s_mul_i32 s3, s23, 2560\ns_add_u32 s3, s3, {self.P1_QKV}")
        a("v_lshl_add_u32 v17, v3, 5, s3\nv_lshl_add_u32 v16, v2, 3, v17")
        a("v_cmp_eq_u32 vcc, 0, v2\nv_cndmask_b32 v22, 24, 16, vcc\nv_add_u32 v17, v17, v22")
        a("v_lshrrev_b32 v18, 2, v1\nv_lshl_add_u32 v18, v18, 5, s3\nv_add_u32 v18, 8, v18")
        a("s_and_b32 s3, s59, 3\ns_lshl_b32 s3, s3, 10")
        a(f"v_lshrrev_b32 v22, 1, v2\nv_lshlrev_b32 v19, 12, v22\nv_and_b32 v22, 1, v2\nv_lshl_add_u32 v19, v22, 3, v19\nv_lshl_add_u32 v19, v3, 4, v19\nv_add_u32 v19, s3, v19")
        a("v_lshl_add_u32 v98, v1, 4, s3")
        a("v_lshlrev_b32 v99, 2, v3\nv_lshlrev_b32 v252, 4, v2")
        a(f"s_mul_i32 s60, s58, 10\ns_lshl_b32 s3, s23, 1\ns_add_u32 s89, s60, s3\ns_lshl_b32 s89, s89, 12")
        a(f"s_lshr_b32 s3, s23, 1\ns_add_u32 s90, s60, s3\ns_add_u32 s90, s90, 8\ns_lshl_b32 s90, s90, 12")
        if self.o["pt"] & 1:
            a("v_and_b32 v22, 7, v1\nv_lshlrev_b32 v22, 7, v22\nv_bfe_u32 v23, v1, 3, 1\nv_lshl_add_u32 v22, v23, 12, v22\ns_and_b32 s3, s59, 3\ns_lshl_b32 s3, s3, 10\nv_add_u32 v22, s3, v22")
            a("v_mov_b32 v97, v22")
        a(f"s_and_b32 s3, s23, 1\ns_lshl_b32 s3, s3, 3\ns_add_u32 s90, s90, s3")
        def otouch():
            if self.o["pt"] & 1: a(f"s_mov_b64 exec, 0xffff\n{self.touch(96, 97, 's89')}\ns_mov_b64 exec, 0xff\n{self.touch(96, 97, 's90')}\ns_mov_b64 exec, -1")
        if self.o["ots"] < 0: otouch()
        def gtouch():
            self.p3_ids()
            a(f"s_lshl_b32 s61, s73, 2\ns_add_u32 s61, s61, s23\ns_lshl_b32 s61, s61, 14\ns_lshl_b32 s3, s72, 4\ns_add_u32 s61, s61, s3\ns_add_u32 s61, s61, {G_BASE}")
            a(f"s_cmp_ge_u32 s57, 28\ns_cselect_b32 s61, {OOB}, s61")
            a(f"v_lshrrev_b32 v202, 4, v1\nv_lshlrev_b32 v202, 12, v202\nv_and_b32 v203, 15, v1\nv_lshl_add_u32 v202, v203, 7, v202\nv_add_u32 v202, s61, v202")
            a(f"buffer_load_dword v96, v202, {srd(SWS)}, 0 offen")
        def htouch():
            self.p24_ids()
            a("v_and_b32 v200, 15, v1\nv_lshlrev_b32 v201, 3, v200\nv_cmp_gt_u32 vcc, s69, v201\nv_lshlrev_b32 v200, 7, v200\nv_lshrrev_b32 v201, 4, v1\nv_lshl_add_u32 v200, v201, 12, v200")
            a(f"s_lshl_b32 s61, s67, 2\ns_add_u32 s61, s61, s23\ns_lshl_b32 s61, s61, 13\ns_lshl_b32 s3, s63, 4\ns_add_u32 s61, s61, s3\ns_add_u32 s61, s61, {H_BASE}")
            a(f"s_cmp_lt_u32 s57, 30\ns_cselect_b32 s61, s61, {OOB}\nv_add_u32 v200, s61, v200")
            a(f"s_mov_b32 exec_lo, vcc_lo\ns_mov_b32 exec_hi, 0\nbuffer_load_dword v96, v200, {srd(SWS)}, 0 offen\ns_mov_b64 exec, -1")
        if self.o["pt"] & 512 and self.o["gtu"] < 0: gtouch()
        if self.o["pt"] & 64:
            a("s_and_b32 s3, s59, 3\ns_lshl_b32 s3, s3, 10\ns_add_u32 s60, s89, s3\ns_and_b32 s61, s23, 1\ns_mul_i32 s61, s61, 504\ns_add_u32 s61, s61, s90\ns_add_u32 s61, s61, s3")
            for k in range(16): a(f"s_buffer_load_dword s96, {srd(SWS)}, s60 offset:{(k//8)*4096 + (k%8)*128}")
            for k in range(4): a(f"s_buffer_load_dword s96, {srd(SWS)}, s61 offset:{k*128}")
        ACC = 100; FB = [20, 56]
        a("s_waitcnt lgkmcnt(0)")
        self.ts(1)
        def reads(u):
            fb = FB[u % 2]; r = []
            for t in range(5):
                r.append(f"ds_read_b128 v[{fb+16+4*t}:{fb+19+4*t}], {self.ad(4 + 3*(u % 2), self.p1x(u//2) + 2048*t)}")
            for j in (3, 0, 2, 1):
                for rd in range(2):
                    r.append(f"ds_read_b64_tr_b16 v[{fb+4*j+2*rd}:{fb+4*j+2*rd+1}], {self.ad(13 if j == 3 else 10, self.p1w(u) + [160, 320, 0, 0][j] + 7680*rd)}")
            return r
        def mfmas(u):
            fb = FB[u % 2]; r = []
            for j in (3, 0, 2, 1):
                for t in range(5):
                    c = ACC + (j*5+t)*4
                    cs = "0" if u == 0 else f"v[{c}:{c+3}]"
                    x, y = f"v[{fb+4*j}:{fb+4*j+3}]", f"v[{fb+16+4*t}:{fb+19+4*t}]"
                    if j == 1: x, y = y, x
                    r.append(f"v_mfma_f32_16x16x32_bf16 v[{c}:{c+3}], {x}, {y}, {cs}")
            return r
        for u in range(20):
            self.bar()
            if u == 0: self.ts(2)
            if u == 10: self.ts(3)
            if u == self.o["ots"]: otouch()
            if self.o["pt"] & 1024 and u == self.o["hts"]: htouch()
            if self.o["pt"] & 512 and u == self.o["gtu"]: gtouch()
            if u == 12:
                a(f"v_lshlrev_b32 v97, 5, v1\nbuffer_load_dword v96, v97, {srd(SDBG)}, 0 offen sc1")
            rd = reads(u); mf = mfmas(u-1) if u else []
            for i in range(max(len(rd), len(mf))):
                if i < len(rd): a(rd[i])
                if i < len(mf): a(mf[i])
            if u == 17: self.count_check()
            a("s_waitcnt lgkmcnt(0)")
        STR = 20; CSR = 32; ONE = 52; QQ = 56; VT = 72; TT = 82
        mf = mfmas(19)
        self.bar()
        self.ts(4)
        rd = [f"ds_read2_b32 v[{STR+2*t}:{STR+2*t+1}], v99 offset0:{16*t} offset1:{80+16*t}" for t in range(5)]
        for t in range(5): rd += [f"ds_read_b128 v[{STT+8*t}:{STT+8*t+3}], v252 offset:{64*t}", f"ds_read_b128 v[{STT+8*t+4}:{STT+8*t+7}], v252 offset:{320+64*t}"]
        for i in range(15): a(rd[i]); a(mf[i])
        def ln(j, ts):
            r = []
            for q in range(4): r.append(f"v_mov_b32_dpp v{CSR+4*j+q}, v{ACC+j*20+q} row_newbcast:0 row_mask:0xf bank_mask:0xf")
            for t in ts:
                c = ACC + (j*5+t)*4
                for p in (0, 2):
                    r.append(f"v_pk_fma_f32 v[{c+p}:{c+p+1}], v[{CSR+4*j+p}:{CSR+4*j+p+1}], v[{STR+2*t}:{STR+2*t+1}], v[{c+p}:{c+p+1}] op_sel:[0,1,0] op_sel_hi:[1,1,1] neg_lo:[0,1,0] neg_hi:[0,1,0]")
            for t in ts:
                c = ACC + (j*5+t)*4
                for p in (0, 2):
                    r.append(f"v_pk_mul_f32 v[{c+p}:{c+p+1}], v[{c+p}:{c+p+1}], v[{STR+2*t}:{STR+2*t+1}] op_sel_hi:[1,0]")
            return r
        def cvt(d, c): a(f"v_cvt_pk_bf16_f32 v{d}, v{c}, v{c+1}\nv_cvt_pk_bf16_f32 v{d+1}, v{c+2}, v{c+3}")
        a("s_waitcnt lgkmcnt(10)")
        x = ln(3, range(5))
        for i, m in enumerate(mf[15:]):
            a(m)
            for y in x[3*i:3*i+3]: a(y)
        for y in x[15:]: a(y)
        a("s_mov_b32 exec_hi, 0xffff")
        for t in range(5): cvt(KK+4*t+2, ACC + (15+t)*4)
        a("s_mov_b32 exec_hi, -1")
        for t in range(5): a(f"ds_write_b64 v16, v[{KK+4*t+2}:{KK+4*t+3}] offset:{512*t}")
        for y in ln(0, range(5)): a(y)
        for t in range(1, 5): a(f"ds_read_b64 v[{QQ+4*t-2}:{QQ+4*t-1}], v17 offset:{512*t}")
        for t in range(5): a(f"ds_read_b64_tr_b16 v[{TT+2*t}:{TT+2*t+1}], v18 offset:{512*t}")
        for t in range(5): cvt(KK+4*t, ACC + t*4)
        for y in ln(2, range(1, 5)): a(y)
        for t in range(1, 5): cvt(QQ+4*t-4, ACC + (10+t)*4)
        a(f"v_mov_b32 v{CSR+4}, v{ACC+20}\nv_mov_b32 v{CSR+5}, v{ACC+20}")
        a("s_waitcnt lgkmcnt(0)")
        self.ts(5)
        SC = lambda t: 100 + 4*(t-1)
        SP = lambda t: 160 + 4*(t-1)
        mf = []
        for t in range(1, 5):
            q = f"v[{QQ+4*t-4}:{QQ+4*t-1}]"; m = MP1 if t == 1 else MP
            mf.append(f"v_mfma_f32_16x16x32_bf16 v[{SC(t)}:{SC(t)+3}], v[{KK+4*t}:{KK+4*t+3}], {q}, v[{MC}:{MC+3}]")
            mf.append(f"v_mfma_f32_16x16x32_bf16 v[{SP(t)}:{SP(t)+3}], v[{KK+4*t-4}:{KK+4*t-1}], {q}, v[{m}:{m+3}]")
        x = [f"v_permlane16_swap_b32 v{CSR+4}, v{CSR+5}", f"v_mov_b32 v{ONE}, 0x3f803f80", f"v_mov_b32 v{CSR+5}, v{CSR+4}", f"v_mov_b32 v{ONE+1}, 0x3f803f80",
             f"v_mov_b32 v{ONE+2}, 0x3f803f80", f"v_permlane32_swap_b32 v{CSR+4}, v{CSR+5}", f"v_mov_b32 v{ONE+3}, 0x3f803f80"]
        for t in range(5):
            c = ACC + (5+t)*4
            for p in (0, 2):
                x.append(f"v_pk_fma_f32 v[{c+p}:{c+p+1}], v[{CSR+4}:{CSR+5}], v[{STT+8*t+4+p}:{STT+8*t+5+p}], v[{c+p}:{c+p+1}] op_sel_hi:[0,1,1] neg_lo:[0,1,0] neg_hi:[0,1,0]")
        for t in range(5):
            c = ACC + (5+t)*4
            for p in (0, 2):
                x.append(f"v_pk_mul_f32 v[{c+p}:{c+p+1}], v[{c+p}:{c+p+1}], v[{STT+8*t+p}:{STT+8*t+p+1}]")
        for i, m in enumerate(mf):
            a(m)
            for y in x[3*i:3*i+3]: a(y)
        for y in x[24:]: a(y)
        for t in range(1, 5):
            for i in range(2):
                e = 20 + 2*(t-1) + i
                a(f"v_max3_f32 v{e}, v{SC(t)+2*i}, v{SC(t)+2*i+1}, v{SP(t)+2*i}\nv_max_f32 v{e}, v{e}, v{SP(t)+2*i+1}")
        for t in range(4): a(f"v_max_f32 v{28+t}, v{20+2*t}, v{21+2*t}")
        V = [(VT+2*t, ACC + (5+t)*4) for t in range(5)]
        SCL = 20 ** -0.5 * 1.4426950408889634
        a(f"s_mov_b32 s3, {SCL!r}")
        cvt(*V[0])
        a("v_permlane32_swap_b32 v28, v29\nv_permlane32_swap_b32 v30, v31\nv_max_f32 v28, v28, v29\nv_max_f32 v30, v30, v31")
        cvt(*V[1])
        a("v_permlane16_swap_b32 v28, v30\nv_max_f32 v28, v28, v30\nv_mul_f32 v28, s3, v28\nv_mov_b32 v30, v28")
        cvt(*V[2])
        a("v_permlane16_swap_b32 v28, v30\nv_mov_b32 v29, v28\nv_mov_b32 v31, v30")
        cvt(*V[3])
        a("v_permlane32_swap_b32 v28, v29\nv_permlane32_swap_b32 v30, v31")
        cvt(*V[4])
        for t in range(4):
            for i in range(2): a(f"v_fma_f32 v{20+2*t+i}, v{20+2*t+i}, s3, -v{28+t}")
        for e in range(8): a(f"v_exp_f32 v{20+e}, v{20+e}")
        PB = 32; OO = 100
        a("s_mov_b64 vcc, s[86:87]")
        def pv(t):
            b = PB + 4*t
            for i in range(2): a(f"v_cvt_pk_bf16_f32 v{20+2*t+i}, v{20+2*t+i}, v{20+2*t+i}")
            for k in range(4): a(f"v_and_b32 v{b+k}, v{20+2*t+k%2}, v{PM+k}")
        def pvm(t):
            b = PB + 4*t; o = OO + 12*t
            a(f"v_mfma_f32_16x16x32_bf16 v[{o+8}:{o+11}], v[{ONE}:{ONE+3}], v[{b}:{b+3}], 0")
            a(f"v_mfma_f32_16x16x32_bf16 v[{o}:{o+3}], v[{VT+2*t}:{VT+2*t+3}], v[{b}:{b+3}], 0")
            a(f"v_mfma_f32_16x16x32_bf16 v[{o+4}:{o+7}], v[{TT+2*t}:{TT+2*t+3}], v[{b}:{b+3}], 0")
        def fin(t):
            o = OO + 12*t
            a(f"v_rcp_f32 v{o+8}, v{o+8}")
            for p in (0, 2, 4, 6): a(f"v_pk_mul_f32 v[{o+p}:{o+p+1}], v[{o+p}:{o+p+1}], v[{o+8}:{o+9}] op_sel_hi:[1,0]")
            cvt(o, o)
            self.hst(f"buffer_store_dwordx2 v[{o}:{o+1}], v19, {srd(SWS)}, s89 offen offset:{256*t}")
            if t == 1: a("s_mov_b32 exec_lo, 0xffff0000")
            if t == 2: a("s_mov_b32 exec_lo, 0")
            if t == 3: a("s_mov_b32 exec_lo, 0\ns_mov_b32 exec_hi, 0xffff0000")
            cvt(150, o+4)
            if t: a("s_mov_b64 exec, -1")
        pv(0); pv(1); pvm(0); pv(2); pvm(1); pv(3); pvm(2); fin(0); pvm(3); fin(1); fin(2); fin(3)
        self.hst(f"buffer_store_dwordx2 v[150:151], v98, {srd(SWS)}, s90 offen")
        self.ts(6)
        self.signal(0, "s23")
        self.ts(18)
        a("s_cmp_ge_u32 s57, 30\ns_cbranch_scc1 Lcsum")
    def warm(self): pass
    def touch(self, dst, addr, soff):
        if self.o["pt"] & 8: return f"buffer_store_dword v1, v{addr}, {srd(SWS)}, {soff} offen"
        return f"buffer_load_dword v{dst}, v{addr}, {srd(SWS)}, {soff} offen"
    def prefetch(self, i0, early=False):
        a = self.a
        E, A, B = self.o["pth"], self.o["pf"], self.o["pb"]
        assert (A - E) % 2 == 0 and (B - A) % 2 == 0
        a(f"s_sub_u32 s60, s57, {i0}\ns_lshl_b32 s60, s60, 2\ns_add_u32 s60, s60, s23\ns_lshl_b32 s60, s60, 13")
        if early: rounds = range(E)
        else:
            rounds = list(range(E, A, 2)) + list(range(B, self.o['pe'], 2)) if i0 == 30 else range(A, B, 2)
            a("s_lshr_b32 s3, s22, 2\ns_lshl_b32 s3, s3, 16\ns_add_u32 s60, s60, s3")
        a("v_lshl_add_u32 v4, v1, 7, s60")
        for k, r in enumerate(rounds):
            a(f"v_add_u32 v6, {r << 16}, v4\nbuffer_load_dword v7, v6, {srd(SW2)}, 0 offen")
            a(f"s_waitcnt vmcnt({0 if early else 1})")
        a("s_waitcnt vmcnt(0)")
    def csum_addr(self, r):
        a = self.a
        a("s_sub_u32 s60, s57, 30\ns_lshl_b32 s60, s60, 3\ns_add_u32 s60, s60, s56")
        a(f"v_lshrrev_b32 v2, 4, v1\nv_and_b32 v3, 15, v1\nv_mul_u32_u24 v{r}, 3456, v2\nv_lshl_add_u32 v{r}, v3, 4, v{r}")
        a(f"s_mul_i32 s91, s22, {80*3456}\ns_lshl_b32 s3, s60, 8\ns_add_u32 s91, s91, s3")
        a(f"s_cmp_ge_u32 s60, 14\ns_cselect_b32 s3, {OOB}, 0\nv_or_b32 v{r}, s3, v{r}")
    def csum_ld(self, n, r, emit=True):
        x = f"buffer_load_dwordx4 v[{60+4*n}:{63+4*n}], v{r}, {srd(SW1)}, s91 offen\ns_add_u32 s91, s91, {4*3456}"
        if emit: self.a(x)
        return x
    def csum(self):
        a = self.a
        a("Lcsum:")
        self.csum_addr(4)
        for n in range(20): self.csum_ld(n, 4)
        a("v_mov_b32 v5, 0\nds_write_b32 v5, v5 offset:20480\ns_waitcnt lgkmcnt(0)\ns_barrier")
        a("Lcsum2:")
        a("v_lshrrev_b32 v2, 4, v1\nv_and_b32 v3, 15, v1")
        for e in range(8): a(f"v_mov_b32 v{10+e}, 0")
        a("v_mov_b32 v8, 0x00003f80\nv_mov_b32 v9, 0x3f800000")
        for n in range(20):
            a(f"s_waitcnt vmcnt({19-n})")
            for d in range(4):
                a(f"v_dot2c_f32_bf16 v{10+2*d}, v{60+4*n+d}, v8\nv_dot2c_f32_bf16 v{11+2*d}, v{60+4*n+d}, v9")
        for e in range(4): a(f"v_permlane32_swap_b32 v{10+e}, v{14+e}")
        for e in range(4): a(f"v_add_f32 v{10+e}, v{10+e}, v{14+e}")
        for e in range(2): a(f"v_permlane16_swap_b32 v{10+e}, v{12+e}")
        for e in range(2): a(f"v_add_f32 v{10+e}, v{10+e}, v{12+e}")
        a("v_lshlrev_b32 v3, 5, v3\nv_lshl_add_u32 v3, v2, 3, v3\ns_lshl_b32 s3, s22, 9\nv_add_u32 v3, s3, v3")
        a("ds_write_b64 v3, v[10:11] offset:16384\ns_waitcnt lgkmcnt(0)")
        a("s_cmp_ge_u32 s22, 4\ns_cbranch_scc1 Lcspf")
        a("v_mov_b32 v4, 1\nds_add_u32 v5, v4 offset:20480\ns_waitcnt lgkmcnt(0)")
        a("s_cmp_lg_u32 s22, 0\ns_cbranch_scc1 Lcsx\ns_cmp_ge_u32 s60, 14\ns_cbranch_scc1 Lcsx")
        a("s_mov_b32 s61, 0x100000\nLcsw:\nds_read_b32 v4, v5 offset:20480\ns_waitcnt lgkmcnt(0)\nv_readfirstlane_b32 s3, v4")
        a("s_sub_u32 s61, s61, 1\ns_cbranch_scc1 Lcsv\ns_cmp_lg_u32 s3, 256\ns_cbranch_scc1 Lcsw\nLcsv:")
        a("v_lshlrev_b32 v3, 3, v1")
        for w in range(8): a(f"ds_read_b64 v[{20+2*w}:{21+2*w}], v3 offset:{16384 + 512*w}")
        a("s_waitcnt lgkmcnt(0)")
        for w in range(1, 8): a(f"v_pk_add_f32 v[20:21], v[20:21], v[{20+2*w}:{21+2*w}]")
        self.srds([SWG])
        a(f"s_lshl_b32 s61, s60, 9\ns_add_u32 s61, s61, {CSUM}")
        for g in range(8):
            a(f"buffer_store_dwordx2 v[20:21], v3, {srd(SWG)}, s61 offen sc1\ns_add_u32 s61, s61, {GS}")
        a(f"s_mul_i32 s61, s60, {self.FS}\ns_add_u32 s61, s61, {FL_BASE + (64 + 32)*self.FS}\nv_mov_b32 v4, 1")
        a("v_lshrrev_b32 v3, 2, v1\nv_lshlrev_b32 v3, 21, v3\nv_and_b32 v5, 3, v1\nv_lshl_add_u32 v3, v5, 2, v3")
        a("s_waitcnt vmcnt(0)")
        a(f"s_mov_b32 exec_hi, 0\nbuffer_store_dword v4, v3, {srd(SWG)}, s61 offen sc1\ns_mov_b64 exec, -1")
        a("s_waitcnt vmcnt(0)")
        self.ts(24)
        a("s_branch Lcsx\nLcspf:\ns_barrier")
        if self.o["pf"]: self.prefetch(30, True)
        a("Lcsx:")
        if self.o["pf"]:
            a("s_barrier")
            self.prefetch(30)
            self.ts(25)
        if self.o["wb"]:
            a("s_cmp_lg_u32 s22, 0\ns_cbranch_scc1 Lcsy\ns_cmp_lg_u32 s57, 31\ns_cbranch_scc1 Lcsy")
            if self.o["wb"] & 2:
                a("s_mov_b32 s61, 0\ns_mov_b32 s60, 30")
                self.wait_flags(1, False)
                a("buffer_wbl2 sc1\ns_waitcnt vmcnt(0)")
            a("s_mov_b32 s61, 0\ns_mov_b32 s60, 28")
            self.wait_flags(2, False)
            self.ts(24)
            a("buffer_wbl2 sc1\ns_waitcnt vmcnt(0)")
            self.ts(25)
            a("Lcsy:")
        self.tprev = 20
        self.fin()
    W1R = [152, 168, 184, 200, 216, 232]
    def bg_init(self):
        self.bg = [(s, n) for s in range(self.o["nv"]) for n in range(4)]
    def bg_issue(self, cnt):
        a = self.a
        while cnt > 0 and self.bg:
            s, n = self.bg.pop(0); cnt -= 1
            r = self.W1R[s] + 4*n
            a(f"s_add_u32 s61, s76, {4*n*3456}")
            a(f"buffer_load_dwordx4 v[{r}:{r+3}], v16, {srd(SW1)}, s61 offen")
            if n == 3: self.adv(76, 64*3456, 10)
            self.vissue(("w1", s))
    def w1_flush(self, s):
        self.vwait([("w1", s)])
        r = self.W1R[s]
        for n in range(4): self.a(f"ds_write_b128 v{14 + (self.p3w(s) >> 16)}, v[{r+4*n}:{r+4*n+3}] offset:{(self.p3w(s) & 0xffff) + n*1024}")
    def w1_dma(self, s):
        a = self.a
        for n in range(4):
            a(f"s_add_u32 m0, s64, {self.p3w(s) + n*1024}")
            a(f"s_add_u32 s61, s76, {4*n*3456}")
            a(f"buffer_load_dwordx4 v16, {srd(SW1)}, s61 offen lds")
            self.vissue(("w1", s))
        self.adv(76, 64*3456, 10)
    def w2_dma(self, u):
        a = self.a
        for ks in range(2):
            a(f"s_add_u32 m0, s79, {self.p4w(u) + ks*4096}")
            a(f"s_add_u32 s61, s83, {32*ks*1280}")
            a(f"buffer_load_dwordx4 v17, {srd(SW2)}, s61 offen lds")
            self.vissue(("w2", u))
        self.adv(83, 64*1280, 27)
    def w2r(self, u): return 52 + 8*(u if u < 9 else u - 3)
    def w2_reg(self, u):
        a = self.a
        for ks in range(2):
            r = self.w2r(u) + 4*ks
            a(f"s_add_u32 s61, s83, {32*ks*1280}")
            a(f"buffer_load_dwordx4 v[{r}:{r+3}], v17, {srd(SW2)}, s61 offen")
            self.vissue(("w2", u))
        self.adv(83, 64*1280, 27)
    def w2_flush(self, u):
        for ks in range(2):
            r = self.w2r(u) + 4*ks; o = self.p4w(u) + ks*4096
            self.a(f"ds_write_b128 v{[19, 9][o >> 16]}, v[{r}:{r+3}] offset:{o & 0xffff}")
    def p1l(self):
        a = self.a
        LA = self.o["la1"]
        self.vreset()
        a("s_lshl_b32 s60, s59, 6\ns_sub_u32 s60, s60, 16")
        a("s_mul_i32 s3, s23, 20\nv_lshrrev_b32 v14, 3, v1\nv_add_u32 v14, s3, v14\nv_and_b32 v13, 7, v1")
        for n in range(3):
            a(f"v_add_u32 v2, {8*n}, v14\nv_lshrrev_b32 v3, 1, v2\nv_and_b32 v3, 7, v3\nv_xor_b32 v3, v3, v13")
            a(f"v_add_u32 v2, s60, v2\nv_max_i32 v2, 0, v2\nv_mul_u32_u24 v2, 1280, v2\nv_lshl_add_u32 v{15+n}, v3, 4, v2")
        a("v_cmp_le_u32 vcc, 30, v1\nv_cndmask_b32 v2, 0, 1, vcc")
        a("v_mul_u32_u24 v3, 30, v2\nv_sub_u32 v3, v1, v3")
        a("v_mul_u32_u24 v4, 26, v3\nv_lshrrev_b32 v4, 8, v4")
        a("v_mul_u32_u24 v5, 10, v4\nv_sub_u32 v5, v3, v5")
        a("v_mul_u32_u24 v18, 3840, v2\nv_mul_u32_u24 v4, 1280, v4\nv_add_u32 v18, v18, v4\nv_lshl_add_u32 v18, v5, 4, v18")
        a("s_and_b32 s3, s23, 1\ns_lshl_b32 s3, s3, 4\ns_lshr_b32 s61, s23, 1\ns_lshl_b32 s61, s61, 2\ns_add_u32 s3, s3, s61")
        a("s_mul_i32 s3, s3, 3840\ns_mul_i32 s61, s58, 160\ns_add_u32 s3, s3, s61\nv_add_u32 v18, s3, v18")
        a(f"s_mul_i32 s64, s23, {4*960}\ns_mul_i32 s65, s23, 2560")
        a("s_cmp_eq_u32 s23, 0\ns_cselect_b32 s78, 0xffffff00, -1")
        if self.o["rot1"] == 3:
            a("s_and_b32 s3, s57, 3\ns_lshl_b32 s3, s3, 1\ns_bfe_u32 s61, s57, 0x10002\ns_add_u32 s3, s3, s61")
            a("s_lshr_b32 s61, s57, 4\ns_mul_i32 s61, s61, 5\ns_add_u32 s3, s3, s61\ns_bfe_u32 s62, s57, 0x10003\ns_lshl_b32 s61, s62, 2\ns_add_u32 s3, s3, s61")
            a("s_sub_u32 s61, s3, 10\ns_cmp_ge_u32 s3, 10\ns_cselect_b32 s3, s61, s3")
            a(f"s_lshl_b32 s75, s3, 7\ns_lshl_b32 s3, s3, 1\ns_add_u32 s3, s3, s62\ns_mul_i32 s76, s3, {32*3840}")
            a(f"s_cmp_eq_u32 s62, 0\ns_cselect_b32 s96, 1, -1\ns_mul_i32 s96, s96, 128\ns_cselect_b32 s97, 1280, s96\ns_cselect_b32 s98, 0, {9*128}")
            a(f"s_mul_i32 s99, s96, 960\ns_cselect_b32 s100, {20*32*3840}, s99\ns_cselect_b32 s101, 0, {19*32*3840}")
        elif self.o["rot1"]:
            a("s_and_b32 s3, s57, 7\ns_lshr_b32 s61, s57, 3")
            a("s_mul_i32 s3, s3, 5\ns_lshr_b32 s3, s3, 2")
            if self.o["rot1"] == 1:
                a("s_mul_i32 s61, s61, 5\ns_lshr_b32 s61, s61, 1\ns_add_u32 s3, s3, s61")
                a("s_sub_u32 s61, s3, 10\ns_cmp_ge_u32 s3, 10\ns_cselect_b32 s3, s61, s3")
            a(f"s_lshl_b32 s75, s3, 7\ns_mul_i32 s76, s3, {64*3840}")
        else:
            a("s_mov_b32 s75, 0\ns_mov_b32 s76, 0")
        self.srds([SX, SWQ])
        self.ts(1)
        def xiss(s):
            for n in range(3):
                a(f"s_add_u32 m0, s65, {self.p1x(s) + n*1024}")
                if n == 0: a("s_mov_b32 exec_lo, s78")
                if n == 1: a("s_mov_b32 exec_lo, -1")
                if n == 2: a("s_mov_b32 exec_hi, 0")
                a(f"buffer_load_dwordx4 v{15+n}, {srd(SX)}, s75 offen lds")
                self.vissue(("x", s))
            a("s_mov_b32 exec_hi, -1")
            if self.o["rot1"] == 3: a("s_add_u32 s75, s75, s96\ns_cmp_eq_u32 s75, s97\ns_cselect_b32 s75, s98, s75")
            else: self.adv(75, 128, 10)
        def wiss(u):
            a("s_mov_b32 exec_hi, 0x0fffffff")
            for jj in range(4):
                a(f"s_add_u32 m0, s64, {self.p1w(u) + jj*960}")
                a(f"s_add_u32 s61, s76, {[0, 2, 8, 10][jj] * 3840}")
                a(f"buffer_load_dwordx4 v18, {srd(SWQ)}, s61 offen lds")
                self.vissue(("w", u))
            a("s_mov_b32 exec_hi, -1")
            if self.o["rot1"] == 3: a("s_add_u32 s76, s76, s99\ns_cmp_eq_u32 s76, s100\ns_cselect_b32 s76, s101, s76")
            else: self.adv(76, 32*3840, 20)
        def iss(u):
            if u % 2 == 0: xiss(u // 2)
            wiss(u)
        nis = self.o["i0"]
        for u in range(nis):
            iss(u)
            if u == 0: self.ts(2)
        self.ts(3)
        self.srds([SWS, SWO, SW1, SW2])
        for r in range(6): a(f"v_mov_b32 v{20+r}, 0")
        a("v_lshlrev_b32 v26, 4, v1\nv_add_u32 v26, s65, v26\nv_mov_b32 v12, 0x3f803f80")
        self.mk3(26)
        self.p24_ids()
        self.p2_wo_setup()
        self.ts(4)
        if self.dbg: self.vwait([("x", 0)]); self.ts(5)
        self.vwait([("w", 0)])
        self.ts(6)
        nwo = 0
        for u in range(20):
            self.bar()
            if u == 19:
                for m in ("quad_perm:[1,0,3,2]", "quad_perm:[2,3,0,1]", "row_half_mirror"):
                    for r in range(6): a(f"v_add_f32_dpp v{20+r}, v{20+r}, v{20+r} {m} row_mask:0xf bank_mask:0xf")
                for n in range(3):
                    m_, q_ = 33 + 2*n, 21 + 2*n
                    a(f"v_mul_f32 v{m_}, {1.0/640!r}, v{20+2*n}\nv_mul_f32 v{q_}, {1.0/640!r}, v{q_}")
                    a(f"v_fma_f32 v{q_}, -v{m_}, v{m_}, v{q_}\nv_max_f32 v{q_}, 0, v{q_}\nv_add_f32 v{q_}, 1e-5, v{q_}\nv_rsq_f32 v{m_-1}, v{q_}")
                a("v_lshlrev_b32 v2, 2, v14")
            if u == 19:
                a("ds_write2_b32 v2, v32, v33 offset1:80\nds_write2_b32 v2, v34, v35 offset0:8 offset1:88")
                a("s_mov_b32 exec_hi, 0\nds_write2_b32 v2, v36, v37 offset0:16 offset1:96\ns_mov_b32 exec_hi, -1")
            for _ in range(2):
                if nis <= min(19, u + (LA if u < self.o["lasw"] else self.o["la2"])): iss(nis); nis += 1
            if u >= self.o["wo0"]: self.p2_wo_issue(nwo); nwo += 1
            if u % 2 == 0:
                for n in range(3): a(f"ds_read_b128 v[{32+4*n}:{35+4*n}], {self.ad(26, self.p1x(u//2) + n*1024)}")
                a("s_waitcnt lgkmcnt(0)")
                for d in range(4):
                    for n in range(3):
                        a(f"v_dot2c_f32_bf16 v{20+2*n}, v{32+4*n+d}, v12\nv_dot2c_f32_bf16 v{21+2*n}, v{32+4*n+d}, v{32+4*n+d}")
            if u == 19: a("s_waitcnt lgkmcnt(0)")
            if u + 1 <= 19: self.vwait([("w", u + 1)])
        self.bar()
        for k in range(nwo, 5): self.p2_wo_issue(k)
        a("s_cmp_ge_u32 s57, 30\ns_cbranch_scc1 Lcsum2")
        if self.o["pt"] & 2:
            a("v_and_b32 v2, 15, v1\nv_lshlrev_b32 v3, 3, v2\nv_cmp_gt_u32 vcc, s69, v3\nv_lshlrev_b32 v2, 7, v2\nv_lshrrev_b32 v3, 4, v1\nv_lshl_add_u32 v2, v3, 12, v2")
            a(f"v_mov_b32 v3, {OOB}\nv_cndmask_b32 v2, v3, v2, vcc")
            a(f"s_lshl_b32 s61, s67, 2\ns_add_u32 s61, s61, s23\ns_lshl_b32 s61, s61, 13\ns_lshl_b32 s3, s63, 4\ns_add_u32 s61, s61, s3\ns_add_u32 s61, s61, {H_BASE}")
            a(f"s_mov_b32 exec_hi, 0\n{self.touch(60, 2, 's61')}\ns_mov_b32 exec_hi, -1")
            self.vissue("pt")
        self.p3_w_setup()
        self.bg_init()
        self.bg_issue(self.o["nA"])
        self.p4_w_setup()
        self.ts(18)

    def p24_ids(self):
        a = self.a
        a("s_mul_i32 s66, s57, 26\ns_lshr_b32 s66, s66, 8\ns_mul_i32 s3, s66, 10\ns_sub_u32 s67, s57, s3")
        a("s_lshl_b32 s68, s56, 8\ns_mul_i32 s63, s66, 88\ns_add_u32 s68, s68, s63")
        a("s_cmp_eq_u32 s66, 2\ns_cselect_b32 s69, 0, 8\ns_add_u32 s69, s69, 80")
    def w64_addr(self, dst, Drows):
        a = self.a
        a("v_lshrrev_b32 v2, 3, v1\nv_and_b32 v3, 3, v2\nv_lshrrev_b32 v4, 2, v2")
        a(f"v_mul_u32_u24 v4, {Drows}, v4\nv_add_u32 v3, v3, v4\nv_mul_u32_u24 v{dst}, 1280, v3")
        a("v_lshrrev_b32 v2, 4, v1\nv_lshlrev_b32 v2, 1, v2\nv_and_b32 v3, 7, v1\nv_xor_b32 v3, v3, v2")
        a(f"v_lshl_add_u32 v{dst}, v3, 4, v{dst}")
        a(f"s_lshl_b32 s3, s67, 7\nv_add_u32 v{dst}, s3, v{dst}")
    def panel96_addr(self, dst):
        a = self.a
        for n in range(3):
            a(f"v_add_u32 v2, {64*n}, v1\nv_cmp_le_u32 vcc, 96, v2\nv_cndmask_b32 v3, 0, 1, vcc")
            a("v_mul_u32_u24 v4, 96, v3\nv_sub_u32 v2, v2, v4")
            a("s_lshl_b32 s3, s23, 1\nv_add_u32 v3, s3, v3")
            a(f"v_mul_u32_u24 v3, {CS}, v3\nv_add_u32 v4, s63, v2\nv_lshl_add_u32 v3, v4, 4, v3")
            a(f"v_cmp_gt_u32 vcc, s69, v2\nv_mov_b32 v4, {OOB}\nv_cndmask_b32 v{dst+n}, v4, v3, vcc")
    def panel96_issue(self, areg, gbase, nst, ldsbase, tag):
        a = self.a
        a(f"s_add_u32 s61, s75, {gbase}")
        for n in range(3):
            a(f"s_add_u32 m0, s65, {ldsbase + n*1024}")
            a(f"buffer_load_dwordx4 v{areg+n}, {srd(SWS)}, s61 offen {['', 'sc1', 'nt', 'sc0 sc1', 'sc1 nt'][self.o['ldsc']]} lds")
            self.vissue(tag)
        self.adv(75, 8*CS, nst)
    def c24_addr(self):
        a = self.a
        a("s_lshr_b32 s70, s23, 1\ns_and_b32 s71, s23, 1")
        a("v_lshrrev_b32 v11, 3, v1\nv_and_b32 v11, 3, v11\ns_lshl_b32 s3, s71, 1\nv_xor_b32 v11, s3, v11")
        a("v_lshrrev_b32 v2, 2, v1\nv_lshlrev_b32 v2, 7, v2\nv_and_b32 v3, 3, v1\nv_lshl_add_u32 v2, v3, 3, v2")
        a("v_xor_b32 v3, 1, v11\nv_lshl_add_u32 v5, v3, 5, v2\nv_lshl_add_u32 v2, v11, 5, v2")
        self.mk3(2); self.mk3(5)
        a("v_lshrrev_b32 v8, 4, v1\nv_mul_u32_u24 v8, 1536, v8\nv_and_b32 v11, 15, v1\nv_lshl_add_u32 v8, v11, 4, v8")
        a("s_mul_i32 s3, s70, 768\nv_add_u32 v8, s3, v8")
        self.mk3(8)
    def c24_loop(self, nst, aoff, boff, ACC, tsb):
        a = self.a
        def reads(u):
            s, ks = divmod(u, 2); f = 20 + 20*(u % 4); r = []
            for j in range(2):
                for rd in range(2):
                    r.append(f"ds_read_b64_tr_b16 v[{f+4*j+2*rd}:{f+4*j+2*rd+1}], {self.ad(2+3*j, aoff(s) + ks*4096 + rd*2048)}")
            for t in range(3):
                r.append(f"ds_read_b128 v[{f+8+4*t}:{f+11+4*t}], {self.ad(8, boff(s) + ks*4*1536 + t*256)}")
            return [r[0], r[4], r[1], r[5], r[2], r[3], r[6]]
        def mfmas(u):
            f = 20 + 20*(u % 4); r = []
            for j in range(2):
                for t in range(3):
                    c = ACC + (t*2+j)*4
                    cs = "0" if u == 0 else f"v[{c}:{c+3}]"
                    r.append(f"v_mfma_f32_16x16x32_bf16 v[{c}:{c+3}], v[{f+4*j}:{f+4*j+3}], v[{f+8+4*t}:{f+11+4*t}], {cs}")
            return r
        n = 2*nst
        self.bar()
        self.ts(tsb)
        for x in reads(0) + reads(1): a(x)
        for u in range(n):
            nu = u + 2
            if nu < n and nu % 2 == 0: self.bar()
            if u == nst: self.ts(tsb+1)
            a(f"s_waitcnt lgkmcnt({7 if u + 1 < n else 0})")
            if u == n - 1:
                self.bar(); self.ts(tsb+2)
            rd = reads(nu) if nu < n else []
            mf = mfmas(u)
            for i, m in enumerate(mf):
                a(m)
                if i < len(rd): a(rd[i])
            for x in rd[len(mf):]: a(x)
    def c24_rowaddr(self):
        a = self.a
        a("v_and_b32 v12, 15, v1\ns_mul_i32 s3, s70, 48\nv_add_u32 v12, s3, v12")
        a("v_lshrrev_b32 v13, 4, v1\nv_and_b32 v14, 1, v13\nv_lshlrev_b32 v14, 1, v14\nv_lshrrev_b32 v11, 1, v13\nv_add_u32 v14, v14, v11")
        a("s_lshl_b32 s3, s71, 2\nv_add_u32 v14, s3, v14")
    def c24_addr_rm(self, dst):
        a = self.a
        for t in range(3):
            a(f"v_add_u32 v11, {16*t}, v12\nv_cmp_gt_u32 vcc, s69, v11\nv_add_u32 v11, s68, v11\nv_mul_u32_u24 v11, 1280, v11")
            a(f"v_lshl_add_u32 v11, v14, 4, v11\ns_lshl_b32 s3, s67, 7\nv_add_u32 v11, s3, v11")
            a(f"v_mov_b32 v{dst+t}, {OOB}\nv_cndmask_b32 v{dst+t}, v{dst+t}, v11, vcc")
    def c24_addr_panel(self, dst):
        a = self.a
        for t in range(3):
            a(f"s_lshl_b32 s3, s67, 3\nv_add_u32 v{dst+t}, s3, v14\nv_mul_u32_u24 v{dst+t}, {CS}, v{dst+t}")
            a(f"v_add_u32 v11, {16*t}, v12\nv_cmp_gt_u32 vcc, s69, v11\nv_add_u32 v11, s63, v11")
            a(f"v_lshl_add_u32 v11, v11, 4, v{dst+t}")
            a(f"v_mov_b32 v{dst+t}, {OOB}\nv_cndmask_b32 v{dst+t}, v{dst+t}, v11, vcc")
    def c24_sum(self, ACC, RES, OUT, T, store):
        a = self.a
        for t in range(3):
            A = ACC + t*8; B = A + 4
            for d in range(4):
                a(f"v_lshlrev_b32 v{T+2*d}, 16, v{RES+4*t+d}\nv_and_b32 v{T+2*d+1}, 0xffff0000, v{RES+4*t+d}")
            for r in range(4): a(f"v_permlane16_swap_b32 v{A+r}, v{B+r}")
            for d in range(4):
                a(f"v_pk_add_f32 v[{T+2*d}:{T+2*d+1}], v[{T+2*d}:{T+2*d+1}], v[{A+2*d}:{A+2*d+1}]")
            for d in range(4):
                a(f"v_cvt_pk_bf16_f32 v{OUT+4*t+d}, v{T+2*d}, v{T+2*d+1}")
            store(t)

    P2_WO = 81920; P2_RING = 0; P2_NS = 6
    HREG = 240
    def p2_wo_setup(self):
        a = self.a
        self.w64_addr(44, 8); self.w64_addr(45, 40)
        self.csum_addr(46)
        a(f"s_mul_i32 s77, s23, {160*1280}\ns_mul_i32 s79, s23, 5")
        if self.o["rot2"]:
            a("s_lshl_b32 s3, s67, 1\ns_add_u32 s79, s79, 20\ns_sub_u32 s79, s79, s3\ns_sub_u32 s3, s79, 20\ns_cmp_ge_u32 s79, 20\ns_cselect_b32 s79, s3, s79")
        a("s_lshl_b32 s79, s79, 12")
    def p2_wo_issue(self, kk):
        a = self.a
        L1 = self.lab("csl"); L2 = self.lab("csb")
        a(f"s_cmp_ge_u32 s57, 30\ns_cbranch_scc1 {L1}")
        self.ool.append(f"{L1}:\n" + "\n".join(self.csum_ld(4*kk + n, 46, False) for n in range(4)) + f"\ns_branch {L2}")
        for io in range(4):
            q = 4*kk + 2*(io % 2); rd = io // 2; hg = q // 10; c = q % 10
            if c < 8: row = 80*hg + 20*(c//2) + 4*rd; reg = 44
            else: row = 80*hg + 20*rd + 16; reg = 45
            a(f"s_add_u32 m0, s79, {self.P2_WO + io*1024}")
            a(f"s_add_u32 s61, s77, {row*1280}")
            a(f"buffer_load_dwordx4 v{reg}, {srd(SWO)}, s61 offen lds")
            self.vissue("wo")
        self.adv(79, 4096, 20)
        a(f"{L2}:")
    def p2c(self):
        a = self.a
        self.p24_ids(); self.c24_addr(); self.c24_rowaddr()
        XR = 220
        self.c24_addr_rm(16)
        for t in range(3):
            a(f"buffer_load_dwordx4 v[{XR+4*t}:{XR+4*t+3}], v{16+t}, {srd(SX)}, 0 offen")
        self.c24_addr_panel(16)
        if self.o["pt"] & 16:
            a(f"s_mov_b32 s61, {H_BASE}")
            for t in range(3): a(f"buffer_load_dword v19, v{16+t}, {srd(SWS)}, s61 offen")
        if self.o["pt"] & 128:
            a(f"s_sub_u32 s3, s69, 48\ns_mul_i32 s3, s3, s70\ns_add_u32 s3, s3, s63\ns_lshl_b32 s3, s3, 4\ns_lshl_b32 s61, s67, 1\ns_add_u32 s61, s61, s71\ns_lshl_b32 s61, s61, 14\ns_add_u32 s61, s61, s3")
            for k in range(24): a(f"s_buffer_load_dword s96, {srd(SWS)}, s61 offset:{H_BASE + (k//6)*4096 + (k%6)*128}")
        a("v_and_b32 v232, 1, v13\nv_lshl_add_u32 v232, v232, 4, v12\nv_add_u32 v233, 32, v12\nv_lshrrev_b32 v11, 1, v13\nv_lshlrev_b32 v11, 2, v11")
        a(f"v_mov_b32 v15, {OOB}")
        for r in (232, 233):
            a(f"v_cmp_gt_u32 vcc, s69, v{r}\nv_add_u32 v{r}, s63, v{r}\nv_lshl_add_u32 v{r}, v{r}, 3, v11\nv_cndmask_b32 v{r}, v15, v{r}, vcc")
        a(f"s_lshl_b32 s60, s67, 1\ns_add_u32 s60, s60, s71\ns_lshl_b32 s60, s60, 11\ns_add_u32 s60, s60, {ST_BASE}")
        ACC = 100
        if self.o["pt"] & 128: a("s_waitcnt lgkmcnt(0)"); self.ts(23)
        self.c24_loop(10, lambda s: self.P2_WO + s*8192, lambda s: self.P2_RING + ((s + 1) % self.P2_NS)*12288, ACC, 7)
        a("s_waitcnt vmcnt(0)")
        H = self.HREG
        a(f"s_mov_b32 s61, {H_BASE}")
        a("s_mov_b64 vcc, s[86:87]")
        self.c24_sum(ACC, XR, H, 32, lambda t: self.hst(f"buffer_store_dwordx4 v[{H+4*t}:{H+4*t+3}], v{16+t}, {srd(SWS)}, s61 offen"))
        self.ts(19)
        a("v_mov_b32 v30, 0x3f803f80")
        for t in range(6): a(f"v_mov_b32 v{20+t}, 0")
        for d in range(4):
            for t in range(3):
                a(f"v_dot2c_f32_bf16 v{20+2*t}, v{H+4*t+d}, v30\nv_dot2c_f32_bf16 v{21+2*t}, v{H+4*t+d}, v{H+4*t+d}")
        self.signal(1, "s23")
        self.ts(20)
        for t in range(3): a(f"v_permlane32_swap_b32 v{20+2*t}, v{21+2*t}")
        for t in range(3): a(f"v_add_f32 v{20+2*t}, v{20+2*t}, v{21+2*t}")
        a("v_mov_b32 v25, v24")
        a("v_permlane16_swap_b32 v20, v22\nv_permlane16_swap_b32 v24, v25")
        a("v_add_f32 v20, v20, v22\nv_add_f32 v24, v24, v25")
        self.hst(f"buffer_store_dword v20, v232, {srd(SWS)}, s60 offen")
        self.hst(f"buffer_store_dword v24, v233, {srd(SWS)}, s60 offen")
        a("s_waitcnt vmcnt(0)\ns_mov_b64 exec, 1")
        self.hst(f"buffer_store_dword v3, off, {srd(SWS)}, s61 offset:16")
        a("s_mov_b64 exec, -1")
    def p2l(self):
        a = self.a
        self.panel96_addr(11)
        a("s_mul_i32 s65, s23, 3072")
        a(f"s_mul_i32 s75, s67, {8*CS}" if self.o["rot2"] else "s_mov_b32 s75, 0")
        a("v_lshlrev_b32 v14, 4, v1\nv_add_u32 v14, s64, v14\nv_add_u32 v15, 0x10000, v14\ns_lshl_b32 s79, s23, 10\nv_lshl_add_u32 v19, v1, 4, s79\nv_add_u32 v9, 0x10000, v19")
        a("s_lshl_b32 s61, s66, 3\ns_mov_b32 s60, 16")
        self.wait_flags(0, False)
        self.ts(7)
        NS = self.P2_NS
        iss = lambda s: self.panel96_issue(11, O_BASE, 10, self.P2_RING + ((s + 1) % NS)*12288, ("o", s))
        no = self.o["o0"]
        for s in range(no): iss(s)
        self.vwait([("o", 0)])
        for s in range(10):
            self.bar()
            for _ in range(self.o["per"]):
                if no <= min(9, max(s - 2, -1) + NS): iss(no); no += 1
            assert self.o["o0"] <= 5
            if s >= self.o["c0"]: self.bg_issue(self.o["nC"])
            if s + 1 <= 9: self.vwait([("o", s + 1)])
        self.bar()
        a("s_cmp_ge_u32 s57, 28\ns_cbranch_scc1 Lskip3l")

    def p3w(self, s): return A16(s % 6)
    def p3h(self, s): return A16(6 + s % 4)
    P3_ST = A16(4)
    def p3_ids(self):
        a = self.a
        a("s_cmp_ge_u32 s57, 14\ns_cselect_b32 s3, 1, 0\ns_cselect_b32 s73, 14, 0\ns_sub_u32 s73, s57, s73")
        a("s_lshl_b32 s72, s3, 7")
    def p3_w_setup(self):
        a = self.a
        self.p3_ids()
        a("v_lshrrev_b32 v2, 4, v1\nv_lshlrev_b32 v3, 2, v2\nv_and_b32 v4, 15, v1\nv_xor_b32 v4, v4, v3")
        a("v_mul_u32_u24 v16, 3456, v2\nv_lshl_add_u32 v16, v4, 4, v16")
        a(f"s_lshl_b32 s3, s73, 8\ns_mul_i32 s61, s23, {16*3456}\ns_add_u32 s3, s3, s61")
        a(f"s_cmp_ge_u32 s57, 28\ns_cselect_b32 s3, {OOB}, s3\nv_add_u32 v16, s3, v16")
        a("s_lshl_b32 s64, s23, 12")
        if self.o["rot3"]:
            a("s_mul_i32 s77, s73, 183\ns_lshr_b32 s77, s77, 8\ns_cmp_ge_u32 s57, 14\ns_cselect_b32 s3, 5, 0\ns_add_u32 s77, s77, s3")
            a("s_sub_u32 s3, s77, 10\ns_cmp_ge_u32 s77, 10\ns_cselect_b32 s77, s3, s77")
        else: a("s_mov_b32 s77, 0")
        a(f"s_mul_i32 s76, s77, {64*3456}")
    def p3c(self):
        a = self.a
        Lsig = self.lab("P3sig")
        a("s_cmp_ge_u32 s57, 28\ns_cbranch_scc1 Lskip3b")
        L0 = self.L; self.L = []
        a("Lskip3b:\ns_barrier")
        if self.o["pb"] > self.o["pf"]: self.prefetch(28)
        a("s_branch Lskip3c")
        self.ool.append("\n".join(self.L)); self.L = L0
        self.p3_ids()
        a("v_lshrrev_b32 v11, 2, v1\nv_and_b32 v11, 3, v11")
        a("v_lshrrev_b32 v2, 5, v1\nv_lshl_add_u32 v2, v2, 3, v11\nv_lshlrev_b32 v2, 8, v2")
        a("v_lshrrev_b32 v3, 4, v1\nv_and_b32 v3, 1, v3\nv_lshl_add_u32 v2, v3, 5, v2\nv_and_b32 v3, 3, v1\nv_lshl_add_u32 v2, v3, 3, v2")
        a("s_lshl_b32 s3, s71, 1\nv_xor_b32 v11, s3, v11")
        a("v_xor_b32 v3, 1, v11\nv_lshl_add_u32 v5, v3, 6, v2\nv_lshl_add_u32 v2, v11, 6, v2")
        self.mk3(2); self.mk3(5)
        a("v_lshrrev_b32 v8, 5, v1\nv_lshlrev_b32 v8, 11, v8\nv_and_b32 v11, 31, v1\nv_lshl_add_u32 v8, v11, 4, v8")
        a("s_lshl_b32 s3, s70, 10\nv_add_u32 v8, s3, v8")
        self.mk3(8)
        a("v_lshrrev_b32 v15, 5, v1\nv_lshlrev_b32 v12, 4, v15")
        a(f"s_lshl_b32 s3, s71, 8\ns_add_u32 s3, s3, {self.P3_ST + 1024}\nv_add_u32 v12, s3, v12")
        a(f"v_mul_u32_u24 v14, {CS}, v15\nv_lshl_add_u32 v14, v11, 4, v14")
        a("s_lshl_b32 s77, s73, 1\ns_add_u32 s77, s77, s71")
        a(f"s_mul_i32 s60, s77, {8*CS}\ns_lshl_b32 s3, s70, 6\ns_add_u32 s3, s3, s72\ns_lshl_b32 s3, s3, 4\ns_add_u32 s60, s60, s3\ns_add_u32 s60, s60, {G_BASE}")
        if self.o["pt"] & 32:
            a(f"v_lshrrev_b32 v18, 3, v1\nv_lshlrev_b32 v18, 12, v18\nv_and_b32 v16, 7, v1\nv_lshl_add_u32 v18, v16, 7, v18")
        if self.o["pt"] & 256:
            for k in range(self.o["gc"]): a(f"s_buffer_load_dword s96, {srd(SWS)}, s60 offset:{(k//8)*4096 + (k%8)*128}")
            a("s_waitcnt lgkmcnt(0)"); self.ts(24)
        a("v_lshlrev_b32 v13, 3, v11")
        a(f"s_lshl_b32 s3, s70, 9\ns_add_u32 s3, s3, {self.P3_ST}\nv_add_u32 v13, s3, v13")
        a("v_mov_b32 v16, -1.4426950408889634")
        ACC = 100; FB = [20, 36]; CSR = 52; STR = 84
        def reads(u):
            s, ks = divmod(u, 4); f = FB[u % 2]; r = []
            for t in range(2):
                r.append(f"ds_read_b128 v[{f+8+4*t}:{f+11+4*t}], {self.ad(8, self.p3h(s) + ks*4096 + t*512)}")
            for j in range(2):
                for rd in range(2):
                    r.append(f"ds_read_b64_tr_b16 v[{f+4*j+2*rd}:{f+4*j+2*rd+1}], {self.ad(2+3*j, self.p3w(s) + ks*4096 + rd*1024)}")
            return [r[0], r[2], r[3], r[1], r[4], r[5]]
        def mfmas(u):
            f = FB[u % 2]; r = []
            for j in range(2):
                for t in range(2):
                    c = ACC + (j*2+t)*16
                    cs = "0" if u == 0 else f"v[{c}:{c+15}]"
                    r.append(f"v_mfma_f32_32x32x16_bf16 v[{c}:{c+15}], v[{f+4*j}:{f+4*j+3}], v[{f+8+4*t}:{f+11+4*t}], {cs}")
            return r
        for u in range(40):
            rd = reads(u); mf = mfmas(u-1) if u else []
            if u % 4 == 0:
                if mf: a(mf.pop(0))
                self.bar()
            if u == 0: self.ts(10)
            if self.o["pt"] & 32 and u == self.o["g3u"]: a(f"buffer_load_dword v19, v18, {srd(SWS)}, s60 offen")
            if u == 33:
                for t in range(2): a(f"ds_read_b64 v[{STR+4*t}:{STR+4*t+1}], v13 offset:{256*t}")
            if u in (34, 35, 37, 38):
                k = {34: 0, 35: 1, 37: 2, 38: 3}[u]
                for j in range(2): rd.append(f"ds_read_b128 v[{CSR+16*j+4*k}:{CSR+16*j+4*k+3}], v12 offset:{128*j + 32*k}")
            i = 0
            for m in mf:
                if u % 4 == 0:
                    for x in rd[i:i+3]: a(x)
                    i += 3
                    a(m)
                else:
                    a(m)
                    for x in rd[i:i+3]: a(x)
                    i += 3
            for x in rd[i:]: a(x)
            a("s_waitcnt lgkmcnt(0)")
        mf = mfmas(39)
        a(mf.pop(0))
        self.bar()
        self.ts(11)
        for m in mf: a(m)
        a("s_waitcnt lgkmcnt(0)\ns_mov_b64 vcc, s[86:87]")
        a(f"s_cmp_ge_u32 s77, 27\ns_cbranch_scc1 {Lsig}")
        for t in range(2):
            a(f"v_mul_f32 v{STR+4*t+2}, -1.4426950408889634, v{STR+4*t}")
        T = 20
        for j in range(2):
            for t in range(2):
                c = ACC + (j*2+t)*16
                A_ = STR + 4*t
                for qq in range(0, 4, 2):
                    o = T + 16 + 4*((qq//2) % 2)
                    for p in range(4):
                        x = c + 4*qq + 2*p; k = CSR + 16*j + 4*qq + 2*p
                        a(f"v_pk_fma_f32 v[{x}:{x+1}], v[{k}:{k+1}], v[{A_}:{A_+1}], v[{x}:{x+1}] op_sel:[0,1,0] op_sel_hi:[1,1,1] neg_lo:[0,1,0] neg_hi:[0,1,0]")
                    for p in range(4):
                        x = c + 4*qq + 2*p
                        a(f"v_pk_mul_f32 v[{x}:{x+1}], v[{x}:{x+1}], v[{A_+2}:{A_+3}] op_sel_hi:[1,0]")
                    for p in range(8): a(f"v_exp_f32 v{T+p}, v{c + 4*qq + p}")
                    for p in range(4):
                        a(f"v_pk_fma_f32 v[{T+2*p}:{T+2*p+1}], v[{T+2*p}:{T+2*p+1}], v[16:17], v[16:17] op_sel_hi:[1,0,0]")
                    for p in range(8): a(f"v_rcp_f32 v{T+p}, v{T+p}")
                    for p in range(4):
                        x = c + 4*qq + 2*p
                        a(f"v_pk_mul_f32 v[{x}:{x+1}], v[{x}:{x+1}], v[{T+2*p}:{T+2*p+1}]")
                    for p in range(4):
                        x = c + 4*qq + 2*p
                        a(f"v_cvt_pk_bf16_f32 v{o+p}, v{x}, v{x+1}")
                    a(f"v_permlane32_swap_b32 v{o}, v{o+2}\nv_permlane32_swap_b32 v{o+1}, v{o+3}")
                    a(f"s_add_u32 s61, s60, {(4*j + qq)*CS + 512*t}")
                    self.hst(f"buffer_store_dwordx4 v[{o}:{o+3}], v14, {srd(SWS)}, s61 offen")
        a(f"{Lsig}:")
        self.ts(21)
        self.signal(2, "s23")
        self.ts(22)
        a("Lskip3c:")
    def p3l(self):
        a = self.a
        NV = self.o["nv"]
        self.bg_issue(99)
        for s in range(NV, 6): self.w1_dma(s)
        for s in range(NV): self.w1_flush(s)
        a(f"s_mul_i32 s3, s23, {2*CS}\ns_lshl_b32 s61, s72, 4\ns_add_u32 s3, s3, s61\nv_lshl_add_u32 v18, v1, 4, s3")
        a(f"s_mul_i32 s75, s77, {8*CS}")
        a("v_and_b32 v2, 31, v1\nv_lshrrev_b32 v3, 5, v1\nv_lshlrev_b32 v3, 11, v3\nv_lshl_add_u32 v10, v2, 3, v3")
        a("s_lshl_b32 s3, s23, 5\ns_add_u32 s3, s3, s72\ns_lshl_b32 s3, s3, 3\nv_add_u32 v10, s3, v10")
        def hiss(s):
            for n in range(4):
                a(f"s_add_u32 m0, s64, {self.p3h(s) + n*1024}")
                a(f"s_add_u32 s61, s75, {H_BASE + (n//2)*CS + (n % 2)*1024}")
                a(f"buffer_load_dwordx4 v18, {srd(SWS)}, s61 offen {['', 'sc1', 'nt', 'sc0 sc1', 'sc1 nt'][self.o['ldsc']]} lds")
                self.vissue(("h", s))
            self.adv(75, 8*CS, 10)
        a("s_cmp_ge_u32 s57, 14\ns_cselect_b32 s61, 10, 0\ns_mov_b32 s60, 20")
        a(f"s_add_u32 s62, s73, 32\ns_sub_u32 s62, s62, s61\ns_mul_i32 s62, s62, {self.FS}\ns_sub_u32 s62, s62, 16")
        self.ts(26)
        self.wait_flags(1, False, "v_writelane_b32 v2, s62, 20")
        self.ts(10)
        SR = 20
        a("s_mov_b32 s62, s61")
        H0 = self.o["h0"]
        for s in range(H0): hiss(s)
        self.ts(30)
        self.vwait([("h", 0)])
        a("s_waitcnt lgkmcnt(0)")
        self.ts(31)
        nh = H0; nw = 0
        NW = self.NW
        sched = {7: self.o["w7"], 8: self.o["w8"], 9: self.o["w9"]}
        assert sched[7] <= 5 and sched[7] + sched[8] <= 7 and sum(sched.values()) <= 9
        W2V = self.o["w2v"]
        if W2V:
            assert NW == 12
            c0, c1 = self.o["cs0"], self.o["cs1"]
            rs = {s: [] for s in range(11)}
            for u in range(9): rs[c0 + u*(c1 - c0 + 1)//9].append(u)
            fl = {8: [0, 1, 2, 3, 4], 9: [5, 6], 10: [7, 8]}
        for s in range(10):
            self.bar()
            if s == 7: a("ds_write_b64 v2, v[48:49]")
            if W2V:
                for u in fl.get(s, []): self.w2_flush(u)
            for _ in range(self.o["per"]):
                if nh <= min(9, s + 3): hiss(nh); nh += 1
            SF = self.o["sfs"]
            if s == SF:
                a(f"s_mov_b64 exec, 0x1fffff\nbuffer_load_dwordx4 v[4:7], v2, {srd(SWS)}, s62 offen offset:16 sc1\ns_mov_b64 exec, -1")
                self.vissue("sf")
            if s == SF + 1:
                self.vwait("sf")
                L1 = self.lab("sfchk"); L2 = self.lab("sfok"); L3 = self.lab("sfre")
                a(f"s_mov_b64 exec, 0x1fffff\ns_mov_b32 s60, 0x100000\n{L1}:")
                a(f"v_and_b32 v4, v4, v5\nv_and_b32 v6, v6, v7\nv_and_b32 v4, v4, v6\nv_cmp_ne_u32 vcc, 1, v4\ns_cbranch_vccnz {L3}\n{L2}:\ns_mov_b64 exec, -1")
                self.ool.append(f"{L3}:\nbuffer_load_dwordx4 v[4:7], v2, {srd(SWS)}, s62 offen offset:16 sc1\ns_waitcnt vmcnt(0)\ns_sub_u32 s60, s60, 1\ns_cbranch_scc0 {L1}\ns_branch {L2}")
            if s in (SF + 1, SF + 2):
                for n in range(5*(s - SF - 1), 5*(s - SF)):
                    a(f"s_mov_b32 s61, {ST_BASE + n*4096}")
                    a(f"buffer_load_dwordx2 v[{SR+2*n}:{SR+1+2*n}], v10, {srd(SWS)}, s61 offen sc1")
                    self.vissue("st")
            if s == 5:
                a(f"s_lshl_b32 s3, s23, 7\ns_add_u32 m0, s3, {self.P3_ST + 1024}\ns_lshl_b32 s61, s73, 9\ns_add_u32 s61, s61, s3\ns_add_u32 s61, s61, {CSUM}")
                a(f"v_lshlrev_b32 v3, 4, v1\ns_mov_b64 exec, 255\nbuffer_load_dwordx4 v3, {srd(SWS)}, s61 offen sc1 lds\ns_mov_b64 exec, -1")
                self.vissue("cs")
            if s == self.o["gts"] and self.o["pt"] & 4:
                a(f"v_lshrrev_b32 v8, 4, v1\nv_lshlrev_b32 v8, 12, v8\nv_and_b32 v3, 15, v1\nv_lshl_add_u32 v8, v3, 7, v8")
                a(f"s_lshl_b32 s61, s73, 2\ns_add_u32 s61, s61, s23\ns_lshl_b32 s61, s61, 14\ns_lshl_b32 s3, s72, 4\ns_add_u32 s61, s61, s3\ns_add_u32 s61, s61, {G_BASE}")
                a(self.touch(60, 8, 's61'))
                self.vissue("pt")
            if 1 <= s <= 4: self.w1_dma(s + 5)
            if W2V:
                for u in rs[s]: self.w2_reg(u)
                if s == 8:
                    a("s_mov_b32 s74, s83"); nw = 12
                    for _ in range(3): self.adv(83, 64*1280, 27)
                if s >= 8:
                    for _ in range(self.o[f"hs{s}"]): self.w2_reg(nw); nw += 1
                self.vwait([("w2", u) for u in fl.get(s + 1, [])])
            else:
                for _ in range(sched.get(s, 0)): self.w2_dma(nw); nw += 1
                if self.o["tw"] and s == self.o["tst"]:
                    tw = self.o["tw"]
                    a(f"s_mul_i32 s3, s57, {tw}\ns_add_u32 s3, s3, s23\ns_add_u32 s3, s3, {270 - 28*tw}\ns_lshl_b32 s3, s3, 13\ns_cmp_lt_u32 s23, {tw}\ns_cselect_b32 s3, s3, {OOB}")
                    a(f"v_lshl_add_u32 v8, v1, 7, s3\nbuffer_load_dword v60, v8, {srd(SW2)}, 0 offen")
                    self.vissue("tw")
            if s == 6:
                self.vwait("st")
                for n in range(1, 10): a(f"v_pk_add_f32 v[{SR}:{SR+1}], v[{SR}:{SR+1}], v[{SR+2*n}:{SR+1+2*n}]")
                a(f"v_mov_b32 v48, v{SR}\nv_mov_b32 v49, v{SR+1}")
                a(f"v_permlane32_swap_b32 v{SR}, v48\nv_permlane32_swap_b32 v{SR+1}, v49")
                a(f"v_add_f32 v{SR}, v{SR}, v48\nv_add_f32 v{SR+1}, v{SR+1}, v49")
                a(f"v_mul_f32 v49, {1.0/640!r}, v{SR}\nv_mul_f32 v{SR+1}, {1.0/640!r}, v{SR+1}")
                a(f"v_fma_f32 v{SR+1}, -v49, v49, v{SR+1}\nv_max_f32 v{SR+1}, 0, v{SR+1}\nv_add_f32 v{SR+1}, 1e-5, v{SR+1}\nv_rsq_f32 v48, v{SR+1}")
                a(f"v_and_b32 v2, 31, v1\nv_lshlrev_b32 v2, 3, v2\ns_lshl_b32 s3, s23, 8\ns_add_u32 s3, s3, {self.P3_ST}\nv_add_u32 v2, s3, v2")
            if s == 7: a("s_waitcnt lgkmcnt(0)"); self.vwait(["cs", "pt"])
            if s + 1 <= 9: self.vwait([("h", s + 1), ("w1", s + 1)])
        self.bar()
        if W2V:
            for u in fl[10]: self.w2_flush(u)
            a("s_mov_b32 s62, s83\ns_mov_b32 s83, s74")
            for u in range(9, 12): self.w2_dma(u)
            a("s_mov_b32 s83, s62")
            for u in range(nw, 27): self.w2_reg(u)
            a("s_waitcnt lgkmcnt(0)")
        else:
            for u in range(nw, NW): self.w2_dma(u)
        a("s_branch Lp4l")
        a("Lskip3l:\ns_barrier")
        for u in range(NW): self.w2_dma(u)
        if W2V:
            for u in range(NW, 27): self.w2_reg(u)
        if self.o["pb"] > self.o["pf"]: self.prefetch(28)
        a("Lp4l:")
        self.vreset()

    def p4w(self, u):
        M = [9, 10, 11, 0, 1, 2, 3, 4, 5, 12, 13, 6, 7, 8] if self.NW == 14 else [9, 10, 11, 0, 1, 2, 3, 4, 5, 6, 7, 8]
        return M[u % self.NW] * 8192
    def p4g(self, s): return LDS - self.GN*12288 + (s % self.GN)*12288
    def p4_w_setup(self):
        a = self.a
        self.w64_addr(17, 8)
        a("s_and_b32 s3, s23, 1\ns_lshl_b32 s3, s3, 4\ns_lshr_b32 s61, s23, 1\ns_lshl_b32 s61, s61, 2\ns_add_u32 s3, s3, s61\ns_mul_i32 s3, s3, 1280")
        a(f"s_cmp_ge_u32 s57, 30\ns_cselect_b32 s3, {OOB}, s3\nv_add_u32 v17, s3, v17")
        if self.o["rot4"] == 2:
            a("s_sub_u32 s3, s67, 5\ns_cmp_ge_u32 s67, 5\ns_cselect_b32 s82, s3, s67")
        elif self.o["rot4"] == 3:
            a("s_mul_i32 s82, s67, 27*205\ns_lshr_b32 s82, s82, 11")
        elif self.o["rot4"]:
            a("s_mul_i32 s82, s67, 27*205\ns_lshr_b32 s82, s82, 11\ns_mul_i32 s3, s66, 9\ns_add_u32 s82, s82, s3")
            a("s_sub_u32 s3, s82, 27\ns_cmp_ge_u32 s82, 27\ns_cselect_b32 s82, s3, s82")
        else: a("s_mov_b32 s82, 0")
        a(f"s_mul_i32 s83, s82, {64*1280}")
    def p4c(self):
        a = self.a
        self.c24_addr(); self.c24_rowaddr()
        H = self.HREG
        self.c24_addr_rm(16)
        ACC = 100
        self.c24_loop(27, self.p4w, self.p4g, ACC, 12)
        self.c24_sum(ACC, H, 40, 20, lambda t: a(f"buffer_store_dwordx4 v[{40+4*t}:{43+4*t}], v{16+t}, {srd(SOUT)}, 0 offen" + ["", " sc1", " nt", " sc0 sc1"][self.o["osc"]]))
        self.fin()
    def p4l(self):
        a = self.a
        a(f"s_mul_i32 s75, s82, {8*CS}")
        a("s_cmp_eq_u32 s66, 2\ns_cselect_b32 s61, 14, 0")
        a("s_cmp_eq_u32 s66, 1\ns_cselect_b32 s60, 28, 14")
        if self.o["pt"] & 2048:
            a("v_and_b32 v8, 15, v1\nv_lshlrev_b32 v10, 3, v8\nv_cmp_gt_u32 vcc, s69, v10\nv_lshlrev_b32 v8, 7, v8\nv_bfe_u32 v10, v1, 4, 1\nv_lshl_add_u32 v8, v10, 12, v8")
            a(f"v_lshrrev_b32 v10, 5, v1\nv_mul_u32_u24 v10, {80*CS}, v10\nv_add_u32 v8, v8, v10")
            a(f"s_add_u32 s3, s67, 10\ns_lshl_b32 s3, s3, 2\ns_add_u32 s3, s3, s23\ns_lshl_b32 s3, s3, 13\ns_lshl_b32 s62, s63, 4\ns_add_u32 s3, s3, s62\nv_add_u32 v8, s3, v8")
            a(f"s_cmp_lt_u32 s67, 7\ns_cselect_b32 vcc_hi, vcc_hi, 0\nv_mov_b32 v10, {OOB}\nv_cndmask_b32 v8, v10, v8, vcc")
        self.ts(27)
        self.wait_flags(2, False)
        self.ts(12)
        GN = self.GN; NW = self.NW
        gis = lambda s: self.panel96_issue(11, G_BASE, 27, self.p4g(s), ("g", s))
        G0 = min(self.o["g0"], GN)
        for s in range(G0): gis(s)
        ng = G0; nw = NW
        def gt():
            a(f"buffer_load_dword v10, v8, {srd(SWS)}, 0 offen sc1"); self.vissue("gt")
        if self.o["pt"] & 2048 and self.o["gtp"] < 0: gt()
        self.ts(28)
        self.vwait([("g", 0)])
        self.ts(29)
        for s in range(27):
            self.bar()
            if self.o["w2v"]:
                nw = 27
                if 2 <= s <= 16: self.w2_flush(s + 10)
            for _ in range(self.o["per"]):
                if ng <= min(26, max(s - 2, -1) + GN): gis(ng); ng += 1
            if self.o["pt"] & 2048 and self.o["gtp"] == s: gt()
            if self.o["w2v"] and 2 <= s <= 16: a("s_waitcnt lgkmcnt(0)")
            if nw <= min(26, s - 2 + NW) and s >= self.o["ws0"] and (s - self.o["ws0"]) % 2 < self.o["wper"]: self.w2_dma(nw); nw += 1
            while nw <= min(26, s + 4): self.w2_dma(nw); nw += 1
            if s + 1 <= 26: self.vwait([("g", s + 1), ("w2", s + 1)])
        self.bar()
        self.fin()

    def build(self):
        a = self.a
        self.prologue()
        a("s_cmp_ge_u32 s22, 4\ns_cbranch_scc0 Lcomp")
        if self.o["lprio"]: a(f"s_setprio {self.o['lprio']}")
        self.p1l(); self.p2l(); self.p3l(); self.p4l()
        a("Lcomp:")
        if self.o["prio"]: a(f"s_setprio {self.o['prio']}")
        self.tprev = None; self.tn = 0
        self.p1c(); self.p2c(); self.p3c(); self.p4c()
        self.csum()
        for x in self.ool: a(x)
        a("Lend:\ns_endpgm")
    def text(self):
        L, n = hazard.fix(self.L)
        nm = self.name
        return "\n".join([f".globl {nm}", ".p2align 8", f".type {nm},@function", f"{nm}:"] + L) + "\n"
    def desc(self):
        return "\n".join([".p2align 6", f".amdhsa_kernel {self.name}",
            "  .amdhsa_next_free_vgpr 256", "  .amdhsa_next_free_sgpr 102", "  .amdhsa_accum_offset 256",
            "  .amdhsa_group_segment_fixed_size 0", "  .amdhsa_kernarg_size 72", "  .amdhsa_user_sgpr_count 2",
            "  .amdhsa_user_sgpr_kernarg_segment_ptr 1", "  .amdhsa_system_sgpr_workgroup_id_x 1",
            "  .amdhsa_float_denorm_mode_32 3",
            ".end_amdhsa_kernel"]) + "\n"

def header():
    ref = open(f"cdna_kernels/{NAME}.s.ref").read().split("\n")
    return [l for l in ref if l.startswith(";") and "@launch" not in l]
def build(dbg=False, opt=None):
    g = G(NAME + "_kernel", dbg, opt); g.build()
    out = header()
    out.append(f"; @launch grid=(256,1,1) block=(512,1,1) lds={LDS}")
    out += ['.amdgcn_target "amdgcn-amd-amdhsa--gfx950"', ".text", g.text(), '.section .rodata,"a"', g.desc()]
    return "\n".join(out)
if __name__ == "__main__":
    path = sys.argv[1]; dbg = False; opt = {}
    for x in sys.argv[2:]:
        if x == "dbg": dbg = True
        else:
            k, v = x.split("="); assert k in OPT, k; opt[k] = int(v)
    txt = build(dbg, opt)
    open(path, "w").write(txt)
    import subprocess
    r = subprocess.run(["clang", "-x", "assembler", "-target", "amdgcn-amd-amdhsa", "-mcpu=gfx950", "-c", path, "-o", "chk.o"], capture_output=True, text=True)
    print(r.stderr[:3000] if r.returncode else "assembled ok", len(txt))
```

```python
import sys
sys.path.insert(0, "dev")
import hazard

NAME = "sequential_preLN__sliding_local_dilated__dense_activation_silu__prompt"
S, D, F = 2048, 640, 1728
CS = 256 * 16
GS = 0x200000
O_BASE = 0
G_BASE = 0
H_BASE = 224 * CS
ST_BASE = 304 * CS
FL_BASE = 0x190000
TS_BASE = 0x1400000
WS_SIZE = 0x1800000
TS2 = 0x1500000
OOB = 0x80000000
LDS = 163840
SX, SWQ, SWO, SW1, SW2, SOUT, SDBG, SWS, SWG = 24, 28, 32, 36, 40, 44, 48, 52, 92
def srd(n): return f"s[{n}:{n+3}]"
A16 = lambda k: 16384 * k

CSUM = 0x194000
OPT = dict(la1=3, rot1=3, rot2=1, rot3=1, rot4=0, fast=1, nA=8, nB=8, nC=2, c0=4, wo0=17, prio=0, lprio=0, ldsc=1, pen=0, osc=1, amp=-1, ampw=37, wb=0, tlb=0, nv=6, w2e=1, h0=2, g0=4, o0=3, per=2, gn=5, ws0=2, wper=2, hfl=0, pt=3073, gts=6, sfs=3, ots=11, gc=64, gtu=-1, i0=2, la2=3, lasw=99, w2v=0, hts=19, pf=6, pb=14, g3u=-1, pth=0, pe=24, tw=3, tst=7, gtp=-1, w7=3, w8=2, w9=0, cs0=1, cs1=6, hs8=2, hs9=3, iw=0, iwo=0, cp=2, sfc=2, srs=8, sta=0, cp2=-1, cp3=0, npk=1, ccs=12, ccc=16, op=0, wp0=-1, wp1=-1, wa=64, nE=0, eo=0, ep3=1, epn=4, ri=1, r3o=1, ts2=8, dl=1, scw=0, sfu=12, scu=21, sru=31, r1d=4, r1a=0, r1b=5, r1t=0x76343410, r1e=5, wor=0, w1r=0, wol=0)

class G:
    NL = 0
    def __init__(self, name, dbg=False, opt=None):
        self.name = name; self.L = []; self.dbg = dbg
        self.o = dict(OPT); self.o.update(opt or {})
        self.GN = self.o["gn"]; self.NW = 14 if self.GN == 4 else 12
        self.vm = []; self.tprev = None; self.tn = 0; self.ool = []
    def a(self, s):
        for line in s.split("\n"):
            line = line.strip()
            if line: self.L.append(line if line.endswith(":") else "    " + line)
    def lab(self, b="L"):
        G.NL += 1; return f"{b}_{G.NL}"
    def vissue(self, tag): self.vm.append(tag)
    def vwait(self, tags):
        if not isinstance(tags, (list, set)): tags = [tags]
        last = -1
        for i, t in enumerate(self.vm):
            if t in tags: last = i
        if last < 0: return
        n = len(self.vm) - 1 - last
        assert n <= 63, n
        self.a(f"s_waitcnt vmcnt({n})")
        self.vm = self.vm[last + 1:]
    def vreset(self): self.vm = []
    def tc(self, i):
        if self.dbg: self.a(f"s_memtime s[80:81]\ns_waitcnt lgkmcnt(0)\nv_writelane_b32 v255, s80, {i}")
    def ts(self, i):
        if self.dbg: self.a(f"s_memrealtime s[80:81]\ns_waitcnt lgkmcnt(0)\nv_writelane_b32 v255, s80, {i}")
    def bar(self):
        if self.dbg:
            if self.tprev is not None: self.a(f"v_writelane_b32 v{253 + self.tprev // 64}, s84, {self.tprev % 64}")
            self.a("s_memtime s[84:85]")
            self.tprev = self.tn; self.tn += 1
        self.a("s_barrier")
    def prologue(self):
        a = self.a
        a("s_load_dwordx16 s[4:19], s[0:1], 0")
        a("s_load_dwordx2 s[20:21], s[0:1], 64")
        a("s_cmp_ge_u32 s2, 256")
        a("s_cbranch_scc1 Lend")
        a("v_and_b32 v1, 63, v0")
        a("v_lshrrev_b32 v2, 6, v0")
        a("v_readfirstlane_b32 s22, v2")
        a("s_and_b32 s56, s2, 7")
        a("s_lshr_b32 s57, s2, 3")
        a("s_and_b32 s23, s22, 3")
        a("s_and_b32 s58, s57, 7\ns_lshl_b32 s59, s56, 2\ns_lshr_b32 s3, s57, 3\ns_add_u32 s59, s59, s3")
        if self.dbg: a("v_mov_b32 v255, 0\nv_mov_b32 v254, 0\nv_mov_b32 v253, 0")
        self.ts(0); self.tc(16)
    def srds(self, which):
        self.a("s_waitcnt lgkmcnt(0)")
        T = {SX: (4, S*D*2), SWQ: (6, D*3*D*2), SWO: (8, D*D*2), SW1: (12, D*F*2), SW2: (14, F*D*2),
             SOUT: (16, S*D*2), SDBG: (18, 256), SWG: (20, WS_SIZE)}
        for d in which:
            if d == SWS:
                self.a(f"s_lshl_b32 s3, s56, 21\ns_add_u32 s{d}, s20, s3\ns_addc_u32 s{d+1}, s21, 0\ns_mov_b32 s{d+2}, {GS}\ns_mov_b32 s{d+3}, 0x00020000")
                continue
            b, n = T[d]
            self.a(f"s_mov_b32 s{d}, s{b}\ns_mov_b32 s{d+1}, s{b+1}\ns_mov_b32 s{d+2}, {n}\ns_mov_b32 s{d+3}, 0x00020000")
    def fin(self):
        if self.dbg:
            self.a("s_waitcnt vmcnt(0)")
            self.ts(15); self.tc(17)
            if self.o["amp"] >= 0:
                x, y = divmod(self.o["amp"], 100)
                L1 = self.lab("amp"); L2 = self.lab("ampl")
                self.a(f"s_cmp_lg_u32 s2, {self.o['ampw']}\ns_cbranch_scc1 {L1}\ns_cmp_lg_u32 s22, 0\ns_cbranch_scc1 {L1}")
                self.a(f"v_readlane_b32 s60, v255, {x}\nv_readlane_b32 s61, v255, {y}\ns_sub_u32 s60, s61, s60\ns_min_u32 s60, s60, 8000\ns_lshl_b32 s60, s60, 3\nv_readlane_b32 s61, v255, 15\ns_add_u32 s60, s60, s61")
                self.a(f"s_mov_b32 s62, 0x100000\n{L2}:\ns_memrealtime s[80:81]\ns_waitcnt lgkmcnt(0)\ns_sub_u32 s62, s62, 1\ns_cbranch_scc1 {L1}\ns_sub_u32 s61, s80, s60\ns_cmp_lt_i32 s61, 0\ns_cbranch_scc1 {L2}\n{L1}:")
            self.srds([SWG])
            self.a(f"s_lshl_b32 s80, s2, 3\ns_add_u32 s80, s80, s22\ns_lshl_b32 s80, s80, 7\ns_add_u32 s80, s80, {TS_BASE}")
            self.a(f"v_writelane_b32 v{253 + self.tprev // 64}, s84, {self.tprev % 64}")
            self.a(f"v_lshlrev_b32 v2, 2, v1\ns_lshl_b32 s84, s2, 3\ns_add_u32 s84, s84, s22\ns_lshl_b32 s84, s84, 9\ns_add_u32 s84, s84, {TS2}")
            self.a(f"buffer_store_dword v253, v2, {srd(SWG)}, s84 offen\nbuffer_store_dword v254, v2, {srd(SWG)}, s84 offen offset:256")
            self.a(f"v_lshlrev_b32 v2, 2, v1\ns_mov_b32 exec_hi, 0\nbuffer_store_dword v255, v2, {srd(SWG)}, s80 offen")
        self.a("s_endpgm")

    FS = 64
    def flag_clear(self):
        a = self.a
        Lk = self.lab("fc")
        a("s_getreg_b32 s3, hwreg(HW_REG_XCC_ID, 0, 4)\ns_mul_i32 s88, s3, s3\ns_lshl_b32 s88, s88, 10\ns_add_u32 s88, s88, s3\ns_add_u32 s88, s88, 0x800000")
        a(f"s_cmp_lg_u32 s22, 0\ns_cbranch_scc1 {Lk}")
        a(f"v_lshrrev_b32 v2, 3, v1\nv_lshlrev_b32 v2, 11, v2\nv_and_b32 v3, 7, v1\nv_lshl_add_u32 v2, v3, 2, v2")
        a(f"v_mov_b32 v3, 0\ns_mul_i32 s61, s57, {self.FS}\ns_add_u32 s61, s61, {FL_BASE}")
        a(f"s_mov_b32 exec_hi, 0xffff\nbuffer_store_dword v3, v2, {srd(SWS)}, s61 offen sc1\ns_mov_b64 exec, -1")
        a("s_lshl_b32 s61, s56, 5\nv_mov_b32 v3, s88")
        a("s_waitcnt vmcnt(0)")
        a(f"s_mov_b64 exec, 1\nbuffer_atomic_add v3, off, {srd(SDBG)}, s61\ns_mov_b64 exec, -1")
        a(f"{Lk}:")
    def count_check(self):
        a = self.a
        Lk = self.lab("cp"); Lp = self.lab("cpl")
        a("s_mov_b64 exec, 255\ns_mov_b32 s60, 0x100000\ns_mov_b32 s61, 0x10000000")
        a(f"{Lp}:")
        a(f"s_waitcnt vmcnt(0)\nv_cmp_gt_u32 vcc, s61, v205\ns_cbranch_vccz {Lk}")
        a(f"buffer_load_dword v205, v204, {srd(SDBG)}, 0 offen sc1")
        a(f"s_sub_u32 s60, s60, 1\ns_cbranch_scc0 {Lp}")
        a(f"{Lk}:")
        a("s_mov_b64 exec, -1")
        a("s_waitcnt vmcnt(0)\nv_readlane_b32 s3, v205, s56\ns_lshl_b32 s88, s88, 5\ns_cmp_eq_u32 s3, s88\ns_cselect_b64 s[86:87], -1, 0")
        if not self.o["fast"]: a("s_mov_b64 s[86:87], 0")
        if self.o["pen"]:
            Lz = self.lab("pen")
            a(f"s_cmp_lg_u32 s86, 0\ns_cbranch_scc1 {Lz}")
            for _ in range(6): a("s_sleep 127")
            a(f"{Lz}:")
    def hst(self, txt, local=True):
        if not local:
            self.a(txt + " sc1"); return
        L1 = self.lab("slow"); L2 = self.lab("back")
        self.a(f"s_cbranch_vccz {L1}\n{txt}{['', ' nt', ' sc0', ' sc0 nt'][self.o['hfl']]}\n{L2}:")
        self.ool.append(f"{L1}:\ns_nop 7\n{txt} sc1\ns_branch {L2}")
    def signal(self, ph, wreg, local=True):
        a = self.a
        a(f"s_mul_i32 s61, s57, {self.FS}\ns_lshl_b32 s3, {wreg}, 2\ns_add_u32 s61, s61, s3\ns_add_u32 s61, s61, {FL_BASE + ph*64*self.FS}\nv_mov_b32 v3, 1")
        a("s_waitcnt vmcnt(0)")
        a("s_mov_b64 exec, 1")
        self.hst(f"buffer_store_dword v3, off, {srd(SWS)}, s61", local)
        a("s_mov_b64 exec, -1")
    def wait_flags(self, ph, two, extra=None):
        a = self.a
        a(f"s_mul_i32 s61, s61, {self.FS}\ns_add_u32 s61, s61, {FL_BASE + ph*64*self.FS}")
        Lp = self.lab("poll"); Lq = self.lab("pollx")
        if two: a(f"v_lshrrev_b32 v2, 1, v1\nv_mul_u32_u24 v2, {self.FS}, v2\nv_and_b32 v3, 1, v1\nv_lshl_add_u32 v2, v3, 4, v2")
        else: a(f"v_mul_u32_u24 v2, {self.FS}, v1")
        if extra: a(extra)
        a("s_bfm_b64 exec, s60, 0\ns_mov_b32 s60, 0x100000")
        a(f"{Lp}:")
        a(f"buffer_load_dwordx4 v[4:7], v2, {srd(SWS)}, s61 offen sc1")
        a(f"s_sub_u32 s60, s60, 1\ns_cbranch_scc1 {Lq}")
        a("s_waitcnt vmcnt(0)")
        a("v_and_b32 v4, v4, v5\nv_and_b32 v6, v6, v7\nv_and_b32 v4, v4, v6")
        a(f"v_cmp_ne_u32 vcc, 1, v4\ns_cbranch_vccnz {Lp}")
        a(f"{Lq}:")
        a("s_waitcnt vmcnt(0)\ns_mov_b64 exec, -1")
        self.vreset()
    def adv(self, sreg, stride, n):
        self.a(f"s_add_u32 s{sreg}, s{sreg}, {stride}\ns_cmp_eq_u32 s{sreg}, {stride*n}\ns_cselect_b32 s{sreg}, 0, s{sreg}")
    def mk3(self, r):
        self.a(f"v_add_u32 v{r+1}, 0x10000, v{r}\nv_add_u32 v{r+2}, 0x20000, v{r}")
    def ad(self, r, off):
        return f"v{r + (off >> 16)} offset:{off & 0xffff}"

    P1_SLOT = 40960; P1_W = 10240; P1_WS = 15360; P1_ST = 0; P1_QKV = 1024; P1_QS = 488
    def p1x(self, s): return (s % 4) * self.P1_SLOT
    def p1w(self, u): return ((u // 2) % 4) * self.P1_SLOT + self.P1_W + (u % 2) * self.P1_WS
    def p1c(self):
        a = self.a
        KK = 220; MC = 240; MP = 244; MP1 = 248; PM = 92; STT = 180
        self.warm()
        a(f"v_lshrrev_b32 v2, 3, v1\nv_and_b32 v2, 3, v2\nv_mul_u32_u24 v2, {self.P1_SLOT}, v2\nv_and_b32 v3, 7, v1\nv_lshl_add_u32 v2, v3, 4, v2")
        for r in range(4): a(f"v_mov_b32 v{20+r}, 0x3f803f80")
        a("ds_write_b128 v2, v[20:23]")
        self.srds([SWS, SDBG, SX, SWO, SW1, SW2, SOUT])
        self.flag_clear()
        if self.o["tlb"]:
            Lt = self.lab("tlb")
            a(f"s_cmp_lg_u32 s22, 2\ns_cbranch_scc1 {Lt}\nv_lshlrev_b32 v2, 16, v1")
            if self.o["tlb"] & 64:
                a("s_lshl_b32 s3, s57, 16\nv_lshl_add_u32 v2, v1, 21, s3\ns_mov_b64 exec, 3")
                a(f"s_mul_i32 s60, s56, {256*1280}\ns_sub_u32 s61, s57, 26\ns_lshl_b32 s61, s61, 16\ns_add_u32 s60, s60, s61\ns_cmp_ge_u32 s57, 26\ns_cselect_b32 s60, s60, {OOB}\nv_mov_b32 v3, s60")
                a(f"s_sub_u32 s61, s57, 13\ns_lshl_b32 s61, s61, 16\nv_mov_b32 v4, s61")
            for b, r in ((1, SWO), (2, SWS), (4, SW1), (8, SW2), (16, SOUT), (32, SDBG)):
                if self.o["tlb"] & b: a(f"buffer_load_dword v96, v{({16: 3, 1: 4}.get(b, 2) if self.o['tlb'] & 64 else 2)}, {srd(r)}, 0 offen")
            a("s_mov_b64 exec, -1")
            a(f"{Lt}:")
        a("v_lshrrev_b32 v10, 2, v1\nv_mul_u32_u24 v10, 480, v10\ns_mul_i32 s3, s23, 40\nv_add_u32 v10, s3, v10\nv_and_b32 v3, 3, v1")
        a("v_add_u32 v13, 1, v3\nv_mul_u32_u24 v13, 160, v13\nv_cmp_gt_u32 vcc, 2, v3\nv_cndmask_b32 v13, 0, v13, vcc\nv_add3_u32 v13, v13, v10, 32")
        a("v_lshl_add_u32 v10, v3, 3, v10")
        a("v_and_b32 v3, 15, v1\nv_lshrrev_b32 v2, 1, v3\nv_lshrrev_b32 v4, 4, v1\nv_xor_b32 v4, v4, v2\nv_lshlrev_b32 v4, 4, v4\nv_lshl_add_u32 v4, v3, 7, v4")
        if self.o["rot1"] == 3: a("s_and_b32 s3, s57, 8\ns_lshl_b32 s3, s3, 3\nv_xor_b32 v4, s3, v4")
        a("v_xor_b32 v7, 64, v4")
        self.mk3(4); self.mk3(7); self.mk3(10); self.mk3(13)
        a("v_lshrrev_b32 v2, 4, v1\nv_mov_b32 v20, 0xf149f2ca\nv_and_b32 v21, 1, v3")
        for r in range(4):
            a(f"v_lshl_add_u32 v22, v2, 2, {r}\nv_cmp_le_u32 vcc, v22, v3\nv_cndmask_b32 v{MC+r}, v20, 0, vcc\nv_cndmask_b32 v{MP+r}, 0, v20, vcc")
            a(f"v_cmp_eq_u32 vcc, {r & 1}, v21\nv_cndmask_b32 v{MC+r}, v20, v{MC+r}, vcc\nv_cndmask_b32 v{MP+r}, v20, v{MP+r}, vcc")
        a("s_cmp_eq_u32 s59, 0\ns_cselect_b64 vcc, -1, 0")
        for r in range(4): a(f"v_cndmask_b32 v{MP1+r}, v{MP+r}, v20, vcc")
        a("v_lshlrev_b32 v23, 4, v21\nv_mov_b32 v24, 0xffff\nv_lshlrev_b32 v23, v23, v24")
        for i in range(2):
            a(f"v_lshl_add_u32 v22, v2, 2, {2*i}\nv_add_u32 v22, v22, v21\nv_cmp_le_u32 vcc, v22, v3")
            a(f"v_cndmask_b32 v{PM+2+i}, 0, v23, vcc\nv_cndmask_b32 v{PM+i}, v23, 0, vcc")
        for t in range(5): a(f"v_mov_b32 v{KK+4*t+2}, 0\nv_mov_b32 v{KK+4*t+3}, 0")
        a(f"s_mul_i32 s3, s23, 2560\ns_add_u32 s3, s3, {self.P1_QKV}")
        a("v_lshl_add_u32 v17, v3, 5, s3\nv_lshl_add_u32 v16, v2, 3, v17")
        a("v_cmp_eq_u32 vcc, 0, v2\nv_cndmask_b32 v22, 24, 16, vcc\nv_add_u32 v17, v17, v22")
        a("v_lshrrev_b32 v18, 2, v1\nv_lshl_add_u32 v18, v18, 5, s3\nv_add_u32 v18, 8, v18")
        a("s_and_b32 s3, s59, 3\ns_lshl_b32 s3, s3, 10")
        a(f"v_lshrrev_b32 v22, 1, v2\nv_lshlrev_b32 v19, 12, v22\nv_and_b32 v22, 1, v2\nv_lshl_add_u32 v19, v22, 3, v19\nv_lshl_add_u32 v19, v3, 4, v19\nv_add_u32 v19, s3, v19")
        a("v_lshl_add_u32 v98, v1, 4, s3")
        a("v_lshlrev_b32 v99, 2, v3\nv_lshlrev_b32 v252, 4, v2")
        a(f"s_mul_i32 s60, s58, 10\ns_lshl_b32 s3, s23, 1\ns_add_u32 s89, s60, s3\ns_lshl_b32 s89, s89, 12")
        a(f"s_lshr_b32 s3, s23, 1\ns_add_u32 s90, s60, s3\ns_add_u32 s90, s90, 8\ns_lshl_b32 s90, s90, 12")
        if self.o["pt"] & 1:
            a("v_and_b32 v22, 7, v1\nv_lshlrev_b32 v22, 7, v22\nv_bfe_u32 v23, v1, 3, 1\nv_lshl_add_u32 v22, v23, 12, v22\ns_and_b32 s3, s59, 3\ns_lshl_b32 s3, s3, 10\nv_add_u32 v22, s3, v22")
            a("v_mov_b32 v97, v22")
        a(f"s_and_b32 s3, s23, 1\ns_lshl_b32 s3, s3, 3\ns_add_u32 s90, s90, s3")
        if self.o["op"]:
            a("v_lshrrev_b32 v22, 3, v1\nv_lshlrev_b32 v22, 12, v22\nv_and_b32 v23, 7, v1\nv_lshl_add_u32 v22, v23, 7, v22")
            a("s_lshr_b32 s3, s58, 1\ns_lshl_b32 s3, s3, 2\ns_add_u32 s3, s3, s23\ns_mul_i32 s3, s3, 20480\ns_and_b32 s60, s59, 3\ns_lshl_b32 s60, s60, 10\ns_add_u32 s3, s3, s60")
            a("v_add_u32 v97, s3, v22")
            a("s_lshr_b32 s3, s58, 1\ns_lshl_b32 s3, s3, 2\ns_and_b32 s60, s59, 3\ns_add_u32 s3, s3, s60\ns_lshl_b32 s3, s3, 2\ns_add_u32 s3, s3, s23")
            wa = self.o["wa"]
            a(f"s_add_u32 s60, s58, 1\ns_bitcmp1_b32 s60, 1\ns_cselect_b32 s60, {wa}, {100 - wa}\ns_cselect_b32 s61, 0, {64*wa}\ns_mul_i32 s3, s3, s60\ns_add_u32 s3, s3, s61\ns_lshl_b32 s3, s3, 7")
            a(f"v_lshl_add_u32 v206, v1, 7, s3\nv_mov_b32 v22, {OOB}\nv_cmp_gt_u32 vcc, s60, v1\nv_cndmask_b32 v206, v22, v206, vcc")
        def fast(txt, c=0):
            Lf = self.lab("fast")
            a(f"s_add_u32 s3, s58, 1\ns_bitcmp1_b32 s3, 1\ns_cbranch_scc{c} {Lf}\n{txt}\n{Lf}:")
        def otouch():
            if self.o["op"]: fast(f"s_mov_b32 exec_hi, 0xff\n{self.touch(96, 97, '0')}\ns_mov_b32 exec_hi, -1", self.o["op"] - 1)
            elif self.o["pt"] & 1: a(f"s_mov_b64 exec, 0xffff\n{self.touch(96, 97, 's89')}\ns_mov_b64 exec, 0xff\n{self.touch(96, 97, 's90')}\ns_mov_b64 exec, -1")
        if self.o["ots"] < 0: otouch()
        def gtouch():
            self.p3_ids()
            a(f"s_lshl_b32 s61, s73, 2\ns_add_u32 s61, s61, s23\ns_lshl_b32 s61, s61, 14\ns_lshl_b32 s3, s72, 4\ns_add_u32 s61, s61, s3\ns_add_u32 s61, s61, {G_BASE}")
            a(f"s_cmp_ge_u32 s57, 28\ns_cselect_b32 s61, {OOB}, s61")
            a(f"v_lshrrev_b32 v202, 4, v1\nv_lshlrev_b32 v202, 12, v202\nv_and_b32 v203, 15, v1\nv_lshl_add_u32 v202, v203, 7, v202\nv_add_u32 v202, s61, v202")
            a(f"buffer_load_dword v96, v202, {srd(SWS)}, 0 offen")
        def htouch():
            self.p24_ids()
            a("v_and_b32 v200, 15, v1\nv_lshlrev_b32 v201, 3, v200\nv_cmp_gt_u32 vcc, s69, v201\nv_lshlrev_b32 v200, 7, v200\nv_lshrrev_b32 v201, 4, v1\nv_lshl_add_u32 v200, v201, 12, v200")
            a(f"s_lshl_b32 s61, s67, 2\ns_add_u32 s61, s61, s23\ns_lshl_b32 s61, s61, 13\ns_lshl_b32 s3, s63, 4\ns_add_u32 s61, s61, s3\ns_add_u32 s61, s61, {H_BASE}")
            a(f"s_cmp_lt_u32 s57, 30\ns_cselect_b32 s61, s61, {OOB}\nv_add_u32 v200, s61, v200")
            a(f"s_mov_b32 exec_lo, vcc_lo\ns_mov_b32 exec_hi, 0\nbuffer_load_dword v96, v200, {srd(SWS)}, 0 offen\ns_mov_b64 exec, -1")
        if self.o["pt"] & 512 and self.o["gtu"] < 0: gtouch()
        if self.o["pt"] & 64:
            a("s_and_b32 s3, s59, 3\ns_lshl_b32 s3, s3, 10\ns_add_u32 s60, s89, s3\ns_and_b32 s61, s23, 1\ns_mul_i32 s61, s61, 504\ns_add_u32 s61, s61, s90\ns_add_u32 s61, s61, s3")
            for k in range(16): a(f"s_buffer_load_dword s96, {srd(SWS)}, s60 offset:{(k//8)*4096 + (k%8)*128}")
            for k in range(4): a(f"s_buffer_load_dword s96, {srd(SWS)}, s61 offset:{k*128}")
        ACC = 100; FB = [20, 56]
        a("s_waitcnt lgkmcnt(0)")
        self.ts(1)
        def reads(u):
            fb = FB[u % 2]; r = []
            for t in range(5):
                r.append(f"ds_read_b128 v[{fb+16+4*t}:{fb+19+4*t}], {self.ad(4 + 3*(u % 2), self.p1x(u//2) + 2048*t)}")
            for j in (3, 0, 2, 1):
                for rd in range(2):
                    r.append(f"ds_read_b64_tr_b16 v[{fb+4*j+2*rd}:{fb+4*j+2*rd+1}], {self.ad(13 if j == 3 else 10, self.p1w(u) + [160, 320, 0, 0][j] + 7680*rd)}")
            return r
        def mfmas(u):
            fb = FB[u % 2]; r = []
            for j in (3, 0, 2, 1):
                for t in range(5):
                    c = ACC + (j*5+t)*4
                    cs = "0" if u == 0 else f"v[{c}:{c+3}]"
                    x, y = f"v[{fb+4*j}:{fb+4*j+3}]", f"v[{fb+16+4*t}:{fb+19+4*t}]"
                    if j == 1: x, y = y, x
                    r.append(f"v_mfma_f32_16x16x32_bf16 v[{c}:{c+3}], {x}, {y}, {cs}")
            return r
        for u in range(20):
            self.bar()
            if u == 0: self.ts(2)
            if u == 10: self.ts(3)
            if u == self.o["ots"]: otouch()
            if self.o["pt"] & 1024 and u == self.o["hts"]: htouch()
            if self.o["pt"] & 512 and u == self.o["gtu"]: gtouch()
            if u == self.o["wp0"] == self.o["wp1"]: a(f"buffer_load_dword v96, v206, {srd(SWO)}, 0 offen")
            elif u == self.o["wp0"]: fast(f"buffer_load_dword v96, v206, {srd(SWO)}, 0 offen")
            elif u == self.o["wp1"]: fast(f"buffer_load_dword v96, v206, {srd(SWO)}, 0 offen", 1)
            if u == self.o["cp2"]: self.code_pf(202, 96)
            if u == self.o["ccs"]:
                a(f"v_lshlrev_b32 v204, 5, v1\nbuffer_load_dword v205, v204, {srd(SDBG)}, 0 offen sc1")
            rd = reads(u); mf = mfmas(u-1) if u else []
            for i in range(max(len(rd), len(mf))):
                if i < len(rd): a(rd[i])
                if i < len(mf): a(mf[i])
            if u == self.o["ccc"]: self.count_check()
            a("s_waitcnt lgkmcnt(0)")
        STR = 20; CSR = 32; ONE = 52; QQ = 56; VT = 72; TT = 82
        mf = mfmas(19)
        self.bar()
        self.ts(4)
        rd = [f"ds_read2_b32 v[{STR+2*t}:{STR+2*t+1}], v99 offset0:{16*t} offset1:{80+16*t}" for t in range(5)]
        for t in range(5): rd += [f"ds_read_b128 v[{STT+8*t}:{STT+8*t+3}], v252 offset:{64*t}", f"ds_read_b128 v[{STT+8*t+4}:{STT+8*t+7}], v252 offset:{320+64*t}"]
        for i in range(15): a(rd[i]); a(mf[i])
        def ln(j, ts):
            r = []
            for q in range(4): r.append(f"v_mov_b32_dpp v{CSR+4*j+q}, v{ACC+j*20+q} row_newbcast:0 row_mask:0xf bank_mask:0xf")
            for t in ts:
                c = ACC + (j*5+t)*4
                for p in (0, 2):
                    r.append(f"v_pk_fma_f32 v[{c+p}:{c+p+1}], v[{CSR+4*j+p}:{CSR+4*j+p+1}], v[{STR+2*t}:{STR+2*t+1}], v[{c+p}:{c+p+1}] op_sel:[0,1,0] op_sel_hi:[1,1,1] neg_lo:[0,1,0] neg_hi:[0,1,0]")
            for t in ts:
                c = ACC + (j*5+t)*4
                for p in (0, 2):
                    r.append(f"v_pk_mul_f32 v[{c+p}:{c+p+1}], v[{c+p}:{c+p+1}], v[{STR+2*t}:{STR+2*t+1}] op_sel_hi:[1,0]")
            return r
        def cvt(d, c): a(f"v_cvt_pk_bf16_f32 v{d}, v{c}, v{c+1}\nv_cvt_pk_bf16_f32 v{d+1}, v{c+2}, v{c+3}")
        a("s_waitcnt lgkmcnt(10)")
        x = ln(3, range(5))
        for i, m in enumerate(mf[15:]):
            a(m)
            for y in x[3*i:3*i+3]: a(y)
        for y in x[15:]: a(y)
        a("s_mov_b32 exec_hi, 0xffff")
        for t in range(5): cvt(KK+4*t+2, ACC + (15+t)*4)
        a("s_mov_b32 exec_hi, -1")
        for t in range(5): a(f"ds_write_b64 v16, v[{KK+4*t+2}:{KK+4*t+3}] offset:{512*t}")
        for y in ln(0, range(5)): a(y)
        for t in range(1, 5): a(f"ds_read_b64 v[{QQ+4*t-2}:{QQ+4*t-1}], v17 offset:{512*t}")
        for t in range(5): a(f"ds_read_b64_tr_b16 v[{TT+2*t}:{TT+2*t+1}], v18 offset:{512*t}")
        for t in range(5): cvt(KK+4*t, ACC + t*4)
        for y in ln(2, range(1, 5)): a(y)
        for t in range(1, 5): cvt(QQ+4*t-4, ACC + (10+t)*4)
        a(f"v_mov_b32 v{CSR+4}, v{ACC+20}\nv_mov_b32 v{CSR+5}, v{ACC+20}")
        a("s_waitcnt lgkmcnt(0)")
        self.ts(5)
        SC = lambda t: 100 + 4*(t-1)
        SP = lambda t: 160 + 4*(t-1)
        mf = []
        for t in range(1, 5):
            q = f"v[{QQ+4*t-4}:{QQ+4*t-1}]"; m = MP1 if t == 1 else MP
            mf.append(f"v_mfma_f32_16x16x32_bf16 v[{SC(t)}:{SC(t)+3}], v[{KK+4*t}:{KK+4*t+3}], {q}, v[{MC}:{MC+3}]")
            mf.append(f"v_mfma_f32_16x16x32_bf16 v[{SP(t)}:{SP(t)+3}], v[{KK+4*t-4}:{KK+4*t-1}], {q}, v[{m}:{m+3}]")
        x = [f"v_permlane16_swap_b32 v{CSR+4}, v{CSR+5}", f"v_mov_b32 v{ONE}, 0x3f803f80", f"v_mov_b32 v{CSR+5}, v{CSR+4}", f"v_mov_b32 v{ONE+1}, 0x3f803f80",
             f"v_mov_b32 v{ONE+2}, 0x3f803f80", f"v_permlane32_swap_b32 v{CSR+4}, v{CSR+5}", f"v_mov_b32 v{ONE+3}, 0x3f803f80"]
        for t in range(5):
            c = ACC + (5+t)*4
            for p in (0, 2):
                x.append(f"v_pk_fma_f32 v[{c+p}:{c+p+1}], v[{CSR+4}:{CSR+5}], v[{STT+8*t+4+p}:{STT+8*t+5+p}], v[{c+p}:{c+p+1}] op_sel_hi:[0,1,1] neg_lo:[0,1,0] neg_hi:[0,1,0]")
        for t in range(5):
            c = ACC + (5+t)*4
            for p in (0, 2):
                x.append(f"v_pk_mul_f32 v[{c+p}:{c+p+1}], v[{c+p}:{c+p+1}], v[{STT+8*t+p}:{STT+8*t+p+1}]")
        for i, m in enumerate(mf):
            a(m)
            for y in x[3*i:3*i+3]: a(y)
        for y in x[24:]: a(y)
        for t in range(1, 5):
            for i in range(2):
                e = 20 + 2*(t-1) + i
                a(f"v_max3_f32 v{e}, v{SC(t)+2*i}, v{SC(t)+2*i+1}, v{SP(t)+2*i}\nv_max_f32 v{e}, v{e}, v{SP(t)+2*i+1}")
        for t in range(4): a(f"v_max_f32 v{28+t}, v{20+2*t}, v{21+2*t}")
        V = [(VT+2*t, ACC + (5+t)*4) for t in range(5)]
        SCL = 20 ** -0.5 * 1.4426950408889634
        a(f"s_mov_b32 s3, {SCL!r}")
        cvt(*V[0])
        a("v_permlane32_swap_b32 v28, v29\nv_permlane32_swap_b32 v30, v31\nv_max_f32 v28, v28, v29\nv_max_f32 v30, v30, v31")
        cvt(*V[1])
        a("v_permlane16_swap_b32 v28, v30\nv_max_f32 v28, v28, v30\nv_mul_f32 v28, s3, v28\nv_mov_b32 v30, v28")
        cvt(*V[2])
        a("v_permlane16_swap_b32 v28, v30\nv_mov_b32 v29, v28\nv_mov_b32 v31, v30")
        cvt(*V[3])
        a("v_permlane32_swap_b32 v28, v29\nv_permlane32_swap_b32 v30, v31")
        cvt(*V[4])
        for t in range(4):
            for i in range(2): a(f"v_fma_f32 v{20+2*t+i}, v{20+2*t+i}, s3, -v{28+t}")
        for e in range(8): a(f"v_exp_f32 v{20+e}, v{20+e}")
        PB = 32; OO = 100
        a("s_mov_b64 vcc, s[86:87]")
        def pv(t):
            b = PB + 4*t
            for i in range(2): a(f"v_cvt_pk_bf16_f32 v{20+2*t+i}, v{20+2*t+i}, v{20+2*t+i}")
            for k in range(4): a(f"v_and_b32 v{b+k}, v{20+2*t+k%2}, v{PM+k}")
        def pvm(t):
            b = PB + 4*t; o = OO + 12*t
            a(f"v_mfma_f32_16x16x32_bf16 v[{o+8}:{o+11}], v[{ONE}:{ONE+3}], v[{b}:{b+3}], 0")
            a(f"v_mfma_f32_16x16x32_bf16 v[{o}:{o+3}], v[{VT+2*t}:{VT+2*t+3}], v[{b}:{b+3}], 0")
            a(f"v_mfma_f32_16x16x32_bf16 v[{o+4}:{o+7}], v[{TT+2*t}:{TT+2*t+3}], v[{b}:{b+3}], 0")
        def fin(t):
            o = OO + 12*t
            a(f"v_rcp_f32 v{o+8}, v{o+8}")
            for p in (0, 2, 4, 6): a(f"v_pk_mul_f32 v[{o+p}:{o+p+1}], v[{o+p}:{o+p+1}], v[{o+8}:{o+9}] op_sel_hi:[1,0]")
            cvt(o, o)
            self.hst(f"buffer_store_dwordx2 v[{o}:{o+1}], v19, {srd(SWS)}, s89 offen offset:{256*t}")
            if t == 1: a("s_mov_b32 exec_lo, 0xffff0000")
            if t == 2: a("s_mov_b32 exec_lo, 0")
            if t == 3: a("s_mov_b32 exec_lo, 0\ns_mov_b32 exec_hi, 0xffff0000")
            cvt(150, o+4)
            if t: a("s_mov_b64 exec, -1")
        pv(0); pv(1); pvm(0); pv(2); pvm(1); pv(3); pvm(2); fin(0); pvm(3); fin(1); fin(2); fin(3)
        self.hst(f"buffer_store_dwordx2 v[150:151], v98, {srd(SWS)}, s90 offen")
        self.ts(6)
        self.signal(0, "s23")
        self.ts(18)
        a("s_cmp_ge_u32 s57, 30\ns_cbranch_scc1 Lcsum")
    def warm(self): pass
    def code_pf(self, va, vd):
        a = self.a; L1 = self.lab("cp"); L2 = self.lab("cpx")
        a(f"s_cmp_lg_u32 s22, 1\ns_cbranch_scc1 {L2}\ns_getpc_b64 s[96:97]\n{L1}:\ns_sub_u32 s96, s96, {L1}-{self.name}\ns_subb_u32 s97, s97, 0")
        a(f"s_mov_b32 s98, Lend-{self.name}\ns_mov_b32 s99, 0x00020000")
        if self.o["cp"] == 1: a(f"s_mul_i32 s3, s57, 12\nv_add_u32 v{va}, s3, v1\nv_lshlrev_b32 v{va}, 7, v{va}\ns_mov_b64 exec, 0xfff")
        else: a(f"s_and_b32 s3, s57, 7\ns_mul_i32 s3, s3, 48\nv_add_u32 v{va}, s3, v1\nv_lshlrev_b32 v{va}, 7, v{va}\ns_mov_b32 exec_hi, 0xffff")
        a(f"buffer_load_dword v{vd}, v{va}, s[96:99], 0 offen\ns_mov_b64 exec, -1\n{L2}:")
    def touch(self, dst, addr, soff):
        if self.o["pt"] & 8: return f"buffer_store_dword v1, v{addr}, {srd(SWS)}, {soff} offen"
        return f"buffer_load_dword v{dst}, v{addr}, {srd(SWS)}, {soff} offen"
    def prefetch(self, i0, early=False):
        a = self.a
        E, A, B = self.o["pth"], self.o["pf"], self.o["pb"]
        assert (A - E) % 2 == 0 and (B - A) % 2 == 0
        a(f"s_sub_u32 s60, s57, {i0}\ns_lshl_b32 s60, s60, 2\ns_add_u32 s60, s60, s23\ns_lshl_b32 s60, s60, 13")
        if early: rounds = range(E)
        else:
            rounds = list(range(E, A, 2)) + list(range(B, self.o['pe'], 2)) if i0 == 30 else range(A, B, 2)
            a("s_lshr_b32 s3, s22, 2\ns_lshl_b32 s3, s3, 16\ns_add_u32 s60, s60, s3")
        a("v_lshl_add_u32 v4, v1, 7, s60")
        for k, r in enumerate(rounds):
            a(f"v_add_u32 v6, {r << 16}, v4\nbuffer_load_dword v7, v6, {srd(SW2)}, 0 offen")
            a(f"s_waitcnt vmcnt({0 if early else 1})")
        a("s_waitcnt vmcnt(0)")
    def csum_addr(self, r):
        a = self.a
        a("s_sub_u32 s60, s57, 30\ns_lshl_b32 s60, s60, 3\ns_add_u32 s60, s60, s56")
        a(f"v_lshrrev_b32 v2, 4, v1\nv_and_b32 v3, 15, v1\nv_mul_u32_u24 v{r}, 3456, v2\nv_lshl_add_u32 v{r}, v3, 4, v{r}")
        a(f"s_mul_i32 s91, s22, {80*3456}\ns_lshl_b32 s3, s60, 8\ns_add_u32 s91, s91, s3")
        a(f"s_cmp_ge_u32 s60, 14\ns_cselect_b32 s3, {OOB}, 0\nv_or_b32 v{r}, s3, v{r}")
    def csum_ld(self, n, r, emit=True):
        x = f"buffer_load_dwordx4 v[{60+4*n}:{63+4*n}], v{r}, {srd(SW1)}, s91 offen\ns_add_u32 s91, s91, {4*3456}"
        if emit: self.a(x)
        return x
    def csum(self):
        a = self.a
        a("Lcsum:")
        self.csum_addr(4)
        for n in range(20): self.csum_ld(n, 4)
        a("v_mov_b32 v5, 0\nds_write_b32 v5, v5 offset:20480\ns_waitcnt lgkmcnt(0)\ns_barrier")
        a("Lcsum2:")
        a("v_lshrrev_b32 v2, 4, v1\nv_and_b32 v3, 15, v1")
        for e in range(8): a(f"v_mov_b32 v{10+e}, 0")
        a("v_mov_b32 v8, 0x00003f80\nv_mov_b32 v9, 0x3f800000")
        for n in range(20):
            a(f"s_waitcnt vmcnt({19-n})")
            for d in range(4):
                a(f"v_dot2c_f32_bf16 v{10+2*d}, v{60+4*n+d}, v8\nv_dot2c_f32_bf16 v{11+2*d}, v{60+4*n+d}, v9")
        for e in range(4): a(f"v_permlane32_swap_b32 v{10+e}, v{14+e}")
        for e in range(4): a(f"v_add_f32 v{10+e}, v{10+e}, v{14+e}")
        for e in range(2): a(f"v_permlane16_swap_b32 v{10+e}, v{12+e}")
        for e in range(2): a(f"v_add_f32 v{10+e}, v{10+e}, v{12+e}")
        a("v_lshlrev_b32 v3, 5, v3\nv_lshl_add_u32 v3, v2, 3, v3\ns_lshl_b32 s3, s22, 9\nv_add_u32 v3, s3, v3")
        a("ds_write_b64 v3, v[10:11] offset:16384\ns_waitcnt lgkmcnt(0)")
        a("s_cmp_ge_u32 s22, 4\ns_cbranch_scc1 Lcspf")
        a("v_mov_b32 v4, 1\nds_add_u32 v5, v4 offset:20480\ns_waitcnt lgkmcnt(0)")
        a("s_cmp_lg_u32 s22, 0\ns_cbranch_scc1 Lcsx\ns_cmp_ge_u32 s60, 14\ns_cbranch_scc1 Lcsx")
        a("s_mov_b32 s61, 0x100000\nLcsw:\nds_read_b32 v4, v5 offset:20480\ns_waitcnt lgkmcnt(0)\nv_readfirstlane_b32 s3, v4")
        a("s_sub_u32 s61, s61, 1\ns_cbranch_scc1 Lcsv\ns_cmp_lg_u32 s3, 256\ns_cbranch_scc1 Lcsw\nLcsv:")
        a("v_lshlrev_b32 v3, 3, v1")
        for w in range(8): a(f"ds_read_b64 v[{20+2*w}:{21+2*w}], v3 offset:{16384 + 512*w}")
        a("s_waitcnt lgkmcnt(0)")
        for w in range(1, 8): a(f"v_pk_add_f32 v[20:21], v[20:21], v[{20+2*w}:{21+2*w}]")
        self.srds([SWG])
        a(f"s_lshl_b32 s61, s60, 9\ns_add_u32 s61, s61, {CSUM}")
        for g in range(8):
            a(f"buffer_store_dwordx2 v[20:21], v3, {srd(SWG)}, s61 offen sc1\ns_add_u32 s61, s61, {GS}")
        a(f"s_mul_i32 s61, s60, {self.FS}\ns_add_u32 s61, s61, {FL_BASE + (64 + 32)*self.FS}\nv_mov_b32 v4, 1")
        a("v_lshrrev_b32 v3, 2, v1\nv_lshlrev_b32 v3, 21, v3\nv_and_b32 v5, 3, v1\nv_lshl_add_u32 v3, v5, 2, v3")
        a("s_waitcnt vmcnt(0)")
        a(f"s_mov_b32 exec_hi, 0\nbuffer_store_dword v4, v3, {srd(SWG)}, s61 offen sc1\ns_mov_b64 exec, -1")
        a("s_waitcnt vmcnt(0)")
        self.ts(24)
        a("s_branch Lcsx\nLcspf:\ns_barrier")
        if self.o["pf"]: self.prefetch(30, True)
        a("Lcsx:")
        if self.o["pf"]:
            a("s_barrier")
            self.prefetch(30)
            self.ts(25)
        if self.o["wb"]:
            a("s_cmp_lg_u32 s22, 0\ns_cbranch_scc1 Lcsy\ns_cmp_lg_u32 s57, 31\ns_cbranch_scc1 Lcsy")
            if self.o["wb"] & 2:
                a("s_mov_b32 s61, 0\ns_mov_b32 s60, 30")
                self.wait_flags(1, False)
                a("buffer_wbl2 sc1\ns_waitcnt vmcnt(0)")
            a("s_mov_b32 s61, 0\ns_mov_b32 s60, 28")
            self.wait_flags(2, False)
            self.ts(24)
            a("buffer_wbl2 sc1\ns_waitcnt vmcnt(0)")
            self.ts(25)
            a("Lcsy:")
        self.tprev = 20
        self.fin()
    W1R = [152, 168, 184, 200, 216, 232]
    def bg_init(self):
        self.bg = [(s, n) for s in range(self.o["nv"]) for n in range(4)]
    def bg_issue(self, cnt):
        a = self.a
        while cnt > 0 and self.bg:
            s, n = self.bg.pop(0); cnt -= 1
            r = self.W1R[s] + 4*n
            a(f"s_add_u32 s61, s76, {4*n*3456}")
            a(f"buffer_load_dwordx4 v[{r}:{r+3}], v16, {srd(SW1)}, s61 offen")
            if n == 3: self.adv(76, 64*3456, 10)
            if n == 3 and s in (2, 5): self.w1_jump(4 if s == 2 else 3)
            self.vissue(("w1", s))
    def w1_jump(self, k):
        if self.o["w1r"]: self.a(f"s_mul_i32 s3, s72, {k*64*3456//128}\ns_add_u32 s76, s76, s3\ns_sub_u32 s3, s76, {640*3456}\ns_cselect_b32 s76, s76, s3")
    def w1_flush(self, s):
        self.vwait([("w1", s)])
        r = self.W1R[s]
        if self.o["w1r"]:
            if s == 0: self.a("s_mul_i32 s3, s72, 384\nv_add_u32 v15, 49152, v14\nv_subrev_u32 v15, s3, v15\nv_add_u32 v14, s3, v14")
            for n in range(4): self.a(f"ds_write_b128 v{14 + s // 3}, v[{r+4*n}:{r+4*n+3}] offset:{self.p3w(s % 3) + n*1024}")
            return
        for n in range(4): self.a(f"ds_write_b128 v{14 + (self.p3w(s) >> 16)}, v[{r+4*n}:{r+4*n+3}] offset:{(self.p3w(s) & 0xffff) + n*1024}")
    def w1_dma(self, s):
        a = self.a
        for n in range(4):
            a(f"s_add_u32 m0, s64, {self.p3w(s) + n*1024}")
            a(f"s_add_u32 s61, s76, {4*n*3456}")
            a(f"buffer_load_dwordx4 v16, {srd(SW1)}, s61 offen lds")
            self.vissue(("w1", s))
        self.adv(76, 64*3456, 10)
    def w2_dma(self, u):
        a = self.a
        for ks in range(2):
            a(f"s_add_u32 m0, s79, {self.p4w(u) + ks*4096}")
            a(f"s_add_u32 s61, s83, {32*ks*1280}")
            a(f"buffer_load_dwordx4 v17, {srd(SW2)}, s61 offen lds")
            self.vissue(("w2", u))
        self.adv(83, 64*1280, 27)
    def w2r(self, u): return 52 + 8*(u if u < 9 else u - 3)
    def w2_reg(self, u):
        a = self.a
        for ks in range(2):
            r = self.w2r(u) + 4*ks
            a(f"s_add_u32 s61, s83, {32*ks*1280}")
            a(f"buffer_load_dwordx4 v[{r}:{r+3}], v17, {srd(SW2)}, s61 offen")
            self.vissue(("w2", u))
        self.adv(83, 64*1280, 27)
    def w2_flush(self, u):
        for ks in range(2):
            r = self.w2r(u) + 4*ks; o = self.p4w(u) + ks*4096
            self.a(f"ds_write_b128 v{[19, 9][o >> 16]}, v[{r}:{r+3}] offset:{o & 0xffff}")
    def p1l(self):
        a = self.a
        LA = self.o["la1"]
        self.vreset()
        a("s_lshl_b32 s60, s59, 6\ns_sub_u32 s60, s60, 16")
        a("s_mul_i32 s3, s23, 20\nv_lshrrev_b32 v14, 3, v1\nv_add_u32 v14, s3, v14\nv_and_b32 v13, 7, v1")
        for n in range(3):
            a(f"v_add_u32 v2, {8*n}, v14\nv_lshrrev_b32 v3, 1, v2\nv_and_b32 v3, 7, v3\nv_xor_b32 v3, v3, v13")
            a(f"v_add_u32 v2, s60, v2\nv_max_i32 v2, 0, v2\nv_mul_u32_u24 v2, 1280, v2\nv_lshl_add_u32 v{15+n}, v3, 4, v2")
        a("v_cmp_le_u32 vcc, 30, v1\nv_cndmask_b32 v2, 0, 1, vcc")
        a("v_mul_u32_u24 v3, 30, v2\nv_sub_u32 v3, v1, v3")
        a("v_mul_u32_u24 v4, 26, v3\nv_lshrrev_b32 v4, 8, v4")
        a("v_mul_u32_u24 v5, 10, v4\nv_sub_u32 v5, v3, v5")
        a("v_mul_u32_u24 v18, 3840, v2\nv_mul_u32_u24 v4, 1280, v4\nv_add_u32 v18, v18, v4\nv_lshl_add_u32 v18, v5, 4, v18")
        a("s_and_b32 s3, s23, 1\ns_lshl_b32 s3, s3, 4\ns_lshr_b32 s61, s23, 1\ns_lshl_b32 s61, s61, 2\ns_add_u32 s3, s3, s61")
        a("s_mul_i32 s3, s3, 3840\ns_mul_i32 s61, s58, 160\ns_add_u32 s3, s3, s61\nv_add_u32 v18, s3, v18")
        a(f"s_mul_i32 s64, s23, {4*960}\ns_mul_i32 s65, s23, 2560")
        a("s_cmp_eq_u32 s23, 0\ns_cselect_b32 s78, 0xffffff00, -1")
        if self.o["rot1"] == 3:
            if self.o["r1d"] == 1: a("s_and_b32 s3, s57, 3\ns_lshl_b32 s3, s3, 1\ns_bfe_u32 s61, s57, 0x10002\ns_add_u32 s3, s3, s61")
            elif self.o["r1d"] == 0: a("s_mov_b32 s3, 0")
            elif self.o["r1d"] == 2: a("s_bfe_u32 s3, s57, 0x10002\ns_mul_i32 s3, s3, 5")
            elif self.o["r1d"] == 3: a("s_and_b32 s3, s57, 1\ns_mul_i32 s3, s3, 5\ns_bfe_u32 s61, s57, 0x10002\ns_lshl_b32 s61, s61, 1\ns_add_u32 s3, s3, s61")
            else:
                a(f"s_and_b32 s3, s57, 3\ns_bfe_u32 s61, s57, 0x10003\ns_lshl_b32 s61, s61, 2\ns_add_u32 s3, s3, s61\ns_lshl_b32 s3, s3, 2\ns_lshr_b32 s3, {self.o['r1t']}, s3\ns_and_b32 s3, s3, 15")
                a(f"s_bfe_u32 s61, s57, 0x10002\ns_mul_i32 s61, s61, {self.o['r1e']}\ns_add_u32 s3, s3, s61")
                assert self.o["r1a"] == 0
            a(f"s_lshr_b32 s61, s57, 4\ns_mul_i32 s61, s61, {self.o['r1b']}\ns_add_u32 s3, s3, s61\ns_bfe_u32 s62, s57, 0x10003\ns_mul_i32 s61, s62, {self.o['r1a']}\ns_add_u32 s3, s3, s61")
            a("s_sub_u32 s61, s3, 10\ns_cmp_ge_u32 s3, 10\ns_cselect_b32 s3, s61, s3")
            a(f"s_lshl_b32 s75, s3, 7\ns_lshl_b32 s3, s3, 1\ns_add_u32 s3, s3, s62\ns_mul_i32 s76, s3, {32*3840}")
            a(f"s_cmp_eq_u32 s62, 0\ns_cselect_b32 s96, 1, -1\ns_mul_i32 s96, s96, 128\ns_cselect_b32 s97, 1280, s96\ns_cselect_b32 s98, 0, {9*128}")
            a(f"s_mul_i32 s99, s96, 960\ns_cselect_b32 s100, {20*32*3840}, s99\ns_cselect_b32 s101, 0, {19*32*3840}")
        elif self.o["rot1"]:
            a("s_and_b32 s3, s57, 7\ns_lshr_b32 s61, s57, 3")
            a("s_mul_i32 s3, s3, 5\ns_lshr_b32 s3, s3, 2")
            if self.o["rot1"] == 1:
                a("s_mul_i32 s61, s61, 5\ns_lshr_b32 s61, s61, 1\ns_add_u32 s3, s3, s61")
                a("s_sub_u32 s61, s3, 10\ns_cmp_ge_u32 s3, 10\ns_cselect_b32 s3, s61, s3")
            a(f"s_lshl_b32 s75, s3, 7\ns_mul_i32 s76, s3, {64*3840}")
        else:
            a("s_mov_b32 s75, 0\ns_mov_b32 s76, 0")
        self.srds([SX, SWQ])
        self.ts(1)
        def xiss(s):
            for n in range(3):
                a(f"s_add_u32 m0, s65, {self.p1x(s) + n*1024}")
                if n == 0: a("s_mov_b32 exec_lo, s78")
                if n == 1: a("s_mov_b32 exec_lo, -1")
                if n == 2: a("s_mov_b32 exec_hi, 0")
                a(f"buffer_load_dwordx4 v{15+n}, {srd(SX)}, s75 offen lds")
                self.vissue(("x", s))
            a("s_mov_b32 exec_hi, -1")
            if self.o["rot1"] == 3: a("s_add_u32 s75, s75, s96\ns_cmp_eq_u32 s75, s97\ns_cselect_b32 s75, s98, s75")
            else: self.adv(75, 128, 10)
        def wiss(u):
            a("s_mov_b32 exec_hi, 0x0fffffff")
            for jj in range(4):
                a(f"s_add_u32 m0, s64, {self.p1w(u) + jj*960}")
                a(f"s_add_u32 s61, s76, {[0, 2, 8, 10][jj] * 3840}")
                a(f"buffer_load_dwordx4 v18, {srd(SWQ)}, s61 offen lds")
                self.vissue(("w", u))
            a("s_mov_b32 exec_hi, -1")
            if self.o["rot1"] == 3: a("s_add_u32 s76, s76, s99\ns_cmp_eq_u32 s76, s100\ns_cselect_b32 s76, s101, s76")
            else: self.adv(76, 32*3840, 20)
        def iss(u):
            if u % 2 == 0: xiss(u // 2)
            wiss(u)
        nis = self.o["i0"]
        for u in range(nis):
            iss(u)
            if u == 0: self.ts(2)
        self.ts(3)
        self.srds([SWS, SWO, SW1, SW2])
        for r in range(6): a(f"v_mov_b32 v{20+r}, 0")
        a("v_lshlrev_b32 v26, 4, v1\nv_add_u32 v26, s65, v26\nv_mov_b32 v12, 0x3f803f80")
        self.mk3(26)
        self.p24_ids()
        self.p2_wo_setup()
        self.ts(4)
        if self.dbg: self.vwait([("x", 0)]); self.ts(5)
        self.vwait([("w", 0)])
        self.ts(6)
        nwo = 0
        for u in range(20):
            self.bar()
            if u == 19:
                for m in ("quad_perm:[1,0,3,2]", "quad_perm:[2,3,0,1]", "row_half_mirror"):
                    for r in range(6): a(f"v_add_f32_dpp v{20+r}, v{20+r}, v{20+r} {m} row_mask:0xf bank_mask:0xf")
                for n in range(3):
                    m_, q_ = 33 + 2*n, 21 + 2*n
                    a(f"v_mul_f32 v{m_}, {1.0/640!r}, v{20+2*n}\nv_mul_f32 v{q_}, {1.0/640!r}, v{q_}")
                    a(f"v_fma_f32 v{q_}, -v{m_}, v{m_}, v{q_}\nv_max_f32 v{q_}, 0, v{q_}\nv_add_f32 v{q_}, 1e-5, v{q_}\nv_rsq_f32 v{m_-1}, v{q_}")
                a("v_lshlrev_b32 v2, 2, v14")
            if u == 19:
                a("ds_write2_b32 v2, v32, v33 offset1:80\nds_write2_b32 v2, v34, v35 offset0:8 offset1:88")
                a("s_mov_b32 exec_hi, 0\nds_write2_b32 v2, v36, v37 offset0:16 offset1:96\ns_mov_b32 exec_hi, -1")
            for _ in range(2):
                if nis <= min(19, u + (LA if u < self.o["lasw"] else self.o["la2"])): iss(nis); nis += 1
            if self.o["nE"] and u == 17: self.p3_w_setup(); self.bg_init()
            if self.o["nE"] and u >= 17 and self.o["eo"]: self.bg_issue(self.o["nE"])
            if u >= self.o["wo0"]: self.p2_wo_issue(nwo); nwo += 1
            if self.o["nE"] and u >= 17 and not self.o["eo"]: self.bg_issue(self.o["nE"])
            if u % 2 == 0:
                for n in range(3): a(f"ds_read_b128 v[{32+4*n}:{35+4*n}], {self.ad(26, self.p1x(u//2) + n*1024)}")
                a("s_waitcnt lgkmcnt(0)")
                for d in range(4):
                    for n in range(3):
                        a(f"v_dot2c_f32_bf16 v{20+2*n}, v{32+4*n+d}, v12\nv_dot2c_f32_bf16 v{21+2*n}, v{32+4*n+d}, v{32+4*n+d}")
            if u == 19: a("s_waitcnt lgkmcnt(0)")
            if u + 1 <= 19: self.vwait([("w", u + 1)])
        self.bar()
        if self.o["wol"]: self.p3_w_setup(); self.bg_init(); self.bg_issue(self.o["nA"])
        for k in range(nwo, 5): self.p2_wo_issue(k)
        a("s_cmp_ge_u32 s57, 30\ns_cbranch_scc1 Lcsum2")
        if self.o["pt"] & 2:
            a("v_and_b32 v2, 15, v1\nv_lshlrev_b32 v3, 3, v2\nv_cmp_gt_u32 vcc, s69, v3\nv_lshlrev_b32 v2, 7, v2\nv_lshrrev_b32 v3, 4, v1\nv_lshl_add_u32 v2, v3, 12, v2")
            a(f"v_mov_b32 v3, {OOB}\nv_cndmask_b32 v2, v3, v2, vcc")
            a(f"s_lshl_b32 s61, s67, 2\ns_add_u32 s61, s61, s23\ns_lshl_b32 s61, s61, 13\ns_lshl_b32 s3, s63, 4\ns_add_u32 s61, s61, s3\ns_add_u32 s61, s61, {H_BASE}")
            a(f"s_mov_b32 exec_hi, 0\n{self.touch(60, 2, 's61')}\ns_mov_b32 exec_hi, -1")
            self.vissue("pt")
        if not self.o["nE"] and not self.o["wol"]: self.p3_w_setup(); self.bg_init()
        if not self.o["wol"]: self.bg_issue(self.o["nA"])
        self.p4_w_setup()
        self.ts(18)

    def p24_ids(self):
        a = self.a
        a("s_mul_i32 s66, s57, 26\ns_lshr_b32 s66, s66, 8\ns_mul_i32 s3, s66, 10\ns_sub_u32 s67, s57, s3")
        a("s_lshl_b32 s68, s56, 8\ns_mul_i32 s63, s66, 88\ns_add_u32 s68, s68, s63")
        a("s_cmp_eq_u32 s66, 2\ns_cselect_b32 s69, 0, 8\ns_add_u32 s69, s69, 80")
    def w64_addr(self, dst, Drows):
        a = self.a
        a("v_lshrrev_b32 v2, 3, v1\nv_and_b32 v3, 3, v2\nv_lshrrev_b32 v4, 2, v2")
        a(f"v_mul_u32_u24 v4, {Drows}, v4\nv_add_u32 v3, v3, v4\nv_mul_u32_u24 v{dst}, 1280, v3")
        a("v_lshrrev_b32 v2, 4, v1\nv_lshlrev_b32 v2, 1, v2\nv_and_b32 v3, 7, v1\nv_xor_b32 v3, v3, v2")
        a(f"v_lshl_add_u32 v{dst}, v3, 4, v{dst}")
        a(f"s_lshl_b32 s3, s67, 7\nv_add_u32 v{dst}, s3, v{dst}")
    def panel96_addr(self, dst):
        a = self.a
        for n in range(3):
            a(f"v_add_u32 v2, {64*n}, v1\nv_cmp_le_u32 vcc, 96, v2\nv_cndmask_b32 v3, 0, 1, vcc")
            a("v_mul_u32_u24 v4, 96, v3\nv_sub_u32 v2, v2, v4")
            a("s_lshl_b32 s3, s23, 1\nv_add_u32 v3, s3, v3")
            a(f"v_mul_u32_u24 v3, {CS}, v3\nv_add_u32 v4, s63, v2\nv_lshl_add_u32 v3, v4, 4, v3")
            a(f"v_cmp_gt_u32 vcc, s69, v2\nv_mov_b32 v4, {OOB}\nv_cndmask_b32 v{dst+n}, v4, v3, vcc")
    def panel96_issue(self, areg, gbase, nst, ldsbase, tag):
        a = self.a
        a(f"s_add_u32 s61, s75, {gbase}")
        for n in range(3):
            a(f"s_add_u32 m0, s65, {ldsbase + n*1024}")
            a(f"buffer_load_dwordx4 v{areg+n}, {srd(SWS)}, s61 offen {['', 'sc1', 'nt', 'sc0 sc1', 'sc1 nt'][self.o['ldsc']]} lds")
            self.vissue(tag)
        self.adv(75, 8*CS, nst)
    def c24_addr(self):
        a = self.a
        a("s_lshr_b32 s70, s23, 1\ns_and_b32 s71, s23, 1")
        a("v_lshrrev_b32 v11, 3, v1\nv_and_b32 v11, 3, v11\ns_lshl_b32 s3, s71, 1\nv_xor_b32 v11, s3, v11")
        a("v_lshrrev_b32 v2, 2, v1\nv_lshlrev_b32 v2, 7, v2\nv_and_b32 v3, 3, v1\nv_lshl_add_u32 v2, v3, 3, v2")
        a("v_xor_b32 v3, 1, v11\nv_lshl_add_u32 v5, v3, 5, v2\nv_lshl_add_u32 v2, v11, 5, v2")
        self.mk3(2); self.mk3(5)
        a("v_lshrrev_b32 v8, 4, v1\nv_mul_u32_u24 v8, 1536, v8\nv_and_b32 v11, 15, v1\nv_lshl_add_u32 v8, v11, 4, v8")
        a("s_mul_i32 s3, s70, 768\nv_add_u32 v8, s3, v8")
        self.mk3(8)
    def c24_loop(self, nst, aoff, boff, ACC, tsb):
        a = self.a
        def reads(u):
            s, ks = divmod(u, 2); f = 20 + 20*(u % 4); r = []
            for j in range(2):
                for rd in range(2):
                    r.append(f"ds_read_b64_tr_b16 v[{f+4*j+2*rd}:{f+4*j+2*rd+1}], {self.ad(2+3*j, aoff(s) + ks*4096 + rd*2048)}")
            for t in range(3):
                r.append(f"ds_read_b128 v[{f+8+4*t}:{f+11+4*t}], {self.ad(8, boff(s) + ks*4*1536 + t*256)}")
            return [r[0], r[4], r[1], r[5], r[2], r[3], r[6]]
        def mfmas(u):
            f = 20 + 20*(u % 4); r = []
            for j in range(2):
                for t in range(3):
                    c = ACC + (t*2+j)*4
                    cs = "0" if u == 0 and not self.o["ri"] else f"v[{c}:{c+3}]"
                    r.append(f"v_mfma_f32_16x16x32_bf16 v[{c}:{c+3}], v[{f+4*j}:{f+4*j+3}], v[{f+8+4*t}:{f+11+4*t}], {cs}")
            if self.o["ri"] and u == 2*nst - 1: r = [r[0], r[1], r[3], r[2], r[4], r[5]]
            return r
        n = 2*nst
        self.bar()
        self.ts(tsb)
        for x in reads(0) + reads(1): a(x)
        for u in range(n):
            nu = u + 2
            if nu < n and nu % 2 == 0: self.bar()
            if u == nst: self.ts(tsb+1)
            a(f"s_waitcnt lgkmcnt({7 if u + 1 < n else 0})")
            if u == n - 1:
                self.bar(); self.ts(tsb+2)
            rd = reads(nu) if nu < n else []
            mf = mfmas(u)
            for i, m in enumerate(mf):
                a(m)
                if i < len(rd): a(rd[i])
            for x in rd[len(mf):]: a(x)
    def c24_rowaddr(self):
        a = self.a
        a("v_and_b32 v12, 15, v1\ns_mul_i32 s3, s70, 48\nv_add_u32 v12, s3, v12")
        a("v_lshrrev_b32 v13, 4, v1\nv_and_b32 v14, 1, v13\nv_lshlrev_b32 v14, 1, v14\nv_lshrrev_b32 v11, 1, v13\nv_add_u32 v14, v14, v11")
        a("s_lshl_b32 s3, s71, 2\nv_add_u32 v14, s3, v14")
    def c24_addr_rm(self, dst):
        a = self.a
        for t in range(3):
            a(f"v_add_u32 v11, {16*t}, v12\nv_cmp_gt_u32 vcc, s69, v11\nv_add_u32 v11, s68, v11\nv_mul_u32_u24 v11, 1280, v11")
            a(f"v_lshl_add_u32 v11, v14, 4, v11\ns_lshl_b32 s3, s67, 7\nv_add_u32 v11, s3, v11")
            a(f"v_mov_b32 v{dst+t}, {OOB}\nv_cndmask_b32 v{dst+t}, v{dst+t}, v11, vcc")
    def c24_addr_panel(self, dst):
        a = self.a
        for t in range(3):
            a(f"s_lshl_b32 s3, s67, 3\nv_add_u32 v{dst+t}, s3, v14\nv_mul_u32_u24 v{dst+t}, {CS}, v{dst+t}")
            a(f"v_add_u32 v11, {16*t}, v12\nv_cmp_gt_u32 vcc, s69, v11\nv_add_u32 v11, s63, v11")
            a(f"v_lshl_add_u32 v11, v11, 4, v{dst+t}")
            a(f"v_mov_b32 v{dst+t}, {OOB}\nv_cndmask_b32 v{dst+t}, v{dst+t}, v11, vcc")
    def c24_init(self, ACC, RES):
        a = self.a
        if not self.o["ri"]: return
        a("s_waitcnt vmcnt(0)")
        for t in range(3):
            A = ACC + t*8
            for d in range(4): a(f"v_lshlrev_b32 v{A+2*d}, 16, v{RES+4*t+d}\nv_and_b32 v{A+2*d+1}, 0xffff0000, v{RES+4*t+d}")
            for r in range(4): a(f"v_permlane16_swap_b32 v{A+r}, v{A+4+r}")
    def c24_sum(self, ACC, RES, OUT, T, store):
        a = self.a
        for t in range(3):
            A = ACC + t*8; B = A + 4
            if self.o["ri"]:
                for r in range(4): a(f"v_permlane16_swap_b32 v{A+r}, v{B+r}")
                for d in range(4): a(f"v_cvt_pk_bf16_f32 v{OUT+4*t+d}, v{A+2*d}, v{A+2*d+1}")
                store(t)
                continue
            for d in range(4):
                a(f"v_lshlrev_b32 v{T+2*d}, 16, v{RES+4*t+d}\nv_and_b32 v{T+2*d+1}, 0xffff0000, v{RES+4*t+d}")
            for r in range(4): a(f"v_permlane16_swap_b32 v{A+r}, v{B+r}")
            for d in range(4):
                a(f"v_pk_add_f32 v[{T+2*d}:{T+2*d+1}], v[{T+2*d}:{T+2*d+1}], v[{A+2*d}:{A+2*d+1}]")
            for d in range(4):
                a(f"v_cvt_pk_bf16_f32 v{OUT+4*t+d}, v{T+2*d}, v{T+2*d+1}")
            store(t)

    P2_WO = 81920; P2_RING = 0; P2_NS = 6
    HREG = 240
    def p2_wo_setup(self):
        a = self.a
        self.w64_addr(44, 8); self.w64_addr(45, 40)
        self.csum_addr(46)
        a(f"s_mul_i32 s89, s23, {160*1280}\ns_mul_i32 s79, s23, 5")
        if self.o["rot2"]:
            a("s_lshl_b32 s3, s67, 1\ns_add_u32 s79, s79, 20\ns_sub_u32 s79, s79, s3\ns_sub_u32 s3, s79, 20\ns_cmp_ge_u32 s79, 20\ns_cselect_b32 s79, s3, s79")
        a("s_lshl_b32 s79, s79, 12")
    def p2_wo_issue(self, kk):
        a = self.a
        L1 = self.lab("csl"); L2 = self.lab("csb")
        a(f"s_cmp_ge_u32 s57, 30\ns_cbranch_scc1 {L1}")
        self.ool.append(f"{L1}:\n" + "\n".join(self.csum_ld(4*kk + n, 46, False) for n in range(4)) + f"\ns_branch {L2}")
        def blk(kk, sb):
            r = []
            for io in range(4):
                q = 4*kk + 2*(io % 2); rd = io // 2; hg = q // 10; c = q % 10
                if c < 8: row = 80*hg + 20*(c//2) + 4*rd; reg = 44
                else: row = 80*hg + 20*rd + 16; reg = 45
                r.append(f"s_add_u32 m0, {sb}, {self.P2_WO + io*1024}\ns_add_u32 s61, s89, {row*1280}\nbuffer_load_dwordx4 v{reg}, {srd(SWO)}, s61 offen lds")
            return "\n".join(r)
        for io in range(4): self.vissue("wo")
        if self.o["wor"]:
            OR = [[0, 1, 2, 4, 3], [2, 3, 4, 0, 1], [4, 0, 2, 1, 3]]
            pos = lambda k: f"s_add_u32 s90, s79, {k*4096}\ns_sub_u32 s3, s90, 81920\ns_cselect_b32 s90, s90, s3\n"
            for b in (1, 2):
                Lb = self.lab("wob")
                a(f"s_cmp_eq_u32 s66, {b}\ns_cbranch_scc1 {Lb}")
                self.ool.append(f"{Lb}:\n" + pos(OR[b][kk]) + blk(OR[b][kk], "s90") + f"\ns_branch {L2}")
            a(pos(OR[0][kk]) + blk(OR[0][kk], "s90"))
        else:
            a(blk(kk, "s79"))
            self.adv(79, 4096, 20)
        a(f"{L2}:")
    def p2c(self):
        a = self.a
        self.p24_ids(); self.c24_addr(); self.c24_rowaddr()
        XR = 220
        self.c24_addr_rm(16)
        for t in range(3):
            a(f"buffer_load_dwordx4 v[{XR+4*t}:{XR+4*t+3}], v{16+t}, {srd(SX)}, 0 offen")
        if self.o["cp3"]: self.code_pf(202, 203)
        self.c24_addr_panel(16)
        if self.o["pt"] & 16:
            a(f"s_mov_b32 s61, {H_BASE}")
            for t in range(3): a(f"buffer_load_dword v19, v{16+t}, {srd(SWS)}, s61 offen")
        if self.o["pt"] & 128:
            a(f"s_sub_u32 s3, s69, 48\ns_mul_i32 s3, s3, s70\ns_add_u32 s3, s3, s63\ns_lshl_b32 s3, s3, 4\ns_lshl_b32 s61, s67, 1\ns_add_u32 s61, s61, s71\ns_lshl_b32 s61, s61, 14\ns_add_u32 s61, s61, s3")
            for k in range(24): a(f"s_buffer_load_dword s96, {srd(SWS)}, s61 offset:{H_BASE + (k//6)*4096 + (k%6)*128}")
        a("v_and_b32 v232, 1, v13\nv_lshl_add_u32 v232, v232, 4, v12\nv_add_u32 v233, 32, v12\nv_lshrrev_b32 v11, 1, v13\nv_lshlrev_b32 v11, 2, v11")
        a(f"v_mov_b32 v15, {OOB}")
        for r in (232, 233):
            a(f"v_cmp_gt_u32 vcc, s69, v{r}\nv_add_u32 v{r}, s63, v{r}\nv_lshl_add_u32 v{r}, v{r}, 3, v11\nv_cndmask_b32 v{r}, v15, v{r}, vcc")
        a(f"s_lshl_b32 s60, s67, 1\ns_add_u32 s60, s60, s71\ns_lshl_b32 s60, s60, 11\ns_add_u32 s60, s60, {ST_BASE}")
        ACC = 100
        if self.o["pt"] & 128: a("s_waitcnt lgkmcnt(0)"); self.ts(23)
        self.c24_init(ACC, XR)
        self.c24_loop(10, lambda s: self.P2_WO + s*8192, lambda s: self.P2_RING + ((s + 1) % self.P2_NS)*12288, ACC, 7)
        a("s_waitcnt vmcnt(0)")
        H = self.HREG
        a(f"s_mov_b32 s61, {H_BASE}")
        a("s_mov_b64 vcc, s[86:87]")
        self.c24_sum(ACC, XR, H, 32, lambda t: self.hst(f"buffer_store_dwordx4 v[{H+4*t}:{H+4*t+3}], v{16+t}, {srd(SWS)}, s61 offen"))
        self.ts(19)
        a("v_mov_b32 v30, 0x3f803f80")
        for t in range(6): a(f"v_mov_b32 v{20+t}, 0")
        for d in range(4):
            for t in range(3):
                a(f"v_dot2c_f32_bf16 v{20+2*t}, v{H+4*t+d}, v30\nv_dot2c_f32_bf16 v{21+2*t}, v{H+4*t+d}, v{H+4*t+d}")
        self.signal(1, "s23")
        self.ts(20)
        for t in range(3): a(f"v_permlane32_swap_b32 v{20+2*t}, v{21+2*t}")
        for t in range(3): a(f"v_add_f32 v{20+2*t}, v{20+2*t}, v{21+2*t}")
        a("v_mov_b32 v25, v24")
        a("v_permlane16_swap_b32 v20, v22\nv_permlane16_swap_b32 v24, v25")
        a("v_add_f32 v20, v20, v22\nv_add_f32 v24, v24, v25")
        self.hst(f"buffer_store_dword v20, v232, {srd(SWS)}, s60 offen")
        self.hst(f"buffer_store_dword v24, v233, {srd(SWS)}, s60 offen")
        a("s_waitcnt vmcnt(0)\ns_mov_b64 exec, 1")
        self.hst(f"buffer_store_dword v3, off, {srd(SWS)}, s61 offset:16")
        a("s_mov_b64 exec, -1")
    def p2l(self):
        a = self.a
        self.panel96_addr(11)
        a("s_mul_i32 s65, s23, 3072")
        a(f"s_mul_i32 s75, s67, {8*CS}" if self.o["rot2"] else "s_mov_b32 s75, 0")
        a("v_lshlrev_b32 v14, 4, v1\nv_add_u32 v14, s64, v14\nv_add_u32 v15, 0x10000, v14\ns_lshl_b32 s79, s23, 10\nv_lshl_add_u32 v19, v1, 4, s79\nv_add_u32 v9, 0x10000, v19")
        a("s_lshl_b32 s61, s66, 3\ns_mov_b32 s60, 16")
        self.wait_flags(0, False)
        self.ts(7)
        NS = self.P2_NS
        iss = lambda s: self.panel96_issue(11, O_BASE, 10, self.P2_RING + ((s + 1) % NS)*12288, ("o", s))
        no = self.o["o0"]
        for s in range(no): iss(s)
        self.vwait([("o", 0)])
        for s in range(10):
            self.bar()
            for _ in range(self.o["per"]):
                if no <= min(9, max(s - 2, -1) + NS): iss(no); no += 1
            assert self.o["o0"] <= 5
            if s >= self.o["c0"]: self.bg_issue(self.o["nC"])
            if s + 1 <= 9: self.vwait([("o", s + 1)])
        self.bar()
        a("s_cmp_ge_u32 s57, 28\ns_cbranch_scc1 Lskip3l")

    def p3w(self, s): return A16(s % 6)
    def p3h(self, s): return A16(6 + s % 4)
    P3_ST = A16(4)
    def p3_ids(self):
        a = self.a
        a("s_cmp_ge_u32 s57, 14\ns_cselect_b32 s3, 1, 0\ns_cselect_b32 s73, 14, 0\ns_sub_u32 s73, s57, s73")
        a("s_lshl_b32 s72, s3, 7")
    def p3_w_setup(self):
        a = self.a
        self.p3_ids()
        a("v_lshrrev_b32 v2, 4, v1\nv_lshlrev_b32 v3, 2, v2\nv_and_b32 v4, 15, v1\nv_xor_b32 v4, v4, v3")
        a("v_mul_u32_u24 v16, 3456, v2\nv_lshl_add_u32 v16, v4, 4, v16")
        a(f"s_lshl_b32 s3, s73, 8\ns_mul_i32 s61, s23, {16*3456}\ns_add_u32 s3, s3, s61")
        a(f"s_cmp_ge_u32 s57, 28\ns_cselect_b32 s3, {OOB}, s3\nv_add_u32 v16, s3, v16")
        a("s_lshl_b32 s64, s23, 12")
        if self.o["rot3"]:
            a(f"s_mul_i32 s77, s73, 183\ns_lshr_b32 s77, s77, 8\ns_cmp_ge_u32 s57, 14\ns_cselect_b32 s3, {self.o['r3o']}, 0\ns_add_u32 s77, s77, s3")
            a("s_sub_u32 s3, s77, 10\ns_cmp_ge_u32 s77, 10\ns_cselect_b32 s77, s3, s77")
        else: a("s_mov_b32 s77, 0")
        a(f"s_mul_i32 s76, s77, {64*3456}")
        self.w1_jump(3)
    def p3c(self):
        a = self.a
        Lsig = self.lab("P3sig")
        a("s_cmp_ge_u32 s57, 28\ns_cbranch_scc1 Lskip3b")
        L0 = self.L; self.L = []
        a("Lskip3b:\ns_barrier")
        if self.o["pb"] > self.o["pf"]: self.prefetch(28)
        a("s_branch Lskip3c")
        self.ool.append("\n".join(self.L)); self.L = L0
        self.p3_ids()
        a("v_lshrrev_b32 v11, 2, v1\nv_and_b32 v11, 3, v11")
        a("v_lshrrev_b32 v2, 5, v1\nv_lshl_add_u32 v2, v2, 3, v11\nv_lshlrev_b32 v2, 8, v2")
        a("v_lshrrev_b32 v3, 4, v1\nv_and_b32 v3, 1, v3\nv_lshl_add_u32 v2, v3, 5, v2\nv_and_b32 v3, 3, v1\nv_lshl_add_u32 v2, v3, 3, v2")
        a("s_lshl_b32 s3, s71, 1\nv_xor_b32 v11, s3, v11")
        a("v_xor_b32 v3, 1, v11\nv_lshl_add_u32 v5, v3, 6, v2\nv_lshl_add_u32 v2, v11, 6, v2")
        self.mk3(2); self.mk3(5)
        a("v_lshrrev_b32 v8, 5, v1\nv_lshlrev_b32 v8, 11, v8\nv_and_b32 v11, 31, v1\nv_lshl_add_u32 v8, v11, 4, v8")
        a("s_lshl_b32 s3, s70, 10\nv_add_u32 v8, s3, v8")
        self.mk3(8)
        a("v_lshrrev_b32 v15, 5, v1\nv_lshlrev_b32 v12, 4, v15")
        a(f"s_lshl_b32 s3, s71, 8\ns_add_u32 s3, s3, {self.P3_ST + 1024}\nv_add_u32 v12, s3, v12")
        a(f"v_mul_u32_u24 v14, {CS}, v15\nv_lshl_add_u32 v14, v11, 4, v14")
        a("s_lshl_b32 s77, s73, 1\ns_add_u32 s77, s77, s71")
        a(f"s_mul_i32 s60, s77, {8*CS}\ns_lshl_b32 s3, s70, 6\ns_add_u32 s3, s3, s72\ns_lshl_b32 s3, s3, 4\ns_add_u32 s60, s60, s3\ns_add_u32 s60, s60, {G_BASE}")
        if self.o["pt"] & 32:
            a(f"v_lshrrev_b32 v18, 3, v1\nv_lshlrev_b32 v18, 12, v18\nv_and_b32 v16, 7, v1\nv_lshl_add_u32 v18, v16, 7, v18")
        if self.o["pt"] & 256:
            for k in range(self.o["gc"]): a(f"s_buffer_load_dword s96, {srd(SWS)}, s60 offset:{(k//8)*4096 + (k%8)*128}")
            a("s_waitcnt lgkmcnt(0)"); self.ts(24)
        a("v_lshlrev_b32 v13, 3, v11")
        a(f"s_lshl_b32 s3, s70, 9\ns_add_u32 s3, s3, {self.P3_ST}\nv_add_u32 v13, s3, v13")
        a("v_mov_b32 v16, -1.4426950408889634")
        ACC = 100; FB = [20, 36]; CSR = 52; STR = 84
        SCW = self.o["scw"]; SR = 180
        if SCW:
            a(f"s_cmp_ge_u32 s57, 14\ns_cselect_b32 s61, 10, 0\ns_add_u32 s62, s73, 32\ns_sub_u32 s62, s62, s61\ns_mul_i32 s62, s62, {self.FS}\ns_sub_u32 s62, s62, 16")
            a(f"s_mul_i32 s89, s61, {self.FS}\ns_add_u32 s89, s89, {FL_BASE + 64*self.FS}\nv_mul_u32_u24 v172, {self.FS}, v1\nv_writelane_b32 v172, s62, 20")
            a("v_lshlrev_b32 v173, 11, v15\nv_lshl_add_u32 v173, v11, 3, v173\ns_lshl_b32 s3, s23, 5\ns_add_u32 s3, s3, s72\ns_lshl_b32 s3, s3, 3\nv_add_u32 v173, s3, v173")
            a(f"s_lshl_b32 s3, s23, 8\ns_add_u32 s3, s3, {self.P3_ST}\nv_lshl_add_u32 v174, v11, 3, s3\nv_lshlrev_b32 v175, 4, v1")
            a(f"s_lshl_b32 s3, s23, 7\ns_add_u32 m0, s3, {self.P3_ST + 1024}\ns_lshl_b32 s91, s73, 9\ns_add_u32 s91, s91, s3\ns_add_u32 s91, s91, {CSUM}")
        def stat(u):
            r = []
            fl = f"buffer_load_dwordx4 v[176:179], v172, {srd(SWS)}, s89 offen offset:16 sc1"
            if u == self.o["sfu"]: r.append(f"s_mov_b64 exec, 0x1fffff\n{fl}\ns_mov_b64 exec, -1")
            if u == self.o["scu"]:
                L1 = self.lab("sfchk"); L2 = self.lab("sfok"); L3 = self.lab("sfre")
                r.append(f"s_mov_b64 exec, 0x1fffff\ns_mov_b32 s90, 0x100000\ns_waitcnt vmcnt(0)\n{L1}:\nv_and_b32 v176, v176, v177\nv_and_b32 v178, v178, v179\nv_and_b32 v176, v176, v178\nv_cmp_ne_u32 vcc, 1, v176\ns_cbranch_vccnz {L3}\n{L2}:\ns_mov_b64 exec, 255\nbuffer_load_dwordx4 v175, {srd(SWS)}, s91 offen sc1 lds\ns_mov_b64 exec, -1")
                self.ool.append(f"{L3}:\n{fl}\ns_waitcnt vmcnt(0)\ns_sub_u32 s90, s90, 1\ns_cbranch_scc0 {L1}\ns_branch {L2}")
            k = u - self.o["scu"]
            if 0 <= k < 3:
                for n in ((0, 1), (2, 3, 4, 5), (6, 7, 8, 9))[k]:
                    r.append(f"s_mov_b32 s61, {ST_BASE + n*4096}\nbuffer_load_dwordx2 v[{SR+2*n}:{SR+1+2*n}], v173, {srd(SWS)}, s61 offen sc1")
            ad = lambda P: "\n".join(f"v_add_f32 v{SR+2*x+h}, v{SR+2*x+h}, v{SR+2*y+h}" for x, y in P for h in range(2))
            if u == self.o["sru"] - 1:
                r += ["s_waitcnt vmcnt(0)\n" + ad(((0, 5), (1, 6), (2, 7))), ad(((3, 8), (4, 9), (0, 1))), ad(((2, 3), (0, 4))), ad(((0, 2),)) + f"\nv_mov_b32 v176, v{SR}\nv_mov_b32 v177, v{SR+1}"]
            if u == self.o["sru"]:
                r += [f"v_permlane32_swap_b32 v{SR}, v176\nv_permlane32_swap_b32 v{SR+1}, v177\nv_add_f32 v{SR}, v{SR}, v176\nv_add_f32 v{SR+1}, v{SR+1}, v177",
                      f"v_mul_f32 v177, {1.0/640!r}, v{SR}\nv_mul_f32 v{SR+1}, {1.0/640!r}, v{SR+1}\nv_fma_f32 v{SR+1}, -v177, v177, v{SR+1}\nv_max_f32 v{SR+1}, 0, v{SR+1}",
                      f"v_add_f32 v{SR+1}, 1e-5, v{SR+1}\nv_rsq_f32 v176, v{SR+1}\nds_write_b64 v174, v[176:177]"]
            return r
        def reads(u):
            s, ks = divmod(u, 4); f = FB[u % 2]; r = []
            for t in range(2):
                r.append(f"ds_read_b128 v[{f+8+4*t}:{f+11+4*t}], {self.ad(8, self.p3h(s) + ks*4096 + t*512)}")
            for j in range(2):
                for rd in range(2):
                    r.append(f"ds_read_b64_tr_b16 v[{f+4*j+2*rd}:{f+4*j+2*rd+1}], {self.ad(2+3*j, self.p3w(s) + ks*4096 + rd*1024)}")
            return [r[0], r[2], r[3], r[1], r[4], r[5]]
        def mfmas(u):
            f = FB[u % 2]; r = []
            for j in range(2):
                for t in range(2):
                    c = ACC + (j*2+t)*16
                    cs = "0" if u == 0 else f"v[{c}:{c+15}]"
                    r.append(f"v_mfma_f32_32x32x16_bf16 v[{c}:{c+15}], v[{f+4*j}:{f+4*j+3}], v[{f+8+4*t}:{f+11+4*t}], {cs}")
            return r
        for u in range(40):
            rd = reads(u); mf = mfmas(u-1) if u else []
            if u % 4 == 0:
                if mf: a(mf.pop(0))
                self.bar()
            if u == 0: self.ts(10)
            if self.o["pt"] & 32 and u == self.o["g3u"]: a(f"buffer_load_dword v19, v18, {srd(SWS)}, s60 offen")
            if u == (33 if (self.o["sru"] <= 31 if SCW else self.o["srs"] <= 7) else 37):
                for t in range(2): a(f"ds_read_b64 v[{STR+4*t}:{STR+4*t+1}], v13 offset:{256*t}")
            if u in (34, 35, 37, 38):
                k = {34: 0, 35: 1, 37: 2, 38: 3}[u]
                for j in range(2): rd.append(f"ds_read_b128 v[{CSR+16*j+4*k}:{CSR+16*j+4*k+3}], v12 offset:{128*j + 32*k}")
            i = 0
            ex = stat(u) if SCW else []
            for m in mf:
                if u % 4 == 0:
                    for x in rd[i:i+3]: a(x)
                    i += 3
                    a(m)
                else:
                    a(m)
                    for x in rd[i:i+3]: a(x)
                    i += 3
                if ex and (i > 3 or len(ex) >= 4): a(ex.pop(0))
            for x in rd[i:]: a(x)
            for x in ex: a(x)
            a("s_waitcnt lgkmcnt(0)")
        mf = mfmas(39)
        a(mf.pop(0))
        self.bar()
        self.ts(11)
        for m in mf: a(m)
        a("s_waitcnt lgkmcnt(0)\ns_mov_b64 vcc, s[86:87]")
        a(f"s_cmp_ge_u32 s77, 27\ns_cbranch_scc1 {Lsig}")
        for t in range(2):
            a(f"v_mul_f32 v{STR+4*t+2}, -1.4426950408889634, v{STR+4*t}")
        if self.o["ep3"]:
            PT = self.o["ep3"] == 2
            GR = [(j, t, qq) for j in range(2) for t in range(2) for qq in (0, 2)]
            TB = lambda g: 164 + 8*(g % 3)
            PB = lambda g: 188 + 4*(g % 2)
            OB = lambda g: 196 + 4*(g % 2)
            XB = lambda g: ACC + (GR[g][0]*2 + GR[g][1])*16 + 4*GR[g][2]
            def sA(g):
                j, t, qq = GR[g]; A_ = STR + 4*t; r = []
                for p in range(4):
                    x = XB(g) + 2*p; k = CSR + 16*j + 4*qq + 2*p
                    r.append(f"v_pk_fma_f32 v[{x}:{x+1}], v[{k}:{k+1}], v[{A_}:{A_+1}], v[{x}:{x+1}] op_sel:[0,1,0] op_sel_hi:[1,1,1] neg_lo:[0,1,0] neg_hi:[0,1,0]")
                for p in range(4):
                    x = XB(g) + 2*p
                    r.append(f"v_pk_mul_f32 v[{x}:{x+1}], v[{x}:{x+1}], v[{A_+2}:{A_+3}] op_sel_hi:[1,0]")
                if PT: r += [f"v_min_f32 v{XB(g)+p}, v17, v{XB(g)+p}" for p in range(8)]
                return r
            sE = lambda g: [f"v_exp_f32 v{TB(g)+p}, v{XB(g)+p}" for p in range(8)]
            def sB(g):
                T = TB(g)
                r = [f"v_pk_fma_f32 v[{T+2*p}:{T+2*p+1}], v[{T+2*p}:{T+2*p+1}], v[16:17], v[16:17] op_sel_hi:[1,0,0]" for p in range(4)]
                if PT: r += [f"v_mul_f32 v{PB(g)+p}, v{T+2*p}, v{T+2*p+1}" for p in range(4)]
                return r
            sR = lambda g: [f"v_rcp_f32 v{PB(g)+p}, v{PB(g)+p}" for p in range(4)] if PT else [f"v_rcp_f32 v{TB(g)+p}, v{TB(g)+p}" for p in range(8)]
            def sC(g):
                j, t, qq = GR[g]; T = TB(g); o = OB(g); r = []
                if PT:
                    for p in range(4):
                        P = PB(g) + (p & ~1)
                        r.append(f"v_pk_mul_f32 v[{T+2*p}:{T+2*p+1}], v[{T+2*p}:{T+2*p+1}], v[{P}:{P+1}] op_sel:[1,{p & 1}] op_sel_hi:[0,{p & 1}]")
                for p in range(4):
                    x = XB(g) + 2*p
                    r.append(f"v_pk_mul_f32 v[{x}:{x+1}], v[{x}:{x+1}], v[{T+2*p}:{T+2*p+1}]")
                for p in range(4): r.append(f"v_cvt_pk_bf16_f32 v{o+p}, v{XB(g)+2*p}, v{XB(g)+2*p+1}")
                r += [f"v_permlane32_swap_b32 v{o}, v{o+2}", f"v_permlane32_swap_b32 v{o+1}, v{o+3}"]
                r.append((f"s_add_u32 s61, s60, {(4*j + qq)*CS + 512*t}", f"buffer_store_dwordx4 v[{o}:{o+3}], v14, {srd(SWS)}, s61 offen"))
                return r
            def em(x):
                if isinstance(x, tuple): a(x[0]); self.hst(x[1])
                else: a(x)
            V = lambda f, g: f(g) if 0 <= g < 8 else []
            if PT: a("v_mov_b32 v17, 0x42700000")
            for x in sA(0): a(x)
            for g in range(-1, 9):
                tr = V(sE, g + 1) + V(sR, g); nt = V(sB, g) + V(sC, g - 1) + V(sA, g + 2)
                nb = len(V(sB, g)); ne = len(V(sE, g + 1)); k = 0
                for i, x in enumerate(tr):
                    if i >= ne:
                        while k < nb: em(nt[k]); k += 1
                    a(x)
                    m = -(-(len(nt) - k) // (len(tr) - i))
                    for _ in range(min(m, self.o["epn"])):
                        em(nt[k]); k += 1
                for x in nt[k:]: em(x)
        T = 20
        for j in range(2 if not self.o["ep3"] else 0):
            for t in range(2):
                c = ACC + (j*2+t)*16
                A_ = STR + 4*t
                for qq in range(0, 4, 2):
                    o = T + 16 + 4*((qq//2) % 2)
                    for p in range(4):
                        x = c + 4*qq + 2*p; k = CSR + 16*j + 4*qq + 2*p
                        a(f"v_pk_fma_f32 v[{x}:{x+1}], v[{k}:{k+1}], v[{A_}:{A_+1}], v[{x}:{x+1}] op_sel:[0,1,0] op_sel_hi:[1,1,1] neg_lo:[0,1,0] neg_hi:[0,1,0]")
                    for p in range(4):
                        x = c + 4*qq + 2*p
                        a(f"v_pk_mul_f32 v[{x}:{x+1}], v[{x}:{x+1}], v[{A_+2}:{A_+3}] op_sel_hi:[1,0]")
                    for p in range(8): a(f"v_exp_f32 v{T+p}, v{c + 4*qq + p}")
                    for p in range(4):
                        a(f"v_pk_fma_f32 v[{T+2*p}:{T+2*p+1}], v[{T+2*p}:{T+2*p+1}], v[16:17], v[16:17] op_sel_hi:[1,0,0]")
                    for p in range(8): a(f"v_rcp_f32 v{T+p}, v{T+p}")
                    for p in range(4):
                        x = c + 4*qq + 2*p
                        a(f"v_pk_mul_f32 v[{x}:{x+1}], v[{x}:{x+1}], v[{T+2*p}:{T+2*p+1}]")
                    for p in range(4):
                        x = c + 4*qq + 2*p
                        a(f"v_cvt_pk_bf16_f32 v{o+p}, v{x}, v{x+1}")
                    a(f"v_permlane32_swap_b32 v{o}, v{o+2}\nv_permlane32_swap_b32 v{o+1}, v{o+3}")
                    a(f"s_add_u32 s61, s60, {(4*j + qq)*CS + 512*t}")
                    self.hst(f"buffer_store_dwordx4 v[{o}:{o+3}], v14, {srd(SWS)}, s61 offen")
        a(f"{Lsig}:")
        self.ts(21)
        self.signal(2, "s23")
        self.ts(22)
        a("Lskip3c:")
    def p3l(self):
        a = self.a
        NV = self.o["nv"]
        self.bg_issue(99)
        for s in range(NV, 6): self.w1_dma(s)
        for s in range(NV): self.w1_flush(s)
        a(f"s_mul_i32 s3, s23, {2*CS}\ns_lshl_b32 s61, s72, 4\ns_add_u32 s3, s3, s61\nv_lshl_add_u32 v18, v1, 4, s3")
        a(f"s_mul_i32 s75, s77, {8*CS}")
        a("v_and_b32 v2, 31, v1\nv_lshrrev_b32 v3, 5, v1\nv_lshlrev_b32 v3, 11, v3\nv_lshl_add_u32 v10, v2, 3, v3")
        a("s_lshl_b32 s3, s23, 5\ns_add_u32 s3, s3, s72\ns_lshl_b32 s3, s3, 3\nv_add_u32 v10, s3, v10")
        def hiss(s):
            for n in range(4):
                a(f"s_add_u32 m0, s64, {self.p3h(s) + n*1024}")
                a(f"s_add_u32 s61, s75, {H_BASE + (n//2)*CS + (n % 2)*1024}")
                a(f"buffer_load_dwordx4 v18, {srd(SWS)}, s61 offen {['', 'sc1', 'nt', 'sc0 sc1', 'sc1 nt'][self.o['ldsc']]} lds")
                self.vissue(("h", s))
            self.adv(75, 8*CS, 10)
        a("s_cmp_ge_u32 s57, 14\ns_cselect_b32 s61, 10, 0\ns_mov_b32 s60, 20")
        a(f"s_add_u32 s62, s73, 32\ns_sub_u32 s62, s62, s61\ns_mul_i32 s62, s62, {self.FS}\ns_sub_u32 s62, s62, 16")
        self.ts(26)
        self.wait_flags(1, False, "v_writelane_b32 v2, s62, 20")
        self.ts(10)
        SR = 20
        a("s_mov_b32 s62, s61")
        H0 = self.o["h0"]
        for s in range(H0): hiss(s)
        self.ts(30)
        self.vwait([("h", 0)])
        a("s_waitcnt lgkmcnt(0)")
        self.ts(31)
        nh = H0; nw = 0
        NW = self.NW
        sched = {7: self.o["w7"], 8: self.o["w8"], 9: self.o["w9"]}
        assert sched[7] <= 5 and sched[7] + sched[8] <= 7 and sum(sched.values()) <= 9
        W2V = self.o["w2v"]
        if W2V:
            assert NW == 12
            c0, c1 = self.o["cs0"], self.o["cs1"]
            rs = {s: [] for s in range(11)}
            for u in range(9): rs[c0 + u*(c1 - c0 + 1)//9].append(u)
            fl = {8: [0, 1, 2, 3, 4], 9: [5, 6], 10: [7, 8]}
        for s in range(10):
            self.bar()
            if s == 7 and self.o["srs"] <= 6: a("ds_write_b64 v2, v[48:49]")
            if W2V:
                for u in fl.get(s, []): self.w2_flush(u)
            for _ in range(self.o["per"]):
                if nh <= min(9, s + 3): hiss(nh); nh += 1
            SF = self.o["sfs"] if not self.o["scw"] else 99
            if s == SF:
                a(f"s_mov_b64 exec, 0x1fffff\nbuffer_load_dwordx4 v[4:7], v2, {srd(SWS)}, s62 offen offset:16 sc1\ns_mov_b64 exec, -1")
                self.vissue("sf")
            SC = SF + self.o["sfc"]
            if s == SC:
                self.vwait("sf")
                L1 = self.lab("sfchk"); L2 = self.lab("sfok"); L3 = self.lab("sfre")
                a(f"s_mov_b64 exec, 0x1fffff\ns_mov_b32 s60, 0x100000\n{L1}:")
                a(f"v_and_b32 v4, v4, v5\nv_and_b32 v6, v6, v7\nv_and_b32 v4, v4, v6\nv_cmp_ne_u32 vcc, 1, v4\ns_cbranch_vccnz {L3}\n{L2}:\ns_mov_b64 exec, -1")
                self.ool.append(f"{L3}:\nbuffer_load_dwordx4 v[4:7], v2, {srd(SWS)}, s62 offen offset:16 sc1\ns_waitcnt vmcnt(0)\ns_sub_u32 s60, s60, 1\ns_cbranch_scc0 {L1}\ns_branch {L2}")
            if s in (SC, SC + 1):
                for n in (range(5*(s - SC), 5*(s - SC + 1)) if not self.o["sta"] else range(10) if s == SC else []):
                    a(f"s_mov_b32 s61, {ST_BASE + n*4096}")
                    a(f"buffer_load_dwordx2 v[{SR+2*n}:{SR+1+2*n}], v10, {srd(SWS)}, s61 offen sc1")
                    self.vissue("st")
            if s == max(5, SC):
                a(f"s_lshl_b32 s3, s23, 7\ns_add_u32 m0, s3, {self.P3_ST + 1024}\ns_lshl_b32 s61, s73, 9\ns_add_u32 s61, s61, s3\ns_add_u32 s61, s61, {CSUM}")
                a(f"v_lshlrev_b32 v3, 4, v1\ns_mov_b64 exec, 255\nbuffer_load_dwordx4 v3, {srd(SWS)}, s61 offen sc1 lds\ns_mov_b64 exec, -1")
                self.vissue("cs")
            if s == self.o["gts"] and self.o["pt"] & 4:
                a(f"v_lshrrev_b32 v8, 4, v1\nv_lshlrev_b32 v8, 12, v8\nv_and_b32 v3, 15, v1\nv_lshl_add_u32 v8, v3, 7, v8")
                a(f"s_lshl_b32 s61, s73, 2\ns_add_u32 s61, s61, s23\ns_lshl_b32 s61, s61, 14\ns_lshl_b32 s3, s72, 4\ns_add_u32 s61, s61, s3\ns_add_u32 s61, s61, {G_BASE}")
                a(self.touch(60, 8, 's61'))
                self.vissue("pt")
            if 1 <= s <= 4: self.w1_dma(s + 5)
            if W2V:
                for u in rs[s]: self.w2_reg(u)
                if s == 8:
                    a("s_mov_b32 s74, s83"); nw = 12
                    for _ in range(3): self.adv(83, 64*1280, 27)
                if s >= 8:
                    for _ in range(self.o[f"hs{s}"]): self.w2_reg(nw); nw += 1
                self.vwait([("w2", u) for u in fl.get(s + 1, [])])
            else:
                for _ in range(sched.get(s, 0)): self.w2_dma(nw); nw += 1
                tw = self.o["tw"]
                for k, st in enumerate((self.o["tst"], self.o["ts2"])):
                    if tw > 4*k and s == st:
                        n0 = min(tw, 4); b0 = 270 - 28*tw + (28*n0 if k else 0); nn = tw - 4 if k else n0
                        a(f"s_mul_i32 s3, s57, {nn}\ns_add_u32 s3, s3, s23\ns_add_u32 s3, s3, {b0}\ns_lshl_b32 s3, s3, 13\ns_cmp_lt_u32 s23, {nn}\ns_cselect_b32 s3, s3, {OOB}")
                        a(f"v_lshl_add_u32 v8, v1, 7, s3\nbuffer_load_dword v60, v8, {srd(SW2)}, 0 offen")
                        self.vissue("tw")
            if s == self.o["srs"] and not self.o["scw"]:
                self.vwait("st")
                if self.o["npk"]:
                    for x, y in ((0, 5), (1, 6), (2, 7), (3, 8), (4, 9), (0, 1), (2, 3), (0, 4), (0, 2)):
                        for h in range(2): a(f"v_add_f32 v{SR+2*x+h}, v{SR+2*x+h}, v{SR+2*y+h}")
                else:
                    for n in range(1, 10): a(f"v_pk_add_f32 v[{SR}:{SR+1}], v[{SR}:{SR+1}], v[{SR+2*n}:{SR+1+2*n}]")
                a(f"v_mov_b32 v48, v{SR}\nv_mov_b32 v49, v{SR+1}")
                a(f"v_permlane32_swap_b32 v{SR}, v48\nv_permlane32_swap_b32 v{SR+1}, v49")
                a(f"v_add_f32 v{SR}, v{SR}, v48\nv_add_f32 v{SR+1}, v{SR+1}, v49")
                a(f"v_mul_f32 v49, {1.0/640!r}, v{SR}\nv_mul_f32 v{SR+1}, {1.0/640!r}, v{SR+1}")
                a(f"v_fma_f32 v{SR+1}, -v49, v49, v{SR+1}\nv_max_f32 v{SR+1}, 0, v{SR+1}\nv_add_f32 v{SR+1}, 1e-5, v{SR+1}\nv_rsq_f32 v48, v{SR+1}")
                a(f"v_and_b32 v2, 31, v1\nv_lshlrev_b32 v2, 3, v2\ns_lshl_b32 s3, s23, 8\ns_add_u32 s3, s3, {self.P3_ST}\nv_add_u32 v2, s3, v2")
                if s >= 7: a("ds_write_b64 v2, v[48:49]\ns_waitcnt lgkmcnt(0)")
            if s == 7: a("s_waitcnt lgkmcnt(0)"); self.vwait(["cs", "pt"])
            if s + 1 <= 9: self.vwait([("h", s + 1), ("w1", s + 1)])
        self.bar()
        if W2V:
            for u in fl[10]: self.w2_flush(u)
            a("s_mov_b32 s62, s83\ns_mov_b32 s83, s74")
            for u in range(9, 12): self.w2_dma(u)
            a("s_mov_b32 s83, s62")
            for u in range(nw, 27): self.w2_reg(u)
            a("s_waitcnt lgkmcnt(0)")
        else:
            for u in range(nw, NW): self.w2_dma(u)
        a("s_branch Lp4l")
        a("Lskip3l:\ns_barrier")
        if self.o["dl"]: self.prefetch(28)
        for u in range(NW): self.w2_dma(u)
        if W2V:
            for u in range(NW, 27): self.w2_reg(u)
        if self.o["pb"] > self.o["pf"] and not self.o["dl"]: self.prefetch(28)
        a("Lp4l:")
        self.vreset()

    def p4w(self, u):
        M = [9, 10, 11, 0, 1, 2, 3, 4, 5, 12, 13, 6, 7, 8] if self.NW == 14 else [9, 10, 11, 0, 1, 2, 3, 4, 5, 6, 7, 8]
        return M[u % self.NW] * 8192
    def p4g(self, s): return LDS - self.GN*12288 + (s % self.GN)*12288
    def p4_w_setup(self):
        a = self.a
        self.w64_addr(17, 8)
        a("s_and_b32 s3, s23, 1\ns_lshl_b32 s3, s3, 4\ns_lshr_b32 s61, s23, 1\ns_lshl_b32 s61, s61, 2\ns_add_u32 s3, s3, s61\ns_mul_i32 s3, s3, 1280")
        a(f"s_cmp_ge_u32 s57, 30\ns_cselect_b32 s3, {OOB}, s3\nv_add_u32 v17, s3, v17")
        if self.o["rot4"] == 2:
            a("s_sub_u32 s3, s67, 5\ns_cmp_ge_u32 s67, 5\ns_cselect_b32 s82, s3, s67")
        elif self.o["rot4"] == 3:
            a("s_mul_i32 s82, s67, 27*205\ns_lshr_b32 s82, s82, 11")
        elif self.o["rot4"]:
            a("s_mul_i32 s82, s67, 27*205\ns_lshr_b32 s82, s82, 11\ns_mul_i32 s3, s66, 9\ns_add_u32 s82, s82, s3")
            a("s_sub_u32 s3, s82, 27\ns_cmp_ge_u32 s82, 27\ns_cselect_b32 s82, s3, s82")
        else: a("s_mov_b32 s82, 0")
        a(f"s_mul_i32 s83, s82, {64*1280}")
    def p4c(self):
        a = self.a
        self.c24_addr(); self.c24_rowaddr()
        H = self.HREG
        self.c24_addr_rm(16)
        ACC = 100
        self.c24_init(ACC, H)
        self.c24_loop(27, self.p4w, self.p4g, ACC, 12)
        self.c24_sum(ACC, H, 40, 20, lambda t: a(f"buffer_store_dwordx4 v[{40+4*t}:{43+4*t}], v{16+t}, {srd(SOUT)}, 0 offen" + ["", " sc1", " nt", " sc0 sc1"][self.o["osc"]]))
        self.fin()
    def p4l(self):
        a = self.a
        a(f"s_mul_i32 s75, s82, {8*CS}")
        a("s_cmp_eq_u32 s66, 2\ns_cselect_b32 s61, 14, 0")
        a("s_cmp_eq_u32 s66, 1\ns_cselect_b32 s60, 28, 14")
        if self.o["pt"] & 2048:
            a("v_and_b32 v8, 15, v1\nv_lshlrev_b32 v10, 3, v8\nv_cmp_gt_u32 vcc, s69, v10\nv_lshlrev_b32 v8, 7, v8\nv_bfe_u32 v10, v1, 4, 1\nv_lshl_add_u32 v8, v10, 12, v8")
            a(f"v_lshrrev_b32 v10, 5, v1\nv_mul_u32_u24 v10, {80*CS}, v10\nv_add_u32 v8, v8, v10")
            a(f"s_add_u32 s3, s67, 10\ns_lshl_b32 s3, s3, 2\ns_add_u32 s3, s3, s23\ns_lshl_b32 s3, s3, 13\ns_lshl_b32 s62, s63, 4\ns_add_u32 s3, s3, s62\nv_add_u32 v8, s3, v8")
            a(f"s_cmp_lt_u32 s67, 7\ns_cselect_b32 vcc_hi, vcc_hi, 0\nv_mov_b32 v10, {OOB}\nv_cndmask_b32 v8, v10, v8, vcc")
        self.ts(27)
        self.wait_flags(2, False)
        self.ts(12)
        GN = self.GN; NW = self.NW
        gis = lambda s: self.panel96_issue(11, G_BASE, 27, self.p4g(s), ("g", s))
        G0 = min(self.o["g0"], GN)
        for s in range(G0): gis(s)
        ng = G0; nw = NW
        def gt():
            a(f"buffer_load_dword v10, v8, {srd(SWS)}, 0 offen sc1"); self.vissue("gt")
        if self.o["pt"] & 2048 and self.o["gtp"] < 0: gt()
        self.ts(28)
        self.vwait([("g", 0)])
        self.ts(29)
        for s in range(27):
            self.bar()
            if self.o["w2v"]:
                nw = 27
                if 2 <= s <= 16: self.w2_flush(s + 10)
            for _ in range(self.o["per"]):
                if ng <= min(26, max(s - 2, -1) + GN): gis(ng); ng += 1
            if self.o["pt"] & 2048 and self.o["gtp"] == s: gt()
            if self.o["w2v"] and 2 <= s <= 16: a("s_waitcnt lgkmcnt(0)")
            if nw <= min(26, s - 2 + NW) and s >= self.o["ws0"] and (s - self.o["ws0"]) % 2 < self.o["wper"]: self.w2_dma(nw); nw += 1
            while nw <= min(26, s + 4): self.w2_dma(nw); nw += 1
            if s + 1 <= 26: self.vwait([("g", s + 1), ("w2", s + 1)])
        self.bar()
        self.fin()

    def build(self):
        a = self.a
        self.prologue()
        if self.o["cp"]: self.code_pf(2, 96)
        if self.o["iw"]:
            a("s_cmp_ge_u32 s22, 4\ns_cbranch_scc1 Lload")
            for w in range(3): a(f"s_cmp_eq_u32 s22, {w}\ns_cbranch_scc1 Lwarm{w}")
            a("s_branch Lwarm3\nLload:")
        else: a("s_cmp_ge_u32 s22, 4\ns_cbranch_scc0 Lcomp")
        if self.o["lprio"]: a(f"s_setprio {self.o['lprio']}")
        self.p1l(); self.p2l(); self.p3l(); self.p4l()
        a("Lcomp:")
        if self.o["prio"]: a(f"s_setprio {self.o['prio']}")
        self.tprev = None; self.tn = 0
        self.p1c(); self.p2c(); self.p3c(); self.p4c()
        self.csum()
        for x in self.ool: a(x)
        a("Lend:\ns_endpgm")
    def text(self):
        L, n = hazard.fix(self.L)
        nm = self.name
        if self.o["iw"]: L = self.stubs(L)
        return "\n".join([f".globl {nm}"] + ([".p2align 12"] if self.o["iw"] else []) + [".p2align 8", f".type {nm},@function", f"{nm}:"] + L) + "\n"
    def stubs(self, L):
        import subprocess, re
        src = '.amdgcn_target "amdgcn-amd-amdhsa--gfx950"\n.text\n.p2align 12\n' + self.name + ':\n' + "\n".join(L) + "\n" + "".join(f"Lwarm{w}:\n" for w in range(4)) + "s_endpgm\n"
        open("st.s", "w").write(src)
        subprocess.run(["clang", "-x", "assembler", "-target", "amdgcn-amd-amdhsa", "-mcpu=gfx950", "-c", "st.s", "-o", "st.o"], check=True)
        d = subprocess.run(["llvm-objdump", "-d", "st.o"], capture_output=True, text=True).stdout
        ad = [int(m.group(1), 16) for m in re.finditer(r"// ([0-9A-F]{12}):", d)]
        idx = [i for i, l in enumerate(L) if not l.endswith(":")]
        assert len(ad) == len(idx) + 1, (len(ad), len(idx))
        B = self.o["iw"]; pos = []; nxt = B; sh = 0
        for k, i in enumerate(idx):
            if ad[k] + sh + 4 >= nxt:
                pos.append(i); sh += 8; nxt += B
        lc = L.index("Lcomp:")
        n = len(pos); c = [j for j in range(n) if pos[j] > lc]; l = [j for j in range(n) if pos[j] <= lc]
        if self.o["iwo"] == 0:
            order = []
            l2 = l[:-1]; c = l[-1:] + c
            while c or l2:
                if c: order.append(c.pop(0))
                if l2: order.append(l2.pop(0))
        else: order = list(range(n))
        ch = [order[w::4] for w in range(4)]
        tgt = {}; first = {}
        for w in range(4):
            first[ch[w][0]] = w
            for q, j in enumerate(ch[w]): tgt[j] = f"Lst{ch[w][q+1]}" if q + 1 < len(ch[w]) else "Lcomp"
        out = []; pm = {i: j for j, i in enumerate(pos)}
        for i, ln in enumerate(L):
            if i in pm:
                j = pm[i]
                out.append(f"    s_branch Lsk{j}")
                if j in first: out.append(f"Lwarm{first[j]}:")
                out += [f"Lst{j}:", f"    s_branch {tgt[j]}", f"Lsk{j}:"]
            out.append(ln)
        print("stubs", n, ch)
        return out
    def desc(self):
        return "\n".join([".p2align 6", f".amdhsa_kernel {self.name}",
            "  .amdhsa_next_free_vgpr 256", "  .amdhsa_next_free_sgpr 102", "  .amdhsa_accum_offset 256",
            "  .amdhsa_group_segment_fixed_size 0", "  .amdhsa_kernarg_size 72", "  .amdhsa_user_sgpr_count 2",
            "  .amdhsa_user_sgpr_kernarg_segment_ptr 1", "  .amdhsa_system_sgpr_workgroup_id_x 1",
            "  .amdhsa_float_denorm_mode_32 3",
            ".end_amdhsa_kernel"]) + "\n"

def header():
    ref = open(f"cdna_kernels/{NAME}.s.ref").read().split("\n")
    return [l for l in ref if l.startswith(";") and "@launch" not in l]
def build(dbg=False, opt=None):
    g = G(NAME + "_kernel", dbg, opt); g.build()
    out = header()
    out.append(f"; @launch grid=(256,1,1) block=(512,1,1) lds={LDS}")
    out += ['.amdgcn_target "amdgcn-amd-amdhsa--gfx950"', ".text", g.text(), '.section .rodata,"a"', g.desc()]
    return "\n".join(out)
if __name__ == "__main__":
    path = sys.argv[1]; dbg = False; opt = {}
    for x in sys.argv[2:]:
        if x == "dbg": dbg = True
        else:
            k, v = x.split("="); assert k in OPT, k; opt[k] = int(v, 0)
    txt = build(dbg, opt)
    open(path, "w").write(txt)
    import subprocess
    r = subprocess.run(["clang", "-x", "assembler", "-target", "amdgcn-amd-amdhsa", "-mcpu=gfx950", "-c", path, "-o", "chk.o"], capture_output=True, text=True)
    print(r.stderr[:3000] if r.returncode else "assembled ok", len(txt))
```

```python
import sys
sys.path.insert(0, "dev")
import hazard

NAME = "sequential_preLN__sliding_local_dilated__dense_activation_silu__prompt"
S, D, F = 2048, 640, 1728
CS = 256 * 16
GS = 0x200000
O_BASE = 0
G_BASE = 0
H_BASE = 224 * CS
ST_BASE = 304 * CS
FL_BASE = 0x190000
TS_BASE = 0x1400000
WS_SIZE = 0x1800000
TS2 = 0x1500000
OOB = 0x80000000
LDS = 163840
SX, SWQ, SWO, SW1, SW2, SOUT, SDBG, SWS, SWG = 24, 28, 32, 36, 40, 44, 48, 52, 92
def srd(n): return f"s[{n}:{n+3}]"
A16 = lambda k: 16384 * k

CSUM = 0x194000
OPT = dict(la1=3, rot1=3, rot2=1, rot3=1, rot4=0, fast=1, nA=8, nB=8, nC=2, c0=4, wo0=17, prio=0, lprio=0, ldsc=1, pen=0, osc=1, amp=-1, ampw=37, wb=0, tlb=0, nv=6, w2e=1, h0=2, g0=4, o0=3, per=2, gn=5, ws0=2, wper=2, hfl=0, pt=3073, gts=6, sfs=3, ots=11, gc=64, gtu=-1, i0=2, la2=3, lasw=99, w2v=0, hts=19, pf=6, pb=14, g3u=-1, pth=0, pe=24, tw=3, tst=7, gtp=-1, w7=3, w8=2, w9=0, cs0=1, cs1=6, hs8=2, hs9=3, iw=0, iwo=0, cp=2, sfc=2, srs=8, sta=0, cp2=-1, cp3=0, npk=1, ccs=12, ccc=16, op=0, wp0=-1, wp1=-1, wa=64, nE=0, eo=0, ep3=1, epn=4, ri=1, r3o=1, ts2=8, dl=1, scw=0, sfu=12, scu=21, sru=31, r1d=4, r1a=0, r1b=5, r1t=0x76343410, r1e=5, r1g=0, wor=0, w1r=0, wol=0)

class G:
    NL = 0
    def __init__(self, name, dbg=False, opt=None):
        self.name = name; self.L = []; self.dbg = dbg
        self.o = dict(OPT); self.o.update(opt or {})
        self.GN = self.o["gn"]; self.NW = 14 if self.GN == 4 else 12
        self.vm = []; self.tprev = None; self.tn = 0; self.ool = []
    def a(self, s):
        for line in s.split("\n"):
            line = line.strip()
            if line: self.L.append(line if line.endswith(":") else "    " + line)
    def lab(self, b="L"):
        G.NL += 1; return f"{b}_{G.NL}"
    def vissue(self, tag): self.vm.append(tag)
    def vwait(self, tags):
        if not isinstance(tags, (list, set)): tags = [tags]
        last = -1
        for i, t in enumerate(self.vm):
            if t in tags: last = i
        if last < 0: return
        n = len(self.vm) - 1 - last
        assert n <= 63, n
        self.a(f"s_waitcnt vmcnt({n})")
        self.vm = self.vm[last + 1:]
    def vreset(self): self.vm = []
    def tc(self, i):
        if self.dbg: self.a(f"s_memtime s[80:81]\ns_waitcnt lgkmcnt(0)\nv_writelane_b32 v255, s80, {i}")
    def ts(self, i):
        if self.dbg: self.a(f"s_memrealtime s[80:81]\ns_waitcnt lgkmcnt(0)\nv_writelane_b32 v255, s80, {i}")
    def bar(self):
        if self.dbg:
            if self.tprev is not None: self.a(f"v_writelane_b32 v{253 + self.tprev // 64}, s84, {self.tprev % 64}")
            self.a("s_memtime s[84:85]")
            self.tprev = self.tn; self.tn += 1
        self.a("s_barrier")
    def prologue(self):
        a = self.a
        a("s_load_dwordx16 s[4:19], s[0:1], 0")
        a("s_load_dwordx2 s[20:21], s[0:1], 64")
        a("s_cmp_ge_u32 s2, 256")
        a("s_cbranch_scc1 Lend")
        a("v_and_b32 v1, 63, v0")
        a("v_lshrrev_b32 v2, 6, v0")
        a("v_readfirstlane_b32 s22, v2")
        a("s_and_b32 s56, s2, 7")
        a("s_lshr_b32 s57, s2, 3")
        a("s_and_b32 s23, s22, 3")
        a("s_and_b32 s58, s57, 7\ns_lshl_b32 s59, s56, 2\ns_lshr_b32 s3, s57, 3\ns_add_u32 s59, s59, s3")
        if self.dbg: a("v_mov_b32 v255, 0\nv_mov_b32 v254, 0\nv_mov_b32 v253, 0")
        self.ts(0); self.tc(16)
    def srds(self, which):
        self.a("s_waitcnt lgkmcnt(0)")
        T = {SX: (4, S*D*2), SWQ: (6, D*3*D*2), SWO: (8, D*D*2), SW1: (12, D*F*2), SW2: (14, F*D*2),
             SOUT: (16, S*D*2), SDBG: (18, 256), SWG: (20, WS_SIZE)}
        for d in which:
            if d == SWS:
                self.a(f"s_lshl_b32 s3, s56, 21\ns_add_u32 s{d}, s20, s3\ns_addc_u32 s{d+1}, s21, 0\ns_mov_b32 s{d+2}, {GS}\ns_mov_b32 s{d+3}, 0x00020000")
                continue
            b, n = T[d]
            self.a(f"s_mov_b32 s{d}, s{b}\ns_mov_b32 s{d+1}, s{b+1}\ns_mov_b32 s{d+2}, {n}\ns_mov_b32 s{d+3}, 0x00020000")
    def fin(self):
        if self.dbg:
            self.a("s_waitcnt vmcnt(0)")
            self.ts(15); self.tc(17)
            if self.o["amp"] >= 0:
                x, y = divmod(self.o["amp"], 100)
                L1 = self.lab("amp"); L2 = self.lab("ampl")
                self.a(f"s_cmp_lg_u32 s2, {self.o['ampw']}\ns_cbranch_scc1 {L1}\ns_cmp_lg_u32 s22, 0\ns_cbranch_scc1 {L1}")
                self.a(f"v_readlane_b32 s60, v255, {x}\nv_readlane_b32 s61, v255, {y}\ns_sub_u32 s60, s61, s60\ns_min_u32 s60, s60, 8000\ns_lshl_b32 s60, s60, 3\nv_readlane_b32 s61, v255, 15\ns_add_u32 s60, s60, s61")
                self.a(f"s_mov_b32 s62, 0x100000\n{L2}:\ns_memrealtime s[80:81]\ns_waitcnt lgkmcnt(0)\ns_sub_u32 s62, s62, 1\ns_cbranch_scc1 {L1}\ns_sub_u32 s61, s80, s60\ns_cmp_lt_i32 s61, 0\ns_cbranch_scc1 {L2}\n{L1}:")
            self.srds([SWG])
            self.a(f"s_lshl_b32 s80, s2, 3\ns_add_u32 s80, s80, s22\ns_lshl_b32 s80, s80, 7\ns_add_u32 s80, s80, {TS_BASE}")
            self.a(f"v_writelane_b32 v{253 + self.tprev // 64}, s84, {self.tprev % 64}")
            self.a(f"v_lshlrev_b32 v2, 2, v1\ns_lshl_b32 s84, s2, 3\ns_add_u32 s84, s84, s22\ns_lshl_b32 s84, s84, 9\ns_add_u32 s84, s84, {TS2}")
            self.a(f"buffer_store_dword v253, v2, {srd(SWG)}, s84 offen\nbuffer_store_dword v254, v2, {srd(SWG)}, s84 offen offset:256")
            self.a(f"v_lshlrev_b32 v2, 2, v1\ns_mov_b32 exec_hi, 0\nbuffer_store_dword v255, v2, {srd(SWG)}, s80 offen")
        self.a("s_endpgm")

    FS = 64
    def flag_clear(self):
        a = self.a
        Lk = self.lab("fc")
        a("s_getreg_b32 s3, hwreg(HW_REG_XCC_ID, 0, 4)\ns_mul_i32 s88, s3, s3\ns_lshl_b32 s88, s88, 10\ns_add_u32 s88, s88, s3\ns_add_u32 s88, s88, 0x800000")
        a(f"s_cmp_lg_u32 s22, 0\ns_cbranch_scc1 {Lk}")
        a(f"v_lshrrev_b32 v2, 3, v1\nv_lshlrev_b32 v2, 11, v2\nv_and_b32 v3, 7, v1\nv_lshl_add_u32 v2, v3, 2, v2")
        a(f"v_mov_b32 v3, 0\ns_mul_i32 s61, s57, {self.FS}\ns_add_u32 s61, s61, {FL_BASE}")
        a(f"s_mov_b32 exec_hi, 0xffff\nbuffer_store_dword v3, v2, {srd(SWS)}, s61 offen sc1\ns_mov_b64 exec, -1")
        a("s_lshl_b32 s61, s56, 5\nv_mov_b32 v3, s88")
        a("s_waitcnt vmcnt(0)")
        a(f"s_mov_b64 exec, 1\nbuffer_atomic_add v3, off, {srd(SDBG)}, s61\ns_mov_b64 exec, -1")
        a(f"{Lk}:")
    def count_check(self):
        a = self.a
        Lk = self.lab("cp"); Lp = self.lab("cpl")
        a("s_mov_b64 exec, 255\ns_mov_b32 s60, 0x100000\ns_mov_b32 s61, 0x10000000")
        a(f"{Lp}:")
        a(f"s_waitcnt vmcnt(0)\nv_cmp_gt_u32 vcc, s61, v205\ns_cbranch_vccz {Lk}")
        a(f"buffer_load_dword v205, v204, {srd(SDBG)}, 0 offen sc1")
        a(f"s_sub_u32 s60, s60, 1\ns_cbranch_scc0 {Lp}")
        a(f"{Lk}:")
        a("s_mov_b64 exec, -1")
        a("s_waitcnt vmcnt(0)\nv_readlane_b32 s3, v205, s56\ns_lshl_b32 s88, s88, 5\ns_cmp_eq_u32 s3, s88\ns_cselect_b64 s[86:87], -1, 0")
        if not self.o["fast"]: a("s_mov_b64 s[86:87], 0")
        if self.o["pen"]:
            Lz = self.lab("pen")
            a(f"s_cmp_lg_u32 s86, 0\ns_cbranch_scc1 {Lz}")
            for _ in range(6): a("s_sleep 127")
            a(f"{Lz}:")
    def hst(self, txt, local=True):
        if not local:
            self.a(txt + " sc1"); return
        L1 = self.lab("slow"); L2 = self.lab("back")
        self.a(f"s_cbranch_vccz {L1}\n{txt}{['', ' nt', ' sc0', ' sc0 nt'][self.o['hfl']]}\n{L2}:")
        self.ool.append(f"{L1}:\ns_nop 7\n{txt} sc1\ns_branch {L2}")
    def signal(self, ph, wreg, local=True):
        a = self.a
        a(f"s_mul_i32 s61, s57, {self.FS}\ns_lshl_b32 s3, {wreg}, 2\ns_add_u32 s61, s61, s3\ns_add_u32 s61, s61, {FL_BASE + ph*64*self.FS}\nv_mov_b32 v3, 1")
        a("s_waitcnt vmcnt(0)")
        a("s_mov_b64 exec, 1")
        self.hst(f"buffer_store_dword v3, off, {srd(SWS)}, s61", local)
        a("s_mov_b64 exec, -1")
    def wait_flags(self, ph, two, extra=None):
        a = self.a
        a(f"s_mul_i32 s61, s61, {self.FS}\ns_add_u32 s61, s61, {FL_BASE + ph*64*self.FS}")
        Lp = self.lab("poll"); Lq = self.lab("pollx")
        if two: a(f"v_lshrrev_b32 v2, 1, v1\nv_mul_u32_u24 v2, {self.FS}, v2\nv_and_b32 v3, 1, v1\nv_lshl_add_u32 v2, v3, 4, v2")
        else: a(f"v_mul_u32_u24 v2, {self.FS}, v1")
        if extra: a(extra)
        a("s_bfm_b64 exec, s60, 0\ns_mov_b32 s60, 0x100000")
        a(f"{Lp}:")
        a(f"buffer_load_dwordx4 v[4:7], v2, {srd(SWS)}, s61 offen sc1")
        a(f"s_sub_u32 s60, s60, 1\ns_cbranch_scc1 {Lq}")
        a("s_waitcnt vmcnt(0)")
        a("v_and_b32 v4, v4, v5\nv_and_b32 v6, v6, v7\nv_and_b32 v4, v4, v6")
        a(f"v_cmp_ne_u32 vcc, 1, v4\ns_cbranch_vccnz {Lp}")
        a(f"{Lq}:")
        a("s_waitcnt vmcnt(0)\ns_mov_b64 exec, -1")
        self.vreset()
    def adv(self, sreg, stride, n):
        self.a(f"s_add_u32 s{sreg}, s{sreg}, {stride}\ns_cmp_eq_u32 s{sreg}, {stride*n}\ns_cselect_b32 s{sreg}, 0, s{sreg}")
    def mk3(self, r):
        self.a(f"v_add_u32 v{r+1}, 0x10000, v{r}\nv_add_u32 v{r+2}, 0x20000, v{r}")
    def ad(self, r, off):
        return f"v{r + (off >> 16)} offset:{off & 0xffff}"

    P1_SLOT = 40960; P1_W = 10240; P1_WS = 15360; P1_ST = 0; P1_QKV = 1024; P1_QS = 488
    def p1x(self, s): return (s % 4) * self.P1_SLOT
    def p1w(self, u): return ((u // 2) % 4) * self.P1_SLOT + self.P1_W + (u % 2) * self.P1_WS
    def p1c(self):
        a = self.a
        KK = 220; MC = 240; MP = 244; MP1 = 248; PM = 92; STT = 180
        self.warm()
        a(f"v_lshrrev_b32 v2, 3, v1\nv_and_b32 v2, 3, v2\nv_mul_u32_u24 v2, {self.P1_SLOT}, v2\nv_and_b32 v3, 7, v1\nv_lshl_add_u32 v2, v3, 4, v2")
        for r in range(4): a(f"v_mov_b32 v{20+r}, 0x3f803f80")
        a("ds_write_b128 v2, v[20:23]")
        self.srds([SWS, SDBG, SX, SWO, SW1, SW2, SOUT])
        self.flag_clear()
        if self.o["tlb"]:
            Lt = self.lab("tlb")
            a(f"s_cmp_lg_u32 s22, 2\ns_cbranch_scc1 {Lt}\nv_lshlrev_b32 v2, 16, v1")
            if self.o["tlb"] & 64:
                a("s_lshl_b32 s3, s57, 16\nv_lshl_add_u32 v2, v1, 21, s3\ns_mov_b64 exec, 3")
                a(f"s_mul_i32 s60, s56, {256*1280}\ns_sub_u32 s61, s57, 26\ns_lshl_b32 s61, s61, 16\ns_add_u32 s60, s60, s61\ns_cmp_ge_u32 s57, 26\ns_cselect_b32 s60, s60, {OOB}\nv_mov_b32 v3, s60")
                a(f"s_sub_u32 s61, s57, 13\ns_lshl_b32 s61, s61, 16\nv_mov_b32 v4, s61")
            for b, r in ((1, SWO), (2, SWS), (4, SW1), (8, SW2), (16, SOUT), (32, SDBG)):
                if self.o["tlb"] & b: a(f"buffer_load_dword v96, v{({16: 3, 1: 4}.get(b, 2) if self.o['tlb'] & 64 else 2)}, {srd(r)}, 0 offen")
            a("s_mov_b64 exec, -1")
            a(f"{Lt}:")
        a("v_lshrrev_b32 v10, 2, v1\nv_mul_u32_u24 v10, 480, v10\ns_mul_i32 s3, s23, 40\nv_add_u32 v10, s3, v10\nv_and_b32 v3, 3, v1")
        a("v_add_u32 v13, 1, v3\nv_mul_u32_u24 v13, 160, v13\nv_cmp_gt_u32 vcc, 2, v3\nv_cndmask_b32 v13, 0, v13, vcc\nv_add3_u32 v13, v13, v10, 32")
        a("v_lshl_add_u32 v10, v3, 3, v10")
        a("v_and_b32 v3, 15, v1\nv_lshrrev_b32 v2, 1, v3\nv_lshrrev_b32 v4, 4, v1\nv_xor_b32 v4, v4, v2\nv_lshlrev_b32 v4, 4, v4\nv_lshl_add_u32 v4, v3, 7, v4")
        if self.o["rot1"] == 3: a("s_and_b32 s3, s57, 8\ns_lshl_b32 s3, s3, 3\nv_xor_b32 v4, s3, v4")
        a("v_xor_b32 v7, 64, v4")
        self.mk3(4); self.mk3(7); self.mk3(10); self.mk3(13)
        a("v_lshrrev_b32 v2, 4, v1\nv_mov_b32 v20, 0xf149f2ca\nv_and_b32 v21, 1, v3")
        for r in range(4):
            a(f"v_lshl_add_u32 v22, v2, 2, {r}\nv_cmp_le_u32 vcc, v22, v3\nv_cndmask_b32 v{MC+r}, v20, 0, vcc\nv_cndmask_b32 v{MP+r}, 0, v20, vcc")
            a(f"v_cmp_eq_u32 vcc, {r & 1}, v21\nv_cndmask_b32 v{MC+r}, v20, v{MC+r}, vcc\nv_cndmask_b32 v{MP+r}, v20, v{MP+r}, vcc")
        a("s_cmp_eq_u32 s59, 0\ns_cselect_b64 vcc, -1, 0")
        for r in range(4): a(f"v_cndmask_b32 v{MP1+r}, v{MP+r}, v20, vcc")
        a("v_lshlrev_b32 v23, 4, v21\nv_mov_b32 v24, 0xffff\nv_lshlrev_b32 v23, v23, v24")
        for i in range(2):
            a(f"v_lshl_add_u32 v22, v2, 2, {2*i}\nv_add_u32 v22, v22, v21\nv_cmp_le_u32 vcc, v22, v3")
            a(f"v_cndmask_b32 v{PM+2+i}, 0, v23, vcc\nv_cndmask_b32 v{PM+i}, v23, 0, vcc")
        for t in range(5): a(f"v_mov_b32 v{KK+4*t+2}, 0\nv_mov_b32 v{KK+4*t+3}, 0")
        a(f"s_mul_i32 s3, s23, 2560\ns_add_u32 s3, s3, {self.P1_QKV}")
        a("v_lshl_add_u32 v17, v3, 5, s3\nv_lshl_add_u32 v16, v2, 3, v17")
        a("v_cmp_eq_u32 vcc, 0, v2\nv_cndmask_b32 v22, 24, 16, vcc\nv_add_u32 v17, v17, v22")
        a("v_lshrrev_b32 v18, 2, v1\nv_lshl_add_u32 v18, v18, 5, s3\nv_add_u32 v18, 8, v18")
        a("s_and_b32 s3, s59, 3\ns_lshl_b32 s3, s3, 10")
        a(f"v_lshrrev_b32 v22, 1, v2\nv_lshlrev_b32 v19, 12, v22\nv_and_b32 v22, 1, v2\nv_lshl_add_u32 v19, v22, 3, v19\nv_lshl_add_u32 v19, v3, 4, v19\nv_add_u32 v19, s3, v19")
        a("v_lshl_add_u32 v98, v1, 4, s3")
        a("v_lshlrev_b32 v99, 2, v3\nv_lshlrev_b32 v252, 4, v2")
        a(f"s_mul_i32 s60, s58, 10\ns_lshl_b32 s3, s23, 1\ns_add_u32 s89, s60, s3\ns_lshl_b32 s89, s89, 12")
        a(f"s_lshr_b32 s3, s23, 1\ns_add_u32 s90, s60, s3\ns_add_u32 s90, s90, 8\ns_lshl_b32 s90, s90, 12")
        if self.o["pt"] & 1:
            a("v_and_b32 v22, 7, v1\nv_lshlrev_b32 v22, 7, v22\nv_bfe_u32 v23, v1, 3, 1\nv_lshl_add_u32 v22, v23, 12, v22\ns_and_b32 s3, s59, 3\ns_lshl_b32 s3, s3, 10\nv_add_u32 v22, s3, v22")
            a("v_mov_b32 v97, v22")
        a(f"s_and_b32 s3, s23, 1\ns_lshl_b32 s3, s3, 3\ns_add_u32 s90, s90, s3")
        if self.o["op"]:
            a("v_lshrrev_b32 v22, 3, v1\nv_lshlrev_b32 v22, 12, v22\nv_and_b32 v23, 7, v1\nv_lshl_add_u32 v22, v23, 7, v22")
            a("s_lshr_b32 s3, s58, 1\ns_lshl_b32 s3, s3, 2\ns_add_u32 s3, s3, s23\ns_mul_i32 s3, s3, 20480\ns_and_b32 s60, s59, 3\ns_lshl_b32 s60, s60, 10\ns_add_u32 s3, s3, s60")
            a("v_add_u32 v97, s3, v22")
            a("s_lshr_b32 s3, s58, 1\ns_lshl_b32 s3, s3, 2\ns_and_b32 s60, s59, 3\ns_add_u32 s3, s3, s60\ns_lshl_b32 s3, s3, 2\ns_add_u32 s3, s3, s23")
            wa = self.o["wa"]
            a(f"s_add_u32 s60, s58, 1\ns_bitcmp1_b32 s60, 1\ns_cselect_b32 s60, {wa}, {100 - wa}\ns_cselect_b32 s61, 0, {64*wa}\ns_mul_i32 s3, s3, s60\ns_add_u32 s3, s3, s61\ns_lshl_b32 s3, s3, 7")
            a(f"v_lshl_add_u32 v206, v1, 7, s3\nv_mov_b32 v22, {OOB}\nv_cmp_gt_u32 vcc, s60, v1\nv_cndmask_b32 v206, v22, v206, vcc")
        def fast(txt, c=0):
            Lf = self.lab("fast")
            a(f"s_add_u32 s3, s58, 1\ns_bitcmp1_b32 s3, 1\ns_cbranch_scc{c} {Lf}\n{txt}\n{Lf}:")
        def otouch():
            if self.o["op"]: fast(f"s_mov_b32 exec_hi, 0xff\n{self.touch(96, 97, '0')}\ns_mov_b32 exec_hi, -1", self.o["op"] - 1)
            elif self.o["pt"] & 1: a(f"s_mov_b64 exec, 0xffff\n{self.touch(96, 97, 's89')}\ns_mov_b64 exec, 0xff\n{self.touch(96, 97, 's90')}\ns_mov_b64 exec, -1")
        if self.o["ots"] < 0: otouch()
        def gtouch():
            self.p3_ids()
            a(f"s_lshl_b32 s61, s73, 2\ns_add_u32 s61, s61, s23\ns_lshl_b32 s61, s61, 14\ns_lshl_b32 s3, s72, 4\ns_add_u32 s61, s61, s3\ns_add_u32 s61, s61, {G_BASE}")
            a(f"s_cmp_ge_u32 s57, 28\ns_cselect_b32 s61, {OOB}, s61")
            a(f"v_lshrrev_b32 v202, 4, v1\nv_lshlrev_b32 v202, 12, v202\nv_and_b32 v203, 15, v1\nv_lshl_add_u32 v202, v203, 7, v202\nv_add_u32 v202, s61, v202")
            a(f"buffer_load_dword v96, v202, {srd(SWS)}, 0 offen")
        def htouch():
            self.p24_ids()
            a("v_and_b32 v200, 15, v1\nv_lshlrev_b32 v201, 3, v200\nv_cmp_gt_u32 vcc, s69, v201\nv_lshlrev_b32 v200, 7, v200\nv_lshrrev_b32 v201, 4, v1\nv_lshl_add_u32 v200, v201, 12, v200")
            a(f"s_lshl_b32 s61, s67, 2\ns_add_u32 s61, s61, s23\ns_lshl_b32 s61, s61, 13\ns_lshl_b32 s3, s63, 4\ns_add_u32 s61, s61, s3\ns_add_u32 s61, s61, {H_BASE}")
            a(f"s_cmp_lt_u32 s57, 30\ns_cselect_b32 s61, s61, {OOB}\nv_add_u32 v200, s61, v200")
            a(f"s_mov_b32 exec_lo, vcc_lo\ns_mov_b32 exec_hi, 0\nbuffer_load_dword v96, v200, {srd(SWS)}, 0 offen\ns_mov_b64 exec, -1")
        if self.o["pt"] & 512 and self.o["gtu"] < 0: gtouch()
        if self.o["pt"] & 64:
            a("s_and_b32 s3, s59, 3\ns_lshl_b32 s3, s3, 10\ns_add_u32 s60, s89, s3\ns_and_b32 s61, s23, 1\ns_mul_i32 s61, s61, 504\ns_add_u32 s61, s61, s90\ns_add_u32 s61, s61, s3")
            for k in range(16): a(f"s_buffer_load_dword s96, {srd(SWS)}, s60 offset:{(k//8)*4096 + (k%8)*128}")
            for k in range(4): a(f"s_buffer_load_dword s96, {srd(SWS)}, s61 offset:{k*128}")
        ACC = 100; FB = [20, 56]
        a("s_waitcnt lgkmcnt(0)")
        self.ts(1)
        def reads(u):
            fb = FB[u % 2]; r = []
            for t in range(5):
                r.append(f"ds_read_b128 v[{fb+16+4*t}:{fb+19+4*t}], {self.ad(4 + 3*(u % 2), self.p1x(u//2) + 2048*t)}")
            for j in (3, 0, 2, 1):
                for rd in range(2):
                    r.append(f"ds_read_b64_tr_b16 v[{fb+4*j+2*rd}:{fb+4*j+2*rd+1}], {self.ad(13 if j == 3 else 10, self.p1w(u) + [160, 320, 0, 0][j] + 7680*rd)}")
            return r
        def mfmas(u):
            fb = FB[u % 2]; r = []
            for j in (3, 0, 2, 1):
                for t in range(5):
                    c = ACC + (j*5+t)*4
                    cs = "0" if u == 0 else f"v[{c}:{c+3}]"
                    x, y = f"v[{fb+4*j}:{fb+4*j+3}]", f"v[{fb+16+4*t}:{fb+19+4*t}]"
                    if j == 1: x, y = y, x
                    r.append(f"v_mfma_f32_16x16x32_bf16 v[{c}:{c+3}], {x}, {y}, {cs}")
            return r
        for u in range(20):
            self.bar()
            if u == 0: self.ts(2)
            if u == 10: self.ts(3)
            if u == self.o["ots"]: otouch()
            if self.o["pt"] & 1024 and u == self.o["hts"]: htouch()
            if self.o["pt"] & 512 and u == self.o["gtu"]: gtouch()
            if u == self.o["wp0"] == self.o["wp1"]: a(f"buffer_load_dword v96, v206, {srd(SWO)}, 0 offen")
            elif u == self.o["wp0"]: fast(f"buffer_load_dword v96, v206, {srd(SWO)}, 0 offen")
            elif u == self.o["wp1"]: fast(f"buffer_load_dword v96, v206, {srd(SWO)}, 0 offen", 1)
            if u == self.o["cp2"]: self.code_pf(202, 96)
            if u == self.o["ccs"]:
                a(f"v_lshlrev_b32 v204, 5, v1\nbuffer_load_dword v205, v204, {srd(SDBG)}, 0 offen sc1")
            rd = reads(u); mf = mfmas(u-1) if u else []
            for i in range(max(len(rd), len(mf))):
                if i < len(rd): a(rd[i])
                if i < len(mf): a(mf[i])
            if u == self.o["ccc"]: self.count_check()
            a("s_waitcnt lgkmcnt(0)")
        STR = 20; CSR = 32; ONE = 52; QQ = 56; VT = 72; TT = 82
        mf = mfmas(19)
        self.bar()
        self.ts(4)
        rd = [f"ds_read2_b32 v[{STR+2*t}:{STR+2*t+1}], v99 offset0:{16*t} offset1:{80+16*t}" for t in range(5)]
        for t in range(5): rd += [f"ds_read_b128 v[{STT+8*t}:{STT+8*t+3}], v252 offset:{64*t}", f"ds_read_b128 v[{STT+8*t+4}:{STT+8*t+7}], v252 offset:{320+64*t}"]
        for i in range(15): a(rd[i]); a(mf[i])
        def ln(j, ts):
            r = []
            for q in range(4): r.append(f"v_mov_b32_dpp v{CSR+4*j+q}, v{ACC+j*20+q} row_newbcast:0 row_mask:0xf bank_mask:0xf")
            for t in ts:
                c = ACC + (j*5+t)*4
                for p in (0, 2):
                    r.append(f"v_pk_fma_f32 v[{c+p}:{c+p+1}], v[{CSR+4*j+p}:{CSR+4*j+p+1}], v[{STR+2*t}:{STR+2*t+1}], v[{c+p}:{c+p+1}] op_sel:[0,1,0] op_sel_hi:[1,1,1] neg_lo:[0,1,0] neg_hi:[0,1,0]")
            for t in ts:
                c = ACC + (j*5+t)*4
                for p in (0, 2):
                    r.append(f"v_pk_mul_f32 v[{c+p}:{c+p+1}], v[{c+p}:{c+p+1}], v[{STR+2*t}:{STR+2*t+1}] op_sel_hi:[1,0]")
            return r
        def cvt(d, c): a(f"v_cvt_pk_bf16_f32 v{d}, v{c}, v{c+1}\nv_cvt_pk_bf16_f32 v{d+1}, v{c+2}, v{c+3}")
        a("s_waitcnt lgkmcnt(10)")
        x = ln(3, range(5))
        for i, m in enumerate(mf[15:]):
            a(m)
            for y in x[3*i:3*i+3]: a(y)
        for y in x[15:]: a(y)
        a("s_mov_b32 exec_hi, 0xffff")
        for t in range(5): cvt(KK+4*t+2, ACC + (15+t)*4)
        a("s_mov_b32 exec_hi, -1")
        for t in range(5): a(f"ds_write_b64 v16, v[{KK+4*t+2}:{KK+4*t+3}] offset:{512*t}")
        for y in ln(0, range(5)): a(y)
        for t in range(1, 5): a(f"ds_read_b64 v[{QQ+4*t-2}:{QQ+4*t-1}], v17 offset:{512*t}")
        for t in range(5): a(f"ds_read_b64_tr_b16 v[{TT+2*t}:{TT+2*t+1}], v18 offset:{512*t}")
        for t in range(5): cvt(KK+4*t, ACC + t*4)
        for y in ln(2, range(1, 5)): a(y)
        for t in range(1, 5): cvt(QQ+4*t-4, ACC + (10+t)*4)
        a(f"v_mov_b32 v{CSR+4}, v{ACC+20}\nv_mov_b32 v{CSR+5}, v{ACC+20}")
        a("s_waitcnt lgkmcnt(0)")
        self.ts(5)
        SC = lambda t: 100 + 4*(t-1)
        SP = lambda t: 160 + 4*(t-1)
        mf = []
        for t in range(1, 5):
            q = f"v[{QQ+4*t-4}:{QQ+4*t-1}]"; m = MP1 if t == 1 else MP
            mf.append(f"v_mfma_f32_16x16x32_bf16 v[{SC(t)}:{SC(t)+3}], v[{KK+4*t}:{KK+4*t+3}], {q}, v[{MC}:{MC+3}]")
            mf.append(f"v_mfma_f32_16x16x32_bf16 v[{SP(t)}:{SP(t)+3}], v[{KK+4*t-4}:{KK+4*t-1}], {q}, v[{m}:{m+3}]")
        x = [f"v_permlane16_swap_b32 v{CSR+4}, v{CSR+5}", f"v_mov_b32 v{ONE}, 0x3f803f80", f"v_mov_b32 v{CSR+5}, v{CSR+4}", f"v_mov_b32 v{ONE+1}, 0x3f803f80",
             f"v_mov_b32 v{ONE+2}, 0x3f803f80", f"v_permlane32_swap_b32 v{CSR+4}, v{CSR+5}", f"v_mov_b32 v{ONE+3}, 0x3f803f80"]
        for t in range(5):
            c = ACC + (5+t)*4
            for p in (0, 2):
                x.append(f"v_pk_fma_f32 v[{c+p}:{c+p+1}], v[{CSR+4}:{CSR+5}], v[{STT+8*t+4+p}:{STT+8*t+5+p}], v[{c+p}:{c+p+1}] op_sel_hi:[0,1,1] neg_lo:[0,1,0] neg_hi:[0,1,0]")
        for t in range(5):
            c = ACC + (5+t)*4
            for p in (0, 2):
                x.append(f"v_pk_mul_f32 v[{c+p}:{c+p+1}], v[{c+p}:{c+p+1}], v[{STT+8*t+p}:{STT+8*t+p+1}]")
        for i, m in enumerate(mf):
            a(m)
            for y in x[3*i:3*i+3]: a(y)
        for y in x[24:]: a(y)
        for t in range(1, 5):
            for i in range(2):
                e = 20 + 2*(t-1) + i
                a(f"v_max3_f32 v{e}, v{SC(t)+2*i}, v{SC(t)+2*i+1}, v{SP(t)+2*i}\nv_max_f32 v{e}, v{e}, v{SP(t)+2*i+1}")
        for t in range(4): a(f"v_max_f32 v{28+t}, v{20+2*t}, v{21+2*t}")
        V = [(VT+2*t, ACC + (5+t)*4) for t in range(5)]
        SCL = 20 ** -0.5 * 1.4426950408889634
        a(f"s_mov_b32 s3, {SCL!r}")
        cvt(*V[0])
        a("v_permlane32_swap_b32 v28, v29\nv_permlane32_swap_b32 v30, v31\nv_max_f32 v28, v28, v29\nv_max_f32 v30, v30, v31")
        cvt(*V[1])
        a("v_permlane16_swap_b32 v28, v30\nv_max_f32 v28, v28, v30\nv_mul_f32 v28, s3, v28\nv_mov_b32 v30, v28")
        cvt(*V[2])
        a("v_permlane16_swap_b32 v28, v30\nv_mov_b32 v29, v28\nv_mov_b32 v31, v30")
        cvt(*V[3])
        a("v_permlane32_swap_b32 v28, v29\nv_permlane32_swap_b32 v30, v31")
        cvt(*V[4])
        for t in range(4):
            for i in range(2): a(f"v_fma_f32 v{20+2*t+i}, v{20+2*t+i}, s3, -v{28+t}")
        for e in range(8): a(f"v_exp_f32 v{20+e}, v{20+e}")
        PB = 32; OO = 100
        a("s_mov_b64 vcc, s[86:87]")
        def pv(t):
            b = PB + 4*t
            for i in range(2): a(f"v_cvt_pk_bf16_f32 v{20+2*t+i}, v{20+2*t+i}, v{20+2*t+i}")
            for k in range(4): a(f"v_and_b32 v{b+k}, v{20+2*t+k%2}, v{PM+k}")
        def pvm(t):
            b = PB + 4*t; o = OO + 12*t
            a(f"v_mfma_f32_16x16x32_bf16 v[{o+8}:{o+11}], v[{ONE}:{ONE+3}], v[{b}:{b+3}], 0")
            a(f"v_mfma_f32_16x16x32_bf16 v[{o}:{o+3}], v[{VT+2*t}:{VT+2*t+3}], v[{b}:{b+3}], 0")
            a(f"v_mfma_f32_16x16x32_bf16 v[{o+4}:{o+7}], v[{TT+2*t}:{TT+2*t+3}], v[{b}:{b+3}], 0")
        def fin(t):
            o = OO + 12*t
            a(f"v_rcp_f32 v{o+8}, v{o+8}")
            for p in (0, 2, 4, 6): a(f"v_pk_mul_f32 v[{o+p}:{o+p+1}], v[{o+p}:{o+p+1}], v[{o+8}:{o+9}] op_sel_hi:[1,0]")
            cvt(o, o)
            self.hst(f"buffer_store_dwordx2 v[{o}:{o+1}], v19, {srd(SWS)}, s89 offen offset:{256*t}")
            if t == 1: a("s_mov_b32 exec_lo, 0xffff0000")
            if t == 2: a("s_mov_b32 exec_lo, 0")
            if t == 3: a("s_mov_b32 exec_lo, 0\ns_mov_b32 exec_hi, 0xffff0000")
            cvt(150, o+4)
            if t: a("s_mov_b64 exec, -1")
        pv(0); pv(1); pvm(0); pv(2); pvm(1); pv(3); pvm(2); fin(0); pvm(3); fin(1); fin(2); fin(3)
        self.hst(f"buffer_store_dwordx2 v[150:151], v98, {srd(SWS)}, s90 offen")
        self.ts(6)
        self.signal(0, "s23")
        self.ts(18)
        a("s_cmp_ge_u32 s57, 30\ns_cbranch_scc1 Lcsum")
    def warm(self): pass
    def code_pf(self, va, vd):
        a = self.a; L1 = self.lab("cp"); L2 = self.lab("cpx")
        a(f"s_cmp_lg_u32 s22, 1\ns_cbranch_scc1 {L2}\ns_getpc_b64 s[96:97]\n{L1}:\ns_sub_u32 s96, s96, {L1}-{self.name}\ns_subb_u32 s97, s97, 0")
        a(f"s_mov_b32 s98, Lend-{self.name}\ns_mov_b32 s99, 0x00020000")
        if self.o["cp"] == 1: a(f"s_mul_i32 s3, s57, 12\nv_add_u32 v{va}, s3, v1\nv_lshlrev_b32 v{va}, 7, v{va}\ns_mov_b64 exec, 0xfff")
        else: a(f"s_and_b32 s3, s57, 7\ns_mul_i32 s3, s3, 48\nv_add_u32 v{va}, s3, v1\nv_lshlrev_b32 v{va}, 7, v{va}\ns_mov_b32 exec_hi, 0xffff")
        a(f"buffer_load_dword v{vd}, v{va}, s[96:99], 0 offen\ns_mov_b64 exec, -1\n{L2}:")
    def touch(self, dst, addr, soff):
        if self.o["pt"] & 8: return f"buffer_store_dword v1, v{addr}, {srd(SWS)}, {soff} offen"
        return f"buffer_load_dword v{dst}, v{addr}, {srd(SWS)}, {soff} offen"
    def prefetch(self, i0, early=False):
        a = self.a
        E, A, B = self.o["pth"], self.o["pf"], self.o["pb"]
        assert (A - E) % 2 == 0 and (B - A) % 2 == 0
        a(f"s_sub_u32 s60, s57, {i0}\ns_lshl_b32 s60, s60, 2\ns_add_u32 s60, s60, s23\ns_lshl_b32 s60, s60, 13")
        if early: rounds = range(E)
        else:
            rounds = list(range(E, A, 2)) + list(range(B, self.o['pe'], 2)) if i0 == 30 else range(A, B, 2)
            a("s_lshr_b32 s3, s22, 2\ns_lshl_b32 s3, s3, 16\ns_add_u32 s60, s60, s3")
        a("v_lshl_add_u32 v4, v1, 7, s60")
        for k, r in enumerate(rounds):
            a(f"v_add_u32 v6, {r << 16}, v4\nbuffer_load_dword v7, v6, {srd(SW2)}, 0 offen")
            a(f"s_waitcnt vmcnt({0 if early else 1})")
        a("s_waitcnt vmcnt(0)")
    def csum_addr(self, r):
        a = self.a
        a("s_sub_u32 s60, s57, 30\ns_lshl_b32 s60, s60, 3\ns_add_u32 s60, s60, s56")
        a(f"v_lshrrev_b32 v2, 4, v1\nv_and_b32 v3, 15, v1\nv_mul_u32_u24 v{r}, 3456, v2\nv_lshl_add_u32 v{r}, v3, 4, v{r}")
        a(f"s_mul_i32 s91, s22, {80*3456}\ns_lshl_b32 s3, s60, 8\ns_add_u32 s91, s91, s3")
        a(f"s_cmp_ge_u32 s60, 14\ns_cselect_b32 s3, {OOB}, 0\nv_or_b32 v{r}, s3, v{r}")
    def csum_ld(self, n, r, emit=True):
        x = f"buffer_load_dwordx4 v[{60+4*n}:{63+4*n}], v{r}, {srd(SW1)}, s91 offen\ns_add_u32 s91, s91, {4*3456}"
        if emit: self.a(x)
        return x
    def csum(self):
        a = self.a
        a("Lcsum:")
        self.csum_addr(4)
        for n in range(20): self.csum_ld(n, 4)
        a("v_mov_b32 v5, 0\nds_write_b32 v5, v5 offset:20480\ns_waitcnt lgkmcnt(0)\ns_barrier")
        a("Lcsum2:")
        a("v_lshrrev_b32 v2, 4, v1\nv_and_b32 v3, 15, v1")
        for e in range(8): a(f"v_mov_b32 v{10+e}, 0")
        a("v_mov_b32 v8, 0x00003f80\nv_mov_b32 v9, 0x3f800000")
        for n in range(20):
            a(f"s_waitcnt vmcnt({19-n})")
            for d in range(4):
                a(f"v_dot2c_f32_bf16 v{10+2*d}, v{60+4*n+d}, v8\nv_dot2c_f32_bf16 v{11+2*d}, v{60+4*n+d}, v9")
        for e in range(4): a(f"v_permlane32_swap_b32 v{10+e}, v{14+e}")
        for e in range(4): a(f"v_add_f32 v{10+e}, v{10+e}, v{14+e}")
        for e in range(2): a(f"v_permlane16_swap_b32 v{10+e}, v{12+e}")
        for e in range(2): a(f"v_add_f32 v{10+e}, v{10+e}, v{12+e}")
        a("v_lshlrev_b32 v3, 5, v3\nv_lshl_add_u32 v3, v2, 3, v3\ns_lshl_b32 s3, s22, 9\nv_add_u32 v3, s3, v3")
        a("ds_write_b64 v3, v[10:11] offset:16384\ns_waitcnt lgkmcnt(0)")
        a("s_cmp_ge_u32 s22, 4\ns_cbranch_scc1 Lcspf")
        a("v_mov_b32 v4, 1\nds_add_u32 v5, v4 offset:20480\ns_waitcnt lgkmcnt(0)")
        a("s_cmp_lg_u32 s22, 0\ns_cbranch_scc1 Lcsx\ns_cmp_ge_u32 s60, 14\ns_cbranch_scc1 Lcsx")
        a("s_mov_b32 s61, 0x100000\nLcsw:\nds_read_b32 v4, v5 offset:20480\ns_waitcnt lgkmcnt(0)\nv_readfirstlane_b32 s3, v4")
        a("s_sub_u32 s61, s61, 1\ns_cbranch_scc1 Lcsv\ns_cmp_lg_u32 s3, 256\ns_cbranch_scc1 Lcsw\nLcsv:")
        a("v_lshlrev_b32 v3, 3, v1")
        for w in range(8): a(f"ds_read_b64 v[{20+2*w}:{21+2*w}], v3 offset:{16384 + 512*w}")
        a("s_waitcnt lgkmcnt(0)")
        for w in range(1, 8): a(f"v_pk_add_f32 v[20:21], v[20:21], v[{20+2*w}:{21+2*w}]")
        self.srds([SWG])
        a(f"s_lshl_b32 s61, s60, 9\ns_add_u32 s61, s61, {CSUM}")
        for g in range(8):
            a(f"buffer_store_dwordx2 v[20:21], v3, {srd(SWG)}, s61 offen sc1\ns_add_u32 s61, s61, {GS}")
        a(f"s_mul_i32 s61, s60, {self.FS}\ns_add_u32 s61, s61, {FL_BASE + (64 + 32)*self.FS}\nv_mov_b32 v4, 1")
        a("v_lshrrev_b32 v3, 2, v1\nv_lshlrev_b32 v3, 21, v3\nv_and_b32 v5, 3, v1\nv_lshl_add_u32 v3, v5, 2, v3")
        a("s_waitcnt vmcnt(0)")
        a(f"s_mov_b32 exec_hi, 0\nbuffer_store_dword v4, v3, {srd(SWG)}, s61 offen sc1\ns_mov_b64 exec, -1")
        a("s_waitcnt vmcnt(0)")
        self.ts(24)
        a("s_branch Lcsx\nLcspf:\ns_barrier")
        if self.o["pf"]: self.prefetch(30, True)
        a("Lcsx:")
        if self.o["pf"]:
            a("s_barrier")
            self.prefetch(30)
            self.ts(25)
        if self.o["wb"]:
            a("s_cmp_lg_u32 s22, 0\ns_cbranch_scc1 Lcsy\ns_cmp_lg_u32 s57, 31\ns_cbranch_scc1 Lcsy")
            if self.o["wb"] & 2:
                a("s_mov_b32 s61, 0\ns_mov_b32 s60, 30")
                self.wait_flags(1, False)
                a("buffer_wbl2 sc1\ns_waitcnt vmcnt(0)")
            a("s_mov_b32 s61, 0\ns_mov_b32 s60, 28")
            self.wait_flags(2, False)
            self.ts(24)
            a("buffer_wbl2 sc1\ns_waitcnt vmcnt(0)")
            self.ts(25)
            a("Lcsy:")
        self.tprev = 20
        self.fin()
    W1R = [152, 168, 184, 200, 216, 232]
    def bg_init(self):
        self.bg = [(s, n) for s in range(self.o["nv"]) for n in range(4)]
    def bg_issue(self, cnt):
        a = self.a
        while cnt > 0 and self.bg:
            s, n = self.bg.pop(0); cnt -= 1
            r = self.W1R[s] + 4*n
            a(f"s_add_u32 s61, s76, {4*n*3456}")
            a(f"buffer_load_dwordx4 v[{r}:{r+3}], v16, {srd(SW1)}, s61 offen")
            if n == 3: self.adv(76, 64*3456, 10)
            if n == 3 and s in (2, 5): self.w1_jump(4 if s == 2 else 3)
            self.vissue(("w1", s))
    def w1_jump(self, k):
        if self.o["w1r"]: self.a(f"s_mul_i32 s3, s72, {k*64*3456//128}\ns_add_u32 s76, s76, s3\ns_sub_u32 s3, s76, {640*3456}\ns_cselect_b32 s76, s76, s3")
    def w1_flush(self, s):
        self.vwait([("w1", s)])
        r = self.W1R[s]
        if self.o["w1r"]:
            if s == 0: self.a("s_mul_i32 s3, s72, 384\nv_add_u32 v15, 49152, v14\nv_subrev_u32 v15, s3, v15\nv_add_u32 v14, s3, v14")
            for n in range(4): self.a(f"ds_write_b128 v{14 + s // 3}, v[{r+4*n}:{r+4*n+3}] offset:{self.p3w(s % 3) + n*1024}")
            return
        for n in range(4): self.a(f"ds_write_b128 v{14 + (self.p3w(s) >> 16)}, v[{r+4*n}:{r+4*n+3}] offset:{(self.p3w(s) & 0xffff) + n*1024}")
    def w1_dma(self, s):
        a = self.a
        for n in range(4):
            a(f"s_add_u32 m0, s64, {self.p3w(s) + n*1024}")
            a(f"s_add_u32 s61, s76, {4*n*3456}")
            a(f"buffer_load_dwordx4 v16, {srd(SW1)}, s61 offen lds")
            self.vissue(("w1", s))
        self.adv(76, 64*3456, 10)
    def w2_dma(self, u):
        a = self.a
        for ks in range(2):
            a(f"s_add_u32 m0, s79, {self.p4w(u) + ks*4096}")
            a(f"s_add_u32 s61, s83, {32*ks*1280}")
            a(f"buffer_load_dwordx4 v17, {srd(SW2)}, s61 offen lds")
            self.vissue(("w2", u))
        self.adv(83, 64*1280, 27)
    def w2r(self, u): return 52 + 8*(u if u < 9 else u - 3)
    def w2_reg(self, u):
        a = self.a
        for ks in range(2):
            r = self.w2r(u) + 4*ks
            a(f"s_add_u32 s61, s83, {32*ks*1280}")
            a(f"buffer_load_dwordx4 v[{r}:{r+3}], v17, {srd(SW2)}, s61 offen")
            self.vissue(("w2", u))
        self.adv(83, 64*1280, 27)
    def w2_flush(self, u):
        for ks in range(2):
            r = self.w2r(u) + 4*ks; o = self.p4w(u) + ks*4096
            self.a(f"ds_write_b128 v{[19, 9][o >> 16]}, v[{r}:{r+3}] offset:{o & 0xffff}")
    def p1l(self):
        a = self.a
        LA = self.o["la1"]
        self.vreset()
        a("s_lshl_b32 s60, s59, 6\ns_sub_u32 s60, s60, 16")
        a("s_mul_i32 s3, s23, 20\nv_lshrrev_b32 v14, 3, v1\nv_add_u32 v14, s3, v14\nv_and_b32 v13, 7, v1")
        for n in range(3):
            a(f"v_add_u32 v2, {8*n}, v14\nv_lshrrev_b32 v3, 1, v2\nv_and_b32 v3, 7, v3\nv_xor_b32 v3, v3, v13")
            a(f"v_add_u32 v2, s60, v2\nv_max_i32 v2, 0, v2\nv_mul_u32_u24 v2, 1280, v2\nv_lshl_add_u32 v{15+n}, v3, 4, v2")
        a("v_cmp_le_u32 vcc, 30, v1\nv_cndmask_b32 v2, 0, 1, vcc")
        a("v_mul_u32_u24 v3, 30, v2\nv_sub_u32 v3, v1, v3")
        a("v_mul_u32_u24 v4, 26, v3\nv_lshrrev_b32 v4, 8, v4")
        a("v_mul_u32_u24 v5, 10, v4\nv_sub_u32 v5, v3, v5")
        a("v_mul_u32_u24 v18, 3840, v2\nv_mul_u32_u24 v4, 1280, v4\nv_add_u32 v18, v18, v4\nv_lshl_add_u32 v18, v5, 4, v18")
        a("s_and_b32 s3, s23, 1\ns_lshl_b32 s3, s3, 4\ns_lshr_b32 s61, s23, 1\ns_lshl_b32 s61, s61, 2\ns_add_u32 s3, s3, s61")
        a("s_mul_i32 s3, s3, 3840\ns_mul_i32 s61, s58, 160\ns_add_u32 s3, s3, s61\nv_add_u32 v18, s3, v18")
        a(f"s_mul_i32 s64, s23, {4*960}\ns_mul_i32 s65, s23, 2560")
        a("s_cmp_eq_u32 s23, 0\ns_cselect_b32 s78, 0xffffff00, -1")
        if self.o["rot1"] == 3:
            if self.o["r1d"] == 1: a("s_and_b32 s3, s57, 3\ns_lshl_b32 s3, s3, 1\ns_bfe_u32 s61, s57, 0x10002\ns_add_u32 s3, s3, s61")
            elif self.o["r1d"] == 0: a("s_mov_b32 s3, 0")
            elif self.o["r1d"] == 2: a("s_bfe_u32 s3, s57, 0x10002\ns_mul_i32 s3, s3, 5")
            elif self.o["r1d"] == 3: a("s_and_b32 s3, s57, 1\ns_mul_i32 s3, s3, 5\ns_bfe_u32 s61, s57, 0x10002\ns_lshl_b32 s61, s61, 1\ns_add_u32 s3, s3, s61")
            else:
                a(f"s_and_b32 s3, s57, 3\ns_bfe_u32 s61, s57, 0x10003\ns_lshl_b32 s61, s61, 2\ns_add_u32 s3, s3, s61\ns_lshl_b32 s3, s3, 2\ns_lshr_b32 s3, {self.o['r1t']}, s3\ns_and_b32 s3, s3, 15")
                a(f"s_bfe_u32 s61, s57, 0x10002\ns_mul_i32 s61, s61, {self.o['r1e']}\ns_add_u32 s3, s3, s61")
                assert self.o["r1a"] == 0
            a(f"s_lshr_b32 s61, s57, 4\ns_mul_i32 s61, s61, {self.o['r1b']}\ns_add_u32 s3, s3, s61\ns_bfe_u32 s62, s57, 0x10003\ns_mul_i32 s61, s62, {self.o['r1a']}\ns_add_u32 s3, s3, s61")
            a("s_sub_u32 s61, s3, 10\ns_cmp_ge_u32 s3, 10\ns_cselect_b32 s3, s61, s3")
            if self.o["r1g"]:
                a(f"s_lshl_b32 s61, s56, 2\ns_lshr_b32 s61, {self.o['r1g']}, s61\ns_and_b32 s61, s61, 15\ns_add_u32 s3, s3, s61")
                a("s_sub_u32 s61, s3, 10\ns_cmp_ge_u32 s3, 10\ns_cselect_b32 s3, s61, s3")
            a(f"s_lshl_b32 s75, s3, 7\ns_lshl_b32 s3, s3, 1\ns_add_u32 s3, s3, s62\ns_mul_i32 s76, s3, {32*3840}")
            a(f"s_cmp_eq_u32 s62, 0\ns_cselect_b32 s96, 1, -1\ns_mul_i32 s96, s96, 128\ns_cselect_b32 s97, 1280, s96\ns_cselect_b32 s98, 0, {9*128}")
            a(f"s_mul_i32 s99, s96, 960\ns_cselect_b32 s100, {20*32*3840}, s99\ns_cselect_b32 s101, 0, {19*32*3840}")
        elif self.o["rot1"]:
            a("s_and_b32 s3, s57, 7\ns_lshr_b32 s61, s57, 3")
            a("s_mul_i32 s3, s3, 5\ns_lshr_b32 s3, s3, 2")
            if self.o["rot1"] == 1:
                a("s_mul_i32 s61, s61, 5\ns_lshr_b32 s61, s61, 1\ns_add_u32 s3, s3, s61")
                a("s_sub_u32 s61, s3, 10\ns_cmp_ge_u32 s3, 10\ns_cselect_b32 s3, s61, s3")
            a(f"s_lshl_b32 s75, s3, 7\ns_mul_i32 s76, s3, {64*3840}")
        else:
            a("s_mov_b32 s75, 0\ns_mov_b32 s76, 0")
        self.srds([SX, SWQ])
        self.ts(1)
        def xiss(s):
            for n in range(3):
                a(f"s_add_u32 m0, s65, {self.p1x(s) + n*1024}")
                if n == 0: a("s_mov_b32 exec_lo, s78")
                if n == 1: a("s_mov_b32 exec_lo, -1")
                if n == 2: a("s_mov_b32 exec_hi, 0")
                a(f"buffer_load_dwordx4 v{15+n}, {srd(SX)}, s75 offen lds")
                self.vissue(("x", s))
            a("s_mov_b32 exec_hi, -1")
            if self.o["rot1"] == 3: a("s_add_u32 s75, s75, s96\ns_cmp_eq_u32 s75, s97\ns_cselect_b32 s75, s98, s75")
            else: self.adv(75, 128, 10)
        def wiss(u):
            a("s_mov_b32 exec_hi, 0x0fffffff")
            for jj in range(4):
                a(f"s_add_u32 m0, s64, {self.p1w(u) + jj*960}")
                a(f"s_add_u32 s61, s76, {[0, 2, 8, 10][jj] * 3840}")
                a(f"buffer_load_dwordx4 v18, {srd(SWQ)}, s61 offen lds")
                self.vissue(("w", u))
            a("s_mov_b32 exec_hi, -1")
            if self.o["rot1"] == 3: a("s_add_u32 s76, s76, s99\ns_cmp_eq_u32 s76, s100\ns_cselect_b32 s76, s101, s76")
            else: self.adv(76, 32*3840, 20)
        def iss(u):
            if u % 2 == 0: xiss(u // 2)
            wiss(u)
        nis = self.o["i0"]
        for u in range(nis):
            iss(u)
            if u == 0: self.ts(2)
        self.ts(3)
        self.srds([SWS, SWO, SW1, SW2])
        for r in range(6): a(f"v_mov_b32 v{20+r}, 0")
        a("v_lshlrev_b32 v26, 4, v1\nv_add_u32 v26, s65, v26\nv_mov_b32 v12, 0x3f803f80")
        self.mk3(26)
        self.p24_ids()
        self.p2_wo_setup()
        self.ts(4)
        if self.dbg: self.vwait([("x", 0)]); self.ts(5)
        self.vwait([("w", 0)])
        self.ts(6)
        nwo = 0
        for u in range(20):
            self.bar()
            if u == 19:
                for m in ("quad_perm:[1,0,3,2]", "quad_perm:[2,3,0,1]", "row_half_mirror"):
                    for r in range(6): a(f"v_add_f32_dpp v{20+r}, v{20+r}, v{20+r} {m} row_mask:0xf bank_mask:0xf")
                for n in range(3):
                    m_, q_ = 33 + 2*n, 21 + 2*n
                    a(f"v_mul_f32 v{m_}, {1.0/640!r}, v{20+2*n}\nv_mul_f32 v{q_}, {1.0/640!r}, v{q_}")
                    a(f"v_fma_f32 v{q_}, -v{m_}, v{m_}, v{q_}\nv_max_f32 v{q_}, 0, v{q_}\nv_add_f32 v{q_}, 1e-5, v{q_}\nv_rsq_f32 v{m_-1}, v{q_}")
                a("v_lshlrev_b32 v2, 2, v14")
            if u == 19:
                a("ds_write2_b32 v2, v32, v33 offset1:80\nds_write2_b32 v2, v34, v35 offset0:8 offset1:88")
                a("s_mov_b32 exec_hi, 0\nds_write2_b32 v2, v36, v37 offset0:16 offset1:96\ns_mov_b32 exec_hi, -1")
            for _ in range(2):
                if nis <= min(19, u + (LA if u < self.o["lasw"] else self.o["la2"])): iss(nis); nis += 1
            if self.o["nE"] and u == 17: self.p3_w_setup(); self.bg_init()
            if self.o["nE"] and u >= 17 and self.o["eo"]: self.bg_issue(self.o["nE"])
            if u >= self.o["wo0"]: self.p2_wo_issue(nwo); nwo += 1
            if self.o["nE"] and u >= 17 and not self.o["eo"]: self.bg_issue(self.o["nE"])
            if u % 2 == 0:
                for n in range(3): a(f"ds_read_b128 v[{32+4*n}:{35+4*n}], {self.ad(26, self.p1x(u//2) + n*1024)}")
                a("s_waitcnt lgkmcnt(0)")
                for d in range(4):
                    for n in range(3):
                        a(f"v_dot2c_f32_bf16 v{20+2*n}, v{32+4*n+d}, v12\nv_dot2c_f32_bf16 v{21+2*n}, v{32+4*n+d}, v{32+4*n+d}")
            if u == 19: a("s_waitcnt lgkmcnt(0)")
            if u + 1 <= 19: self.vwait([("w", u + 1)])
        self.bar()
        if self.o["wol"]: self.p3_w_setup(); self.bg_init(); self.bg_issue(self.o["nA"])
        for k in range(nwo, 5): self.p2_wo_issue(k)
        a("s_cmp_ge_u32 s57, 30\ns_cbranch_scc1 Lcsum2")
        if self.o["pt"] & 2:
            a("v_and_b32 v2, 15, v1\nv_lshlrev_b32 v3, 3, v2\nv_cmp_gt_u32 vcc, s69, v3\nv_lshlrev_b32 v2, 7, v2\nv_lshrrev_b32 v3, 4, v1\nv_lshl_add_u32 v2, v3, 12, v2")
            a(f"v_mov_b32 v3, {OOB}\nv_cndmask_b32 v2, v3, v2, vcc")
            a(f"s_lshl_b32 s61, s67, 2\ns_add_u32 s61, s61, s23\ns_lshl_b32 s61, s61, 13\ns_lshl_b32 s3, s63, 4\ns_add_u32 s61, s61, s3\ns_add_u32 s61, s61, {H_BASE}")
            a(f"s_mov_b32 exec_hi, 0\n{self.touch(60, 2, 's61')}\ns_mov_b32 exec_hi, -1")
            self.vissue("pt")
        if not self.o["nE"] and not self.o["wol"]: self.p3_w_setup(); self.bg_init()
        if not self.o["wol"]: self.bg_issue(self.o["nA"])
        self.p4_w_setup()
        self.ts(18)

    def p24_ids(self):
        a = self.a
        a("s_mul_i32 s66, s57, 26\ns_lshr_b32 s66, s66, 8\ns_mul_i32 s3, s66, 10\ns_sub_u32 s67, s57, s3")
        a("s_lshl_b32 s68, s56, 8\ns_mul_i32 s63, s66, 88\ns_add_u32 s68, s68, s63")
        a("s_cmp_eq_u32 s66, 2\ns_cselect_b32 s69, 0, 8\ns_add_u32 s69, s69, 80")
    def w64_addr(self, dst, Drows):
        a = self.a
        a("v_lshrrev_b32 v2, 3, v1\nv_and_b32 v3, 3, v2\nv_lshrrev_b32 v4, 2, v2")
        a(f"v_mul_u32_u24 v4, {Drows}, v4\nv_add_u32 v3, v3, v4\nv_mul_u32_u24 v{dst}, 1280, v3")
        a("v_lshrrev_b32 v2, 4, v1\nv_lshlrev_b32 v2, 1, v2\nv_and_b32 v3, 7, v1\nv_xor_b32 v3, v3, v2")
        a(f"v_lshl_add_u32 v{dst}, v3, 4, v{dst}")
        a(f"s_lshl_b32 s3, s67, 7\nv_add_u32 v{dst}, s3, v{dst}")
    def panel96_addr(self, dst):
        a = self.a
        for n in range(3):
            a(f"v_add_u32 v2, {64*n}, v1\nv_cmp_le_u32 vcc, 96, v2\nv_cndmask_b32 v3, 0, 1, vcc")
            a("v_mul_u32_u24 v4, 96, v3\nv_sub_u32 v2, v2, v4")
            a("s_lshl_b32 s3, s23, 1\nv_add_u32 v3, s3, v3")
            a(f"v_mul_u32_u24 v3, {CS}, v3\nv_add_u32 v4, s63, v2\nv_lshl_add_u32 v3, v4, 4, v3")
            a(f"v_cmp_gt_u32 vcc, s69, v2\nv_mov_b32 v4, {OOB}\nv_cndmask_b32 v{dst+n}, v4, v3, vcc")
    def panel96_issue(self, areg, gbase, nst, ldsbase, tag):
        a = self.a
        a(f"s_add_u32 s61, s75, {gbase}")
        for n in range(3):
            a(f"s_add_u32 m0, s65, {ldsbase + n*1024}")
            a(f"buffer_load_dwordx4 v{areg+n}, {srd(SWS)}, s61 offen {['', 'sc1', 'nt', 'sc0 sc1', 'sc1 nt'][self.o['ldsc']]} lds")
            self.vissue(tag)
        self.adv(75, 8*CS, nst)
    def c24_addr(self):
        a = self.a
        a("s_lshr_b32 s70, s23, 1\ns_and_b32 s71, s23, 1")
        a("v_lshrrev_b32 v11, 3, v1\nv_and_b32 v11, 3, v11\ns_lshl_b32 s3, s71, 1\nv_xor_b32 v11, s3, v11")
        a("v_lshrrev_b32 v2, 2, v1\nv_lshlrev_b32 v2, 7, v2\nv_and_b32 v3, 3, v1\nv_lshl_add_u32 v2, v3, 3, v2")
        a("v_xor_b32 v3, 1, v11\nv_lshl_add_u32 v5, v3, 5, v2\nv_lshl_add_u32 v2, v11, 5, v2")
        self.mk3(2); self.mk3(5)
        a("v_lshrrev_b32 v8, 4, v1\nv_mul_u32_u24 v8, 1536, v8\nv_and_b32 v11, 15, v1\nv_lshl_add_u32 v8, v11, 4, v8")
        a("s_mul_i32 s3, s70, 768\nv_add_u32 v8, s3, v8")
        self.mk3(8)
    def c24_loop(self, nst, aoff, boff, ACC, tsb):
        a = self.a
        def reads(u):
            s, ks = divmod(u, 2); f = 20 + 20*(u % 4); r = []
            for j in range(2):
                for rd in range(2):
                    r.append(f"ds_read_b64_tr_b16 v[{f+4*j+2*rd}:{f+4*j+2*rd+1}], {self.ad(2+3*j, aoff(s) + ks*4096 + rd*2048)}")
            for t in range(3):
                r.append(f"ds_read_b128 v[{f+8+4*t}:{f+11+4*t}], {self.ad(8, boff(s) + ks*4*1536 + t*256)}")
            return [r[0], r[4], r[1], r[5], r[2], r[3], r[6]]
        def mfmas(u):
            f = 20 + 20*(u % 4); r = []
            for j in range(2):
                for t in range(3):
                    c = ACC + (t*2+j)*4
                    cs = "0" if u == 0 and not self.o["ri"] else f"v[{c}:{c+3}]"
                    r.append(f"v_mfma_f32_16x16x32_bf16 v[{c}:{c+3}], v[{f+4*j}:{f+4*j+3}], v[{f+8+4*t}:{f+11+4*t}], {cs}")
            if self.o["ri"] and u == 2*nst - 1: r = [r[0], r[1], r[3], r[2], r[4], r[5]]
            return r
        n = 2*nst
        self.bar()
        self.ts(tsb)
        for x in reads(0) + reads(1): a(x)
        for u in range(n):
            nu = u + 2
            if nu < n and nu % 2 == 0: self.bar()
            if u == nst: self.ts(tsb+1)
            a(f"s_waitcnt lgkmcnt({7 if u + 1 < n else 0})")
            if u == n - 1:
                self.bar(); self.ts(tsb+2)
            rd = reads(nu) if nu < n else []
            mf = mfmas(u)
            for i, m in enumerate(mf):
                a(m)
                if i < len(rd): a(rd[i])
            for x in rd[len(mf):]: a(x)
    def c24_rowaddr(self):
        a = self.a
        a("v_and_b32 v12, 15, v1\ns_mul_i32 s3, s70, 48\nv_add_u32 v12, s3, v12")
        a("v_lshrrev_b32 v13, 4, v1\nv_and_b32 v14, 1, v13\nv_lshlrev_b32 v14, 1, v14\nv_lshrrev_b32 v11, 1, v13\nv_add_u32 v14, v14, v11")
        a("s_lshl_b32 s3, s71, 2\nv_add_u32 v14, s3, v14")
    def c24_addr_rm(self, dst):
        a = self.a
        for t in range(3):
            a(f"v_add_u32 v11, {16*t}, v12\nv_cmp_gt_u32 vcc, s69, v11\nv_add_u32 v11, s68, v11\nv_mul_u32_u24 v11, 1280, v11")
            a(f"v_lshl_add_u32 v11, v14, 4, v11\ns_lshl_b32 s3, s67, 7\nv_add_u32 v11, s3, v11")
            a(f"v_mov_b32 v{dst+t}, {OOB}\nv_cndmask_b32 v{dst+t}, v{dst+t}, v11, vcc")
    def c24_addr_panel(self, dst):
        a = self.a
        for t in range(3):
            a(f"s_lshl_b32 s3, s67, 3\nv_add_u32 v{dst+t}, s3, v14\nv_mul_u32_u24 v{dst+t}, {CS}, v{dst+t}")
            a(f"v_add_u32 v11, {16*t}, v12\nv_cmp_gt_u32 vcc, s69, v11\nv_add_u32 v11, s63, v11")
            a(f"v_lshl_add_u32 v11, v11, 4, v{dst+t}")
            a(f"v_mov_b32 v{dst+t}, {OOB}\nv_cndmask_b32 v{dst+t}, v{dst+t}, v11, vcc")
    def c24_init(self, ACC, RES):
        a = self.a
        if not self.o["ri"]: return
        a("s_waitcnt vmcnt(0)")
        for t in range(3):
            A = ACC + t*8
            for d in range(4): a(f"v_lshlrev_b32 v{A+2*d}, 16, v{RES+4*t+d}\nv_and_b32 v{A+2*d+1}, 0xffff0000, v{RES+4*t+d}")
            for r in range(4): a(f"v_permlane16_swap_b32 v{A+r}, v{A+4+r}")
    def c24_sum(self, ACC, RES, OUT, T, store):
        a = self.a
        for t in range(3):
            A = ACC + t*8; B = A + 4
            if self.o["ri"]:
                for r in range(4): a(f"v_permlane16_swap_b32 v{A+r}, v{B+r}")
                for d in range(4): a(f"v_cvt_pk_bf16_f32 v{OUT+4*t+d}, v{A+2*d}, v{A+2*d+1}")
                store(t)
                continue
            for d in range(4):
                a(f"v_lshlrev_b32 v{T+2*d}, 16, v{RES+4*t+d}\nv_and_b32 v{T+2*d+1}, 0xffff0000, v{RES+4*t+d}")
            for r in range(4): a(f"v_permlane16_swap_b32 v{A+r}, v{B+r}")
            for d in range(4):
                a(f"v_pk_add_f32 v[{T+2*d}:{T+2*d+1}], v[{T+2*d}:{T+2*d+1}], v[{A+2*d}:{A+2*d+1}]")
            for d in range(4):
                a(f"v_cvt_pk_bf16_f32 v{OUT+4*t+d}, v{T+2*d}, v{T+2*d+1}")
            store(t)

    P2_WO = 81920; P2_RING = 0; P2_NS = 6
    HREG = 240
    def p2_wo_setup(self):
        a = self.a
        self.w64_addr(44, 8); self.w64_addr(45, 40)
        self.csum_addr(46)
        a(f"s_mul_i32 s89, s23, {160*1280}\ns_mul_i32 s79, s23, 5")
        if self.o["rot2"]:
            a("s_lshl_b32 s3, s67, 1\ns_add_u32 s79, s79, 20\ns_sub_u32 s79, s79, s3\ns_sub_u32 s3, s79, 20\ns_cmp_ge_u32 s79, 20\ns_cselect_b32 s79, s3, s79")
        a("s_lshl_b32 s79, s79, 12")
    def p2_wo_issue(self, kk):
        a = self.a
        L1 = self.lab("csl"); L2 = self.lab("csb")
        a(f"s_cmp_ge_u32 s57, 30\ns_cbranch_scc1 {L1}")
        self.ool.append(f"{L1}:\n" + "\n".join(self.csum_ld(4*kk + n, 46, False) for n in range(4)) + f"\ns_branch {L2}")
        def blk(kk, sb):
            r = []
            for io in range(4):
                q = 4*kk + 2*(io % 2); rd = io // 2; hg = q // 10; c = q % 10
                if c < 8: row = 80*hg + 20*(c//2) + 4*rd; reg = 44
                else: row = 80*hg + 20*rd + 16; reg = 45
                r.append(f"s_add_u32 m0, {sb}, {self.P2_WO + io*1024}\ns_add_u32 s61, s89, {row*1280}\nbuffer_load_dwordx4 v{reg}, {srd(SWO)}, s61 offen lds")
            return "\n".join(r)
        for io in range(4): self.vissue("wo")
        if self.o["wor"]:
            OR = [[0, 1, 2, 4, 3], [2, 3, 4, 0, 1], [4, 0, 2, 1, 3]]
            pos = lambda k: f"s_add_u32 s90, s79, {k*4096}\ns_sub_u32 s3, s90, 81920\ns_cselect_b32 s90, s90, s3\n"
            for b in (1, 2):
                Lb = self.lab("wob")
                a(f"s_cmp_eq_u32 s66, {b}\ns_cbranch_scc1 {Lb}")
                self.ool.append(f"{Lb}:\n" + pos(OR[b][kk]) + blk(OR[b][kk], "s90") + f"\ns_branch {L2}")
            a(pos(OR[0][kk]) + blk(OR[0][kk], "s90"))
        else:
            a(blk(kk, "s79"))
            self.adv(79, 4096, 20)
        a(f"{L2}:")
    def p2c(self):
        a = self.a
        self.p24_ids(); self.c24_addr(); self.c24_rowaddr()
        XR = 220
        self.c24_addr_rm(16)
        for t in range(3):
            a(f"buffer_load_dwordx4 v[{XR+4*t}:{XR+4*t+3}], v{16+t}, {srd(SX)}, 0 offen")
        if self.o["cp3"]: self.code_pf(202, 203)
        self.c24_addr_panel(16)
        if self.o["pt"] & 16:
            a(f"s_mov_b32 s61, {H_BASE}")
            for t in range(3): a(f"buffer_load_dword v19, v{16+t}, {srd(SWS)}, s61 offen")
        if self.o["pt"] & 128:
            a(f"s_sub_u32 s3, s69, 48\ns_mul_i32 s3, s3, s70\ns_add_u32 s3, s3, s63\ns_lshl_b32 s3, s3, 4\ns_lshl_b32 s61, s67, 1\ns_add_u32 s61, s61, s71\ns_lshl_b32 s61, s61, 14\ns_add_u32 s61, s61, s3")
            for k in range(24): a(f"s_buffer_load_dword s96, {srd(SWS)}, s61 offset:{H_BASE + (k//6)*4096 + (k%6)*128}")
        a("v_and_b32 v232, 1, v13\nv_lshl_add_u32 v232, v232, 4, v12\nv_add_u32 v233, 32, v12\nv_lshrrev_b32 v11, 1, v13\nv_lshlrev_b32 v11, 2, v11")
        a(f"v_mov_b32 v15, {OOB}")
        for r in (232, 233):
            a(f"v_cmp_gt_u32 vcc, s69, v{r}\nv_add_u32 v{r}, s63, v{r}\nv_lshl_add_u32 v{r}, v{r}, 3, v11\nv_cndmask_b32 v{r}, v15, v{r}, vcc")
        a(f"s_lshl_b32 s60, s67, 1\ns_add_u32 s60, s60, s71\ns_lshl_b32 s60, s60, 11\ns_add_u32 s60, s60, {ST_BASE}")
        ACC = 100
        if self.o["pt"] & 128: a("s_waitcnt lgkmcnt(0)"); self.ts(23)
        self.c24_init(ACC, XR)
        self.c24_loop(10, lambda s: self.P2_WO + s*8192, lambda s: self.P2_RING + ((s + 1) % self.P2_NS)*12288, ACC, 7)
        a("s_waitcnt vmcnt(0)")
        H = self.HREG
        a(f"s_mov_b32 s61, {H_BASE}")
        a("s_mov_b64 vcc, s[86:87]")
        self.c24_sum(ACC, XR, H, 32, lambda t: self.hst(f"buffer_store_dwordx4 v[{H+4*t}:{H+4*t+3}], v{16+t}, {srd(SWS)}, s61 offen"))
        self.ts(19)
        a("v_mov_b32 v30, 0x3f803f80")
        for t in range(6): a(f"v_mov_b32 v{20+t}, 0")
        for d in range(4):
            for t in range(3):
                a(f"v_dot2c_f32_bf16 v{20+2*t}, v{H+4*t+d}, v30\nv_dot2c_f32_bf16 v{21+2*t}, v{H+4*t+d}, v{H+4*t+d}")
        self.signal(1, "s23")
        self.ts(20)
        for t in range(3): a(f"v_permlane32_swap_b32 v{20+2*t}, v{21+2*t}")
        for t in range(3): a(f"v_add_f32 v{20+2*t}, v{20+2*t}, v{21+2*t}")
        a("v_mov_b32 v25, v24")
        a("v_permlane16_swap_b32 v20, v22\nv_permlane16_swap_b32 v24, v25")
        a("v_add_f32 v20, v20, v22\nv_add_f32 v24, v24, v25")
        self.hst(f"buffer_store_dword v20, v232, {srd(SWS)}, s60 offen")
        self.hst(f"buffer_store_dword v24, v233, {srd(SWS)}, s60 offen")
        a("s_waitcnt vmcnt(0)\ns_mov_b64 exec, 1")
        self.hst(f"buffer_store_dword v3, off, {srd(SWS)}, s61 offset:16")
        a("s_mov_b64 exec, -1")
    def p2l(self):
        a = self.a
        self.panel96_addr(11)
        a("s_mul_i32 s65, s23, 3072")
        a(f"s_mul_i32 s75, s67, {8*CS}" if self.o["rot2"] else "s_mov_b32 s75, 0")
        a("v_lshlrev_b32 v14, 4, v1\nv_add_u32 v14, s64, v14\nv_add_u32 v15, 0x10000, v14\ns_lshl_b32 s79, s23, 10\nv_lshl_add_u32 v19, v1, 4, s79\nv_add_u32 v9, 0x10000, v19")
        a("s_lshl_b32 s61, s66, 3\ns_mov_b32 s60, 16")
        self.wait_flags(0, False)
        self.ts(7)
        NS = self.P2_NS
        iss = lambda s: self.panel96_issue(11, O_BASE, 10, self.P2_RING + ((s + 1) % NS)*12288, ("o", s))
        no = self.o["o0"]
        for s in range(no): iss(s)
        self.vwait([("o", 0)])
        for s in range(10):
            self.bar()
            for _ in range(self.o["per"]):
                if no <= min(9, max(s - 2, -1) + NS): iss(no); no += 1
            assert self.o["o0"] <= 5
            if s >= self.o["c0"]: self.bg_issue(self.o["nC"])
            if s + 1 <= 9: self.vwait([("o", s + 1)])
        self.bar()
        a("s_cmp_ge_u32 s57, 28\ns_cbranch_scc1 Lskip3l")

    def p3w(self, s): return A16(s % 6)
    def p3h(self, s): return A16(6 + s % 4)
    P3_ST = A16(4)
    def p3_ids(self):
        a = self.a
        a("s_cmp_ge_u32 s57, 14\ns_cselect_b32 s3, 1, 0\ns_cselect_b32 s73, 14, 0\ns_sub_u32 s73, s57, s73")
        a("s_lshl_b32 s72, s3, 7")
    def p3_w_setup(self):
        a = self.a
        self.p3_ids()
        a("v_lshrrev_b32 v2, 4, v1\nv_lshlrev_b32 v3, 2, v2\nv_and_b32 v4, 15, v1\nv_xor_b32 v4, v4, v3")
        a("v_mul_u32_u24 v16, 3456, v2\nv_lshl_add_u32 v16, v4, 4, v16")
        a(f"s_lshl_b32 s3, s73, 8\ns_mul_i32 s61, s23, {16*3456}\ns_add_u32 s3, s3, s61")
        a(f"s_cmp_ge_u32 s57, 28\ns_cselect_b32 s3, {OOB}, s3\nv_add_u32 v16, s3, v16")
        a("s_lshl_b32 s64, s23, 12")
        if self.o["rot3"]:
            a(f"s_mul_i32 s77, s73, 183\ns_lshr_b32 s77, s77, 8\ns_cmp_ge_u32 s57, 14\ns_cselect_b32 s3, {self.o['r3o']}, 0\ns_add_u32 s77, s77, s3")
            a("s_sub_u32 s3, s77, 10\ns_cmp_ge_u32 s77, 10\ns_cselect_b32 s77, s3, s77")
        else: a("s_mov_b32 s77, 0")
        a(f"s_mul_i32 s76, s77, {64*3456}")
        self.w1_jump(3)
    def p3c(self):
        a = self.a
        Lsig = self.lab("P3sig")
        a("s_cmp_ge_u32 s57, 28\ns_cbranch_scc1 Lskip3b")
        L0 = self.L; self.L = []
        a("Lskip3b:\ns_barrier")
        if self.o["pb"] > self.o["pf"]: self.prefetch(28)
        a("s_branch Lskip3c")
        self.ool.append("\n".join(self.L)); self.L = L0
        self.p3_ids()
        a("v_lshrrev_b32 v11, 2, v1\nv_and_b32 v11, 3, v11")
        a("v_lshrrev_b32 v2, 5, v1\nv_lshl_add_u32 v2, v2, 3, v11\nv_lshlrev_b32 v2, 8, v2")
        a("v_lshrrev_b32 v3, 4, v1\nv_and_b32 v3, 1, v3\nv_lshl_add_u32 v2, v3, 5, v2\nv_and_b32 v3, 3, v1\nv_lshl_add_u32 v2, v3, 3, v2")
        a("s_lshl_b32 s3, s71, 1\nv_xor_b32 v11, s3, v11")
        a("v_xor_b32 v3, 1, v11\nv_lshl_add_u32 v5, v3, 6, v2\nv_lshl_add_u32 v2, v11, 6, v2")
        self.mk3(2); self.mk3(5)
        a("v_lshrrev_b32 v8, 5, v1\nv_lshlrev_b32 v8, 11, v8\nv_and_b32 v11, 31, v1\nv_lshl_add_u32 v8, v11, 4, v8")
        a("s_lshl_b32 s3, s70, 10\nv_add_u32 v8, s3, v8")
        self.mk3(8)
        a("v_lshrrev_b32 v15, 5, v1\nv_lshlrev_b32 v12, 4, v15")
        a(f"s_lshl_b32 s3, s71, 8\ns_add_u32 s3, s3, {self.P3_ST + 1024}\nv_add_u32 v12, s3, v12")
        a(f"v_mul_u32_u24 v14, {CS}, v15\nv_lshl_add_u32 v14, v11, 4, v14")
        a("s_lshl_b32 s77, s73, 1\ns_add_u32 s77, s77, s71")
        a(f"s_mul_i32 s60, s77, {8*CS}\ns_lshl_b32 s3, s70, 6\ns_add_u32 s3, s3, s72\ns_lshl_b32 s3, s3, 4\ns_add_u32 s60, s60, s3\ns_add_u32 s60, s60, {G_BASE}")
        if self.o["pt"] & 32:
            a(f"v_lshrrev_b32 v18, 3, v1\nv_lshlrev_b32 v18, 12, v18\nv_and_b32 v16, 7, v1\nv_lshl_add_u32 v18, v16, 7, v18")
        if self.o["pt"] & 256:
            for k in range(self.o["gc"]): a(f"s_buffer_load_dword s96, {srd(SWS)}, s60 offset:{(k//8)*4096 + (k%8)*128}")
            a("s_waitcnt lgkmcnt(0)"); self.ts(24)
        a("v_lshlrev_b32 v13, 3, v11")
        a(f"s_lshl_b32 s3, s70, 9\ns_add_u32 s3, s3, {self.P3_ST}\nv_add_u32 v13, s3, v13")
        a("v_mov_b32 v16, -1.4426950408889634")
        ACC = 100; FB = [20, 36]; CSR = 52; STR = 84
        SCW = self.o["scw"]; SR = 180
        if SCW:
            a(f"s_cmp_ge_u32 s57, 14\ns_cselect_b32 s61, 10, 0\ns_add_u32 s62, s73, 32\ns_sub_u32 s62, s62, s61\ns_mul_i32 s62, s62, {self.FS}\ns_sub_u32 s62, s62, 16")
            a(f"s_mul_i32 s89, s61, {self.FS}\ns_add_u32 s89, s89, {FL_BASE + 64*self.FS}\nv_mul_u32_u24 v172, {self.FS}, v1\nv_writelane_b32 v172, s62, 20")
            a("v_lshlrev_b32 v173, 11, v15\nv_lshl_add_u32 v173, v11, 3, v173\ns_lshl_b32 s3, s23, 5\ns_add_u32 s3, s3, s72\ns_lshl_b32 s3, s3, 3\nv_add_u32 v173, s3, v173")
            a(f"s_lshl_b32 s3, s23, 8\ns_add_u32 s3, s3, {self.P3_ST}\nv_lshl_add_u32 v174, v11, 3, s3\nv_lshlrev_b32 v175, 4, v1")
            a(f"s_lshl_b32 s3, s23, 7\ns_add_u32 m0, s3, {self.P3_ST + 1024}\ns_lshl_b32 s91, s73, 9\ns_add_u32 s91, s91, s3\ns_add_u32 s91, s91, {CSUM}")
        def stat(u):
            r = []
            fl = f"buffer_load_dwordx4 v[176:179], v172, {srd(SWS)}, s89 offen offset:16 sc1"
            if u == self.o["sfu"]: r.append(f"s_mov_b64 exec, 0x1fffff\n{fl}\ns_mov_b64 exec, -1")
            if u == self.o["scu"]:
                L1 = self.lab("sfchk"); L2 = self.lab("sfok"); L3 = self.lab("sfre")
                r.append(f"s_mov_b64 exec, 0x1fffff\ns_mov_b32 s90, 0x100000\ns_waitcnt vmcnt(0)\n{L1}:\nv_and_b32 v176, v176, v177\nv_and_b32 v178, v178, v179\nv_and_b32 v176, v176, v178\nv_cmp_ne_u32 vcc, 1, v176\ns_cbranch_vccnz {L3}\n{L2}:\ns_mov_b64 exec, 255\nbuffer_load_dwordx4 v175, {srd(SWS)}, s91 offen sc1 lds\ns_mov_b64 exec, -1")
                self.ool.append(f"{L3}:\n{fl}\ns_waitcnt vmcnt(0)\ns_sub_u32 s90, s90, 1\ns_cbranch_scc0 {L1}\ns_branch {L2}")
            k = u - self.o["scu"]
            if 0 <= k < 3:
                for n in ((0, 1), (2, 3, 4, 5), (6, 7, 8, 9))[k]:
                    r.append(f"s_mov_b32 s61, {ST_BASE + n*4096}\nbuffer_load_dwordx2 v[{SR+2*n}:{SR+1+2*n}], v173, {srd(SWS)}, s61 offen sc1")
            ad = lambda P: "\n".join(f"v_add_f32 v{SR+2*x+h}, v{SR+2*x+h}, v{SR+2*y+h}" for x, y in P for h in range(2))
            if u == self.o["sru"] - 1:
                r += ["s_waitcnt vmcnt(0)\n" + ad(((0, 5), (1, 6), (2, 7))), ad(((3, 8), (4, 9), (0, 1))), ad(((2, 3), (0, 4))), ad(((0, 2),)) + f"\nv_mov_b32 v176, v{SR}\nv_mov_b32 v177, v{SR+1}"]
            if u == self.o["sru"]:
                r += [f"v_permlane32_swap_b32 v{SR}, v176\nv_permlane32_swap_b32 v{SR+1}, v177\nv_add_f32 v{SR}, v{SR}, v176\nv_add_f32 v{SR+1}, v{SR+1}, v177",
                      f"v_mul_f32 v177, {1.0/640!r}, v{SR}\nv_mul_f32 v{SR+1}, {1.0/640!r}, v{SR+1}\nv_fma_f32 v{SR+1}, -v177, v177, v{SR+1}\nv_max_f32 v{SR+1}, 0, v{SR+1}",
                      f"v_add_f32 v{SR+1}, 1e-5, v{SR+1}\nv_rsq_f32 v176, v{SR+1}\nds_write_b64 v174, v[176:177]"]
            return r
        def reads(u):
            s, ks = divmod(u, 4); f = FB[u % 2]; r = []
            for t in range(2):
                r.append(f"ds_read_b128 v[{f+8+4*t}:{f+11+4*t}], {self.ad(8, self.p3h(s) + ks*4096 + t*512)}")
            for j in range(2):
                for rd in range(2):
                    r.append(f"ds_read_b64_tr_b16 v[{f+4*j+2*rd}:{f+4*j+2*rd+1}], {self.ad(2+3*j, self.p3w(s) + ks*4096 + rd*1024)}")
            return [r[0], r[2], r[3], r[1], r[4], r[5]]
        def mfmas(u):
            f = FB[u % 2]; r = []
            for j in range(2):
                for t in range(2):
                    c = ACC + (j*2+t)*16
                    cs = "0" if u == 0 else f"v[{c}:{c+15}]"
                    r.append(f"v_mfma_f32_32x32x16_bf16 v[{c}:{c+15}], v[{f+4*j}:{f+4*j+3}], v[{f+8+4*t}:{f+11+4*t}], {cs}")
            return r
        for u in range(40):
            rd = reads(u); mf = mfmas(u-1) if u else []
            if u % 4 == 0:
                if mf: a(mf.pop(0))
                self.bar()
            if u == 0: self.ts(10)
            if self.o["pt"] & 32 and u == self.o["g3u"]: a(f"buffer_load_dword v19, v18, {srd(SWS)}, s60 offen")
            if u == (33 if (self.o["sru"] <= 31 if SCW else self.o["srs"] <= 7) else 37):
                for t in range(2): a(f"ds_read_b64 v[{STR+4*t}:{STR+4*t+1}], v13 offset:{256*t}")
            if u in (34, 35, 37, 38):
                k = {34: 0, 35: 1, 37: 2, 38: 3}[u]
                for j in range(2): rd.append(f"ds_read_b128 v[{CSR+16*j+4*k}:{CSR+16*j+4*k+3}], v12 offset:{128*j + 32*k}")
            i = 0
            ex = stat(u) if SCW else []
            for m in mf:
                if u % 4 == 0:
                    for x in rd[i:i+3]: a(x)
                    i += 3
                    a(m)
                else:
                    a(m)
                    for x in rd[i:i+3]: a(x)
                    i += 3
                if ex and (i > 3 or len(ex) >= 4): a(ex.pop(0))
            for x in rd[i:]: a(x)
            for x in ex: a(x)
            a("s_waitcnt lgkmcnt(0)")
        mf = mfmas(39)
        a(mf.pop(0))
        self.bar()
        self.ts(11)
        for m in mf: a(m)
        a("s_waitcnt lgkmcnt(0)\ns_mov_b64 vcc, s[86:87]")
        a(f"s_cmp_ge_u32 s77, 27\ns_cbranch_scc1 {Lsig}")
        for t in range(2):
            a(f"v_mul_f32 v{STR+4*t+2}, -1.4426950408889634, v{STR+4*t}")
        if self.o["ep3"]:
            PT = self.o["ep3"] == 2
            GR = [(j, t, qq) for j in range(2) for t in range(2) for qq in (0, 2)]
            TB = lambda g: 164 + 8*(g % 3)
            PB = lambda g: 188 + 4*(g % 2)
            OB = lambda g: 196 + 4*(g % 2)
            XB = lambda g: ACC + (GR[g][0]*2 + GR[g][1])*16 + 4*GR[g][2]
            def sA(g):
                j, t, qq = GR[g]; A_ = STR + 4*t; r = []
                for p in range(4):
                    x = XB(g) + 2*p; k = CSR + 16*j + 4*qq + 2*p
                    r.append(f"v_pk_fma_f32 v[{x}:{x+1}], v[{k}:{k+1}], v[{A_}:{A_+1}], v[{x}:{x+1}] op_sel:[0,1,0] op_sel_hi:[1,1,1] neg_lo:[0,1,0] neg_hi:[0,1,0]")
                for p in range(4):
                    x = XB(g) + 2*p
                    r.append(f"v_pk_mul_f32 v[{x}:{x+1}], v[{x}:{x+1}], v[{A_+2}:{A_+3}] op_sel_hi:[1,0]")
                if PT: r += [f"v_min_f32 v{XB(g)+p}, v17, v{XB(g)+p}" for p in range(8)]
                return r
            sE = lambda g: [f"v_exp_f32 v{TB(g)+p}, v{XB(g)+p}" for p in range(8)]
            def sB(g):
                T = TB(g)
                r = [f"v_pk_fma_f32 v[{T+2*p}:{T+2*p+1}], v[{T+2*p}:{T+2*p+1}], v[16:17], v[16:17] op_sel_hi:[1,0,0]" for p in range(4)]
                if PT: r += [f"v_mul_f32 v{PB(g)+p}, v{T+2*p}, v{T+2*p+1}" for p in range(4)]
                return r
            sR = lambda g: [f"v_rcp_f32 v{PB(g)+p}, v{PB(g)+p}" for p in range(4)] if PT else [f"v_rcp_f32 v{TB(g)+p}, v{TB(g)+p}" for p in range(8)]
            def sC(g):
                j, t, qq = GR[g]; T = TB(g); o = OB(g); r = []
                if PT:
                    for p in range(4):
                        P = PB(g) + (p & ~1)
                        r.append(f"v_pk_mul_f32 v[{T+2*p}:{T+2*p+1}], v[{T+2*p}:{T+2*p+1}], v[{P}:{P+1}] op_sel:[1,{p & 1}] op_sel_hi:[0,{p & 1}]")
                for p in range(4):
                    x = XB(g) + 2*p
                    r.append(f"v_pk_mul_f32 v[{x}:{x+1}], v[{x}:{x+1}], v[{T+2*p}:{T+2*p+1}]")
                for p in range(4): r.append(f"v_cvt_pk_bf16_f32 v{o+p}, v{XB(g)+2*p}, v{XB(g)+2*p+1}")
                r += [f"v_permlane32_swap_b32 v{o}, v{o+2}", f"v_permlane32_swap_b32 v{o+1}, v{o+3}"]
                r.append((f"s_add_u32 s61, s60, {(4*j + qq)*CS + 512*t}", f"buffer_store_dwordx4 v[{o}:{o+3}], v14, {srd(SWS)}, s61 offen"))
                return r
            def em(x):
                if isinstance(x, tuple): a(x[0]); self.hst(x[1])
                else: a(x)
            V = lambda f, g: f(g) if 0 <= g < 8 else []
            if PT: a("v_mov_b32 v17, 0x42700000")
            for x in sA(0): a(x)
            for g in range(-1, 9):
                tr = V(sE, g + 1) + V(sR, g); nt = V(sB, g) + V(sC, g - 1) + V(sA, g + 2)
                nb = len(V(sB, g)); ne = len(V(sE, g + 1)); k = 0
                for i, x in enumerate(tr):
                    if i >= ne:
                        while k < nb: em(nt[k]); k += 1
                    a(x)
                    m = -(-(len(nt) - k) // (len(tr) - i))
                    for _ in range(min(m, self.o["epn"])):
                        em(nt[k]); k += 1
                for x in nt[k:]: em(x)
        T = 20
        for j in range(2 if not self.o["ep3"] else 0):
            for t in range(2):
                c = ACC + (j*2+t)*16
                A_ = STR + 4*t
                for qq in range(0, 4, 2):
                    o = T + 16 + 4*((qq//2) % 2)
                    for p in range(4):
                        x = c + 4*qq + 2*p; k = CSR + 16*j + 4*qq + 2*p
                        a(f"v_pk_fma_f32 v[{x}:{x+1}], v[{k}:{k+1}], v[{A_}:{A_+1}], v[{x}:{x+1}] op_sel:[0,1,0] op_sel_hi:[1,1,1] neg_lo:[0,1,0] neg_hi:[0,1,0]")
                    for p in range(4):
                        x = c + 4*qq + 2*p
                        a(f"v_pk_mul_f32 v[{x}:{x+1}], v[{x}:{x+1}], v[{A_+2}:{A_+3}] op_sel_hi:[1,0]")
                    for p in range(8): a(f"v_exp_f32 v{T+p}, v{c + 4*qq + p}")
                    for p in range(4):
                        a(f"v_pk_fma_f32 v[{T+2*p}:{T+2*p+1}], v[{T+2*p}:{T+2*p+1}], v[16:17], v[16:17] op_sel_hi:[1,0,0]")
                    for p in range(8): a(f"v_rcp_f32 v{T+p}, v{T+p}")
                    for p in range(4):
                        x = c + 4*qq + 2*p
                        a(f"v_pk_mul_f32 v[{x}:{x+1}], v[{x}:{x+1}], v[{T+2*p}:{T+2*p+1}]")
                    for p in range(4):
                        x = c + 4*qq + 2*p
                        a(f"v_cvt_pk_bf16_f32 v{o+p}, v{x}, v{x+1}")
                    a(f"v_permlane32_swap_b32 v{o}, v{o+2}\nv_permlane32_swap_b32 v{o+1}, v{o+3}")
                    a(f"s_add_u32 s61, s60, {(4*j + qq)*CS + 512*t}")
                    self.hst(f"buffer_store_dwordx4 v[{o}:{o+3}], v14, {srd(SWS)}, s61 offen")
        a(f"{Lsig}:")
        self.ts(21)
        self.signal(2, "s23")
        self.ts(22)
        a("Lskip3c:")
    def p3l(self):
        a = self.a
        NV = self.o["nv"]
        self.bg_issue(99)
        for s in range(NV, 6): self.w1_dma(s)
        for s in range(NV): self.w1_flush(s)
        a(f"s_mul_i32 s3, s23, {2*CS}\ns_lshl_b32 s61, s72, 4\ns_add_u32 s3, s3, s61\nv_lshl_add_u32 v18, v1, 4, s3")
        a(f"s_mul_i32 s75, s77, {8*CS}")
        a("v_and_b32 v2, 31, v1\nv_lshrrev_b32 v3, 5, v1\nv_lshlrev_b32 v3, 11, v3\nv_lshl_add_u32 v10, v2, 3, v3")
        a("s_lshl_b32 s3, s23, 5\ns_add_u32 s3, s3, s72\ns_lshl_b32 s3, s3, 3\nv_add_u32 v10, s3, v10")
        def hiss(s):
            for n in range(4):
                a(f"s_add_u32 m0, s64, {self.p3h(s) + n*1024}")
                a(f"s_add_u32 s61, s75, {H_BASE + (n//2)*CS + (n % 2)*1024}")
                a(f"buffer_load_dwordx4 v18, {srd(SWS)}, s61 offen {['', 'sc1', 'nt', 'sc0 sc1', 'sc1 nt'][self.o['ldsc']]} lds")
                self.vissue(("h", s))
            self.adv(75, 8*CS, 10)
        a("s_cmp_ge_u32 s57, 14\ns_cselect_b32 s61, 10, 0\ns_mov_b32 s60, 20")
        a(f"s_add_u32 s62, s73, 32\ns_sub_u32 s62, s62, s61\ns_mul_i32 s62, s62, {self.FS}\ns_sub_u32 s62, s62, 16")
        self.ts(26)
        self.wait_flags(1, False, "v_writelane_b32 v2, s62, 20")
        self.ts(10)
        SR = 20
        a("s_mov_b32 s62, s61")
        H0 = self.o["h0"]
        for s in range(H0): hiss(s)
        self.ts(30)
        self.vwait([("h", 0)])
        a("s_waitcnt lgkmcnt(0)")
        self.ts(31)
        nh = H0; nw = 0
        NW = self.NW
        sched = {7: self.o["w7"], 8: self.o["w8"], 9: self.o["w9"]}
        assert sched[7] <= 5 and sched[7] + sched[8] <= 7 and sum(sched.values()) <= 9
        W2V = self.o["w2v"]
        if W2V:
            assert NW == 12
            c0, c1 = self.o["cs0"], self.o["cs1"]
            rs = {s: [] for s in range(11)}
            for u in range(9): rs[c0 + u*(c1 - c0 + 1)//9].append(u)
            fl = {8: [0, 1, 2, 3, 4], 9: [5, 6], 10: [7, 8]}
        for s in range(10):
            self.bar()
            if s == 7 and self.o["srs"] <= 6: a("ds_write_b64 v2, v[48:49]")
            if W2V:
                for u in fl.get(s, []): self.w2_flush(u)
            for _ in range(self.o["per"]):
                if nh <= min(9, s + 3): hiss(nh); nh += 1
            SF = self.o["sfs"] if not self.o["scw"] else 99
            if s == SF:
                a(f"s_mov_b64 exec, 0x1fffff\nbuffer_load_dwordx4 v[4:7], v2, {srd(SWS)}, s62 offen offset:16 sc1\ns_mov_b64 exec, -1")
                self.vissue("sf")
            SC = SF + self.o["sfc"]
            if s == SC:
                self.vwait("sf")
                L1 = self.lab("sfchk"); L2 = self.lab("sfok"); L3 = self.lab("sfre")
                a(f"s_mov_b64 exec, 0x1fffff\ns_mov_b32 s60, 0x100000\n{L1}:")
                a(f"v_and_b32 v4, v4, v5\nv_and_b32 v6, v6, v7\nv_and_b32 v4, v4, v6\nv_cmp_ne_u32 vcc, 1, v4\ns_cbranch_vccnz {L3}\n{L2}:\ns_mov_b64 exec, -1")
                self.ool.append(f"{L3}:\nbuffer_load_dwordx4 v[4:7], v2, {srd(SWS)}, s62 offen offset:16 sc1\ns_waitcnt vmcnt(0)\ns_sub_u32 s60, s60, 1\ns_cbranch_scc0 {L1}\ns_branch {L2}")
            if s in (SC, SC + 1):
                for n in (range(5*(s - SC), 5*(s - SC + 1)) if not self.o["sta"] else range(10) if s == SC else []):
                    a(f"s_mov_b32 s61, {ST_BASE + n*4096}")
                    a(f"buffer_load_dwordx2 v[{SR+2*n}:{SR+1+2*n}], v10, {srd(SWS)}, s61 offen sc1")
                    self.vissue("st")
            if s == max(5, SC):
                a(f"s_lshl_b32 s3, s23, 7\ns_add_u32 m0, s3, {self.P3_ST + 1024}\ns_lshl_b32 s61, s73, 9\ns_add_u32 s61, s61, s3\ns_add_u32 s61, s61, {CSUM}")
                a(f"v_lshlrev_b32 v3, 4, v1\ns_mov_b64 exec, 255\nbuffer_load_dwordx4 v3, {srd(SWS)}, s61 offen sc1 lds\ns_mov_b64 exec, -1")
                self.vissue("cs")
            if s == self.o["gts"] and self.o["pt"] & 4:
                a(f"v_lshrrev_b32 v8, 4, v1\nv_lshlrev_b32 v8, 12, v8\nv_and_b32 v3, 15, v1\nv_lshl_add_u32 v8, v3, 7, v8")
                a(f"s_lshl_b32 s61, s73, 2\ns_add_u32 s61, s61, s23\ns_lshl_b32 s61, s61, 14\ns_lshl_b32 s3, s72, 4\ns_add_u32 s61, s61, s3\ns_add_u32 s61, s61, {G_BASE}")
                a(self.touch(60, 8, 's61'))
                self.vissue("pt")
            if 1 <= s <= 4: self.w1_dma(s + 5)
            if W2V:
                for u in rs[s]: self.w2_reg(u)
                if s == 8:
                    a("s_mov_b32 s74, s83"); nw = 12
                    for _ in range(3): self.adv(83, 64*1280, 27)
                if s >= 8:
                    for _ in range(self.o[f"hs{s}"]): self.w2_reg(nw); nw += 1
                self.vwait([("w2", u) for u in fl.get(s + 1, [])])
            else:
                for _ in range(sched.get(s, 0)): self.w2_dma(nw); nw += 1
                tw = self.o["tw"]
                for k, st in enumerate((self.o["tst"], self.o["ts2"])):
                    if tw > 4*k and s == st:
                        n0 = min(tw, 4); b0 = 270 - 28*tw + (28*n0 if k else 0); nn = tw - 4 if k else n0
                        a(f"s_mul_i32 s3, s57, {nn}\ns_add_u32 s3, s3, s23\ns_add_u32 s3, s3, {b0}\ns_lshl_b32 s3, s3, 13\ns_cmp_lt_u32 s23, {nn}\ns_cselect_b32 s3, s3, {OOB}")
                        a(f"v_lshl_add_u32 v8, v1, 7, s3\nbuffer_load_dword v60, v8, {srd(SW2)}, 0 offen")
                        self.vissue("tw")
            if s == self.o["srs"] and not self.o["scw"]:
                self.vwait("st")
                if self.o["npk"]:
                    for x, y in ((0, 5), (1, 6), (2, 7), (3, 8), (4, 9), (0, 1), (2, 3), (0, 4), (0, 2)):
                        for h in range(2): a(f"v_add_f32 v{SR+2*x+h}, v{SR+2*x+h}, v{SR+2*y+h}")
                else:
                    for n in range(1, 10): a(f"v_pk_add_f32 v[{SR}:{SR+1}], v[{SR}:{SR+1}], v[{SR+2*n}:{SR+1+2*n}]")
                a(f"v_mov_b32 v48, v{SR}\nv_mov_b32 v49, v{SR+1}")
                a(f"v_permlane32_swap_b32 v{SR}, v48\nv_permlane32_swap_b32 v{SR+1}, v49")
                a(f"v_add_f32 v{SR}, v{SR}, v48\nv_add_f32 v{SR+1}, v{SR+1}, v49")
                a(f"v_mul_f32 v49, {1.0/640!r}, v{SR}\nv_mul_f32 v{SR+1}, {1.0/640!r}, v{SR+1}")
                a(f"v_fma_f32 v{SR+1}, -v49, v49, v{SR+1}\nv_max_f32 v{SR+1}, 0, v{SR+1}\nv_add_f32 v{SR+1}, 1e-5, v{SR+1}\nv_rsq_f32 v48, v{SR+1}")
                a(f"v_and_b32 v2, 31, v1\nv_lshlrev_b32 v2, 3, v2\ns_lshl_b32 s3, s23, 8\ns_add_u32 s3, s3, {self.P3_ST}\nv_add_u32 v2, s3, v2")
                if s >= 7: a("ds_write_b64 v2, v[48:49]\ns_waitcnt lgkmcnt(0)")
            if s == 7: a("s_waitcnt lgkmcnt(0)"); self.vwait(["cs", "pt"])
            if s + 1 <= 9: self.vwait([("h", s + 1), ("w1", s + 1)])
        self.bar()
        if W2V:
            for u in fl[10]: self.w2_flush(u)
            a("s_mov_b32 s62, s83\ns_mov_b32 s83, s74")
            for u in range(9, 12): self.w2_dma(u)
            a("s_mov_b32 s83, s62")
            for u in range(nw, 27): self.w2_reg(u)
            a("s_waitcnt lgkmcnt(0)")
        else:
            for u in range(nw, NW): self.w2_dma(u)
        a("s_branch Lp4l")
        a("Lskip3l:\ns_barrier")
        if self.o["dl"]: self.prefetch(28)
        for u in range(NW): self.w2_dma(u)
        if W2V:
            for u in range(NW, 27): self.w2_reg(u)
        if self.o["pb"] > self.o["pf"] and not self.o["dl"]: self.prefetch(28)
        a("Lp4l:")
        self.vreset()

    def p4w(self, u):
        M = [9, 10, 11, 0, 1, 2, 3, 4, 5, 12, 13, 6, 7, 8] if self.NW == 14 else [9, 10, 11, 0, 1, 2, 3, 4, 5, 6, 7, 8]
        return M[u % self.NW] * 8192
    def p4g(self, s): return LDS - self.GN*12288 + (s % self.GN)*12288
    def p4_w_setup(self):
        a = self.a
        self.w64_addr(17, 8)
        a("s_and_b32 s3, s23, 1\ns_lshl_b32 s3, s3, 4\ns_lshr_b32 s61, s23, 1\ns_lshl_b32 s61, s61, 2\ns_add_u32 s3, s3, s61\ns_mul_i32 s3, s3, 1280")
        a(f"s_cmp_ge_u32 s57, 30\ns_cselect_b32 s3, {OOB}, s3\nv_add_u32 v17, s3, v17")
        if self.o["rot4"] == 2:
            a("s_sub_u32 s3, s67, 5\ns_cmp_ge_u32 s67, 5\ns_cselect_b32 s82, s3, s67")
        elif self.o["rot4"] == 3:
            a("s_mul_i32 s82, s67, 27*205\ns_lshr_b32 s82, s82, 11")
        elif self.o["rot4"]:
            a("s_mul_i32 s82, s67, 27*205\ns_lshr_b32 s82, s82, 11\ns_mul_i32 s3, s66, 9\ns_add_u32 s82, s82, s3")
            a("s_sub_u32 s3, s82, 27\ns_cmp_ge_u32 s82, 27\ns_cselect_b32 s82, s3, s82")
        else: a("s_mov_b32 s82, 0")
        a(f"s_mul_i32 s83, s82, {64*1280}")
    def p4c(self):
        a = self.a
        self.c24_addr(); self.c24_rowaddr()
        H = self.HREG
        self.c24_addr_rm(16)
        ACC = 100
        self.c24_init(ACC, H)
        self.c24_loop(27, self.p4w, self.p4g, ACC, 12)
        self.c24_sum(ACC, H, 40, 20, lambda t: a(f"buffer_store_dwordx4 v[{40+4*t}:{43+4*t}], v{16+t}, {srd(SOUT)}, 0 offen" + ["", " sc1", " nt", " sc0 sc1"][self.o["osc"]]))
        self.fin()
    def p4l(self):
        a = self.a
        a(f"s_mul_i32 s75, s82, {8*CS}")
        a("s_cmp_eq_u32 s66, 2\ns_cselect_b32 s61, 14, 0")
        a("s_cmp_eq_u32 s66, 1\ns_cselect_b32 s60, 28, 14")
        if self.o["pt"] & 2048:
            a("v_and_b32 v8, 15, v1\nv_lshlrev_b32 v10, 3, v8\nv_cmp_gt_u32 vcc, s69, v10\nv_lshlrev_b32 v8, 7, v8\nv_bfe_u32 v10, v1, 4, 1\nv_lshl_add_u32 v8, v10, 12, v8")
            a(f"v_lshrrev_b32 v10, 5, v1\nv_mul_u32_u24 v10, {80*CS}, v10\nv_add_u32 v8, v8, v10")
            a(f"s_add_u32 s3, s67, 10\ns_lshl_b32 s3, s3, 2\ns_add_u32 s3, s3, s23\ns_lshl_b32 s3, s3, 13\ns_lshl_b32 s62, s63, 4\ns_add_u32 s3, s3, s62\nv_add_u32 v8, s3, v8")
            a(f"s_cmp_lt_u32 s67, 7\ns_cselect_b32 vcc_hi, vcc_hi, 0\nv_mov_b32 v10, {OOB}\nv_cndmask_b32 v8, v10, v8, vcc")
        self.ts(27)
        self.wait_flags(2, False)
        self.ts(12)
        GN = self.GN; NW = self.NW
        gis = lambda s: self.panel96_issue(11, G_BASE, 27, self.p4g(s), ("g", s))
        G0 = min(self.o["g0"], GN)
        for s in range(G0): gis(s)
        ng = G0; nw = NW
        def gt():
            a(f"buffer_load_dword v10, v8, {srd(SWS)}, 0 offen sc1"); self.vissue("gt")
        if self.o["pt"] & 2048 and self.o["gtp"] < 0: gt()
        self.ts(28)
        self.vwait([("g", 0)])
        self.ts(29)
        for s in range(27):
            self.bar()
            if self.o["w2v"]:
                nw = 27
                if 2 <= s <= 16: self.w2_flush(s + 10)
            for _ in range(self.o["per"]):
                if ng <= min(26, max(s - 2, -1) + GN): gis(ng); ng += 1
            if self.o["pt"] & 2048 and self.o["gtp"] == s: gt()
            if self.o["w2v"] and 2 <= s <= 16: a("s_waitcnt lgkmcnt(0)")
            if nw <= min(26, s - 2 + NW) and s >= self.o["ws0"] and (s - self.o["ws0"]) % 2 < self.o["wper"]: self.w2_dma(nw); nw += 1
            while nw <= min(26, s + 4): self.w2_dma(nw); nw += 1
            if s + 1 <= 26: self.vwait([("g", s + 1), ("w2", s + 1)])
        self.bar()
        self.fin()

    def build(self):
        a = self.a
        self.prologue()
        if self.o["cp"]: self.code_pf(2, 96)
        if self.o["iw"]:
            a("s_cmp_ge_u32 s22, 4\ns_cbranch_scc1 Lload")
            for w in range(3): a(f"s_cmp_eq_u32 s22, {w}\ns_cbranch_scc1 Lwarm{w}")
            a("s_branch Lwarm3\nLload:")
        else: a("s_cmp_ge_u32 s22, 4\ns_cbranch_scc0 Lcomp")
        if self.o["lprio"]: a(f"s_setprio {self.o['lprio']}")
        self.p1l(); self.p2l(); self.p3l(); self.p4l()
        a("Lcomp:")
        if self.o["prio"]: a(f"s_setprio {self.o['prio']}")
        self.tprev = None; self.tn = 0
        self.p1c(); self.p2c(); self.p3c(); self.p4c()
        self.csum()
        for x in self.ool: a(x)
        a("Lend:\ns_endpgm")
    def text(self):
        L, n = hazard.fix(self.L)
        nm = self.name
        if self.o["iw"]: L = self.stubs(L)
        return "\n".join([f".globl {nm}"] + ([".p2align 12"] if self.o["iw"] else []) + [".p2align 8", f".type {nm},@function", f"{nm}:"] + L) + "\n"
    def stubs(self, L):
        import subprocess, re
        src = '.amdgcn_target "amdgcn-amd-amdhsa--gfx950"\n.text\n.p2align 12\n' + self.name + ':\n' + "\n".join(L) + "\n" + "".join(f"Lwarm{w}:\n" for w in range(4)) + "s_endpgm\n"
        open("st.s", "w").write(src)
        subprocess.run(["clang", "-x", "assembler", "-target", "amdgcn-amd-amdhsa", "-mcpu=gfx950", "-c", "st.s", "-o", "st.o"], check=True)
        d = subprocess.run(["llvm-objdump", "-d", "st.o"], capture_output=True, text=True).stdout
        ad = [int(m.group(1), 16) for m in re.finditer(r"// ([0-9A-F]{12}):", d)]
        idx = [i for i, l in enumerate(L) if not l.endswith(":")]
        assert len(ad) == len(idx) + 1, (len(ad), len(idx))
        B = self.o["iw"]; pos = []; nxt = B; sh = 0
        for k, i in enumerate(idx):
            if ad[k] + sh + 4 >= nxt:
                pos.append(i); sh += 8; nxt += B
        lc = L.index("Lcomp:")
        n = len(pos); c = [j for j in range(n) if pos[j] > lc]; l = [j for j in range(n) if pos[j] <= lc]
        if self.o["iwo"] == 0:
            order = []
            l2 = l[:-1]; c = l[-1:] + c
            while c or l2:
                if c: order.append(c.pop(0))
                if l2: order.append(l2.pop(0))
        else: order = list(range(n))
        ch = [order[w::4] for w in range(4)]
        tgt = {}; first = {}
        for w in range(4):
            first[ch[w][0]] = w
            for q, j in enumerate(ch[w]): tgt[j] = f"Lst{ch[w][q+1]}" if q + 1 < len(ch[w]) else "Lcomp"
        out = []; pm = {i: j for j, i in enumerate(pos)}
        for i, ln in enumerate(L):
            if i in pm:
                j = pm[i]
                out.append(f"    s_branch Lsk{j}")
                if j in first: out.append(f"Lwarm{first[j]}:")
                out += [f"Lst{j}:", f"    s_branch {tgt[j]}", f"Lsk{j}:"]
            out.append(ln)
        print("stubs", n, ch)
        return out
    def desc(self):
        return "\n".join([".p2align 6", f".amdhsa_kernel {self.name}",
            "  .amdhsa_next_free_vgpr 256", "  .amdhsa_next_free_sgpr 102", "  .amdhsa_accum_offset 256",
            "  .amdhsa_group_segment_fixed_size 0", "  .amdhsa_kernarg_size 72", "  .amdhsa_user_sgpr_count 2",
            "  .amdhsa_user_sgpr_kernarg_segment_ptr 1", "  .amdhsa_system_sgpr_workgroup_id_x 1",
            "  .amdhsa_float_denorm_mode_32 3",
            ".end_amdhsa_kernel"]) + "\n"

def header():
    ref = open(f"cdna_kernels/{NAME}.s.ref").read().split("\n")
    return [l for l in ref if l.startswith(";") and "@launch" not in l]
def build(dbg=False, opt=None):
    g = G(NAME + "_kernel", dbg, opt); g.build()
    out = header()
    out.append(f"; @launch grid=(256,1,1) block=(512,1,1) lds={LDS}")
    out += ['.amdgcn_target "amdgcn-amd-amdhsa--gfx950"', ".text", g.text(), '.section .rodata,"a"', g.desc()]
    return "\n".join(out)
if __name__ == "__main__":
    path = sys.argv[1]; dbg = False; opt = {}
    for x in sys.argv[2:]:
        if x == "dbg": dbg = True
        else:
            k, v = x.split("="); assert k in OPT, k; opt[k] = int(v, 0)
    txt = build(dbg, opt)
    open(path, "w").write(txt)
    import subprocess
    r = subprocess.run(["clang", "-x", "assembler", "-target", "amdgcn-amd-amdhsa", "-mcpu=gfx950", "-c", path, "-o", "chk.o"], capture_output=True, text=True)
    print(r.stderr[:3000] if r.returncode else "assembled ok", len(txt))
```

```python
import sys
sys.path.insert(0, "dev")
import hazard

NAME = "sequential_preLN__sliding_local_dilated__dense_activation_silu__prompt"
S, D, F = 2048, 640, 1728
CS = 256 * 16
GS = 0x200000
O_BASE = 0
G_BASE = 0
H_BASE = 224 * CS
ST_BASE = 304 * CS
FL_BASE = 0x190000
TS_BASE = 0x1400000
WS_SIZE = 0x1800000
TS2 = 0x1500000
OOB = 0x80000000
LDS = 163840
SX, SWQ, SWO, SW1, SW2, SOUT, SDBG, SWS, SWG = 24, 28, 32, 36, 40, 44, 48, 52, 92
def srd(n): return f"s[{n}:{n+3}]"
A16 = lambda k: 16384 * k

CSUM = 0x194000
OPT = dict(la1=3, rot1=3, rot2=1, rot3=1, rot4=0, fast=1, nA=8, nB=8, nC=2, c0=4, wo0=17, prio=0, lprio=0, ldsc=1, pen=0, osc=1, amp=-1, ampw=37, wb=0, tlb=0, nv=6, w2e=1, h0=2, g0=4, o0=3, per=2, gn=5, ws0=2, wper=2, hfl=0, pt=3073, gts=6, sfs=3, ots=11, gc=64, gtu=-1, i0=2, la2=3, lasw=99, w2v=0, hts=19, pf=6, pb=14, g3u=-1, pth=0, pe=24, tw=3, tst=7, gtp=-1, w7=3, w8=2, w9=0, cs0=1, cs1=6, hs8=2, hs9=3, iw=0, iwo=0, cp=2, sfc=2, srs=8, sta=0, cp2=-1, cp3=0, npk=1, ccs=12, ccc=16, op=0, wp0=-1, wp1=-1, wa=64, nE=0, eo=0, ep3=1, epn=4, ri=1, r3o=1, ts2=8, dl=1, scw=0, sfu=12, scu=21, sru=31, r1d=4, r1a=0, r1b=0, r1t=0x76343410, r1e=5, r1g=0x87653210, r3g=0, pg=0, wor=0, w1r=0, wol=0)

class G:
    NL = 0
    def __init__(self, name, dbg=False, opt=None):
        self.name = name; self.L = []; self.dbg = dbg
        self.o = dict(OPT); self.o.update(opt or {})
        self.GN = self.o["gn"]; self.NW = 14 if self.GN == 4 else 12
        self.vm = []; self.tprev = None; self.tn = 0; self.ool = []
    def a(self, s):
        for line in s.split("\n"):
            line = line.strip()
            if line: self.L.append(line if line.endswith(":") else "    " + line)
    def lab(self, b="L"):
        G.NL += 1; return f"{b}_{G.NL}"
    def vissue(self, tag): self.vm.append(tag)
    def vwait(self, tags):
        if not isinstance(tags, (list, set)): tags = [tags]
        last = -1
        for i, t in enumerate(self.vm):
            if t in tags: last = i
        if last < 0: return
        n = len(self.vm) - 1 - last
        assert n <= 63, n
        self.a(f"s_waitcnt vmcnt({n})")
        self.vm = self.vm[last + 1:]
    def vreset(self): self.vm = []
    def tc(self, i):
        if self.dbg: self.a(f"s_memtime s[80:81]\ns_waitcnt lgkmcnt(0)\nv_writelane_b32 v255, s80, {i}")
    def ts(self, i):
        if self.dbg: self.a(f"s_memrealtime s[80:81]\ns_waitcnt lgkmcnt(0)\nv_writelane_b32 v255, s80, {i}")
    def bar(self):
        if self.dbg:
            if self.tprev is not None: self.a(f"v_writelane_b32 v{253 + self.tprev // 64}, s84, {self.tprev % 64}")
            self.a("s_memtime s[84:85]")
            self.tprev = self.tn; self.tn += 1
        self.a("s_barrier")
    def prologue(self):
        a = self.a
        a("s_load_dwordx16 s[4:19], s[0:1], 0")
        a("s_load_dwordx2 s[20:21], s[0:1], 64")
        a("s_cmp_ge_u32 s2, 256")
        a("s_cbranch_scc1 Lend")
        a("v_and_b32 v1, 63, v0")
        a("v_lshrrev_b32 v2, 6, v0")
        a("v_readfirstlane_b32 s22, v2")
        a("s_and_b32 s56, s2, 7")
        a("s_lshr_b32 s57, s2, 3")
        a("s_and_b32 s23, s22, 3")
        a("s_and_b32 s58, s57, 7\ns_lshl_b32 s59, s56, 2\ns_lshr_b32 s3, s57, 3\ns_add_u32 s59, s59, s3")
        if self.dbg: a("v_mov_b32 v255, 0\nv_mov_b32 v254, 0\nv_mov_b32 v253, 0")
        self.ts(0); self.tc(16)
    def srds(self, which):
        self.a("s_waitcnt lgkmcnt(0)")
        T = {SX: (4, S*D*2), SWQ: (6, D*3*D*2), SWO: (8, D*D*2), SW1: (12, D*F*2), SW2: (14, F*D*2),
             SOUT: (16, S*D*2), SDBG: (18, 256), SWG: (20, WS_SIZE)}
        for d in which:
            if d == SWS:
                self.a(f"s_lshl_b32 s3, s56, 21\ns_add_u32 s{d}, s20, s3\ns_addc_u32 s{d+1}, s21, 0\ns_mov_b32 s{d+2}, {GS}\ns_mov_b32 s{d+3}, 0x00020000")
                continue
            b, n = T[d]
            self.a(f"s_mov_b32 s{d}, s{b}\ns_mov_b32 s{d+1}, s{b+1}\ns_mov_b32 s{d+2}, {n}\ns_mov_b32 s{d+3}, 0x00020000")
    def fin(self):
        if self.dbg:
            self.a("s_waitcnt vmcnt(0)")
            self.ts(15); self.tc(17)
            if self.o["amp"] >= 0:
                x, y = divmod(self.o["amp"], 100)
                L1 = self.lab("amp"); L2 = self.lab("ampl")
                self.a(f"s_cmp_lg_u32 s2, {self.o['ampw']}\ns_cbranch_scc1 {L1}\ns_cmp_lg_u32 s22, 0\ns_cbranch_scc1 {L1}")
                self.a(f"v_readlane_b32 s60, v255, {x}\nv_readlane_b32 s61, v255, {y}\ns_sub_u32 s60, s61, s60\ns_min_u32 s60, s60, 8000\ns_lshl_b32 s60, s60, 3\nv_readlane_b32 s61, v255, 15\ns_add_u32 s60, s60, s61")
                self.a(f"s_mov_b32 s62, 0x100000\n{L2}:\ns_memrealtime s[80:81]\ns_waitcnt lgkmcnt(0)\ns_sub_u32 s62, s62, 1\ns_cbranch_scc1 {L1}\ns_sub_u32 s61, s80, s60\ns_cmp_lt_i32 s61, 0\ns_cbranch_scc1 {L2}\n{L1}:")
            self.srds([SWG])
            self.a(f"s_lshl_b32 s80, s2, 3\ns_add_u32 s80, s80, s22\ns_lshl_b32 s80, s80, 7\ns_add_u32 s80, s80, {TS_BASE}")
            self.a(f"v_writelane_b32 v{253 + self.tprev // 64}, s84, {self.tprev % 64}")
            self.a(f"v_lshlrev_b32 v2, 2, v1\ns_lshl_b32 s84, s2, 3\ns_add_u32 s84, s84, s22\ns_lshl_b32 s84, s84, 9\ns_add_u32 s84, s84, {TS2}")
            self.a(f"buffer_store_dword v253, v2, {srd(SWG)}, s84 offen\nbuffer_store_dword v254, v2, {srd(SWG)}, s84 offen offset:256")
            self.a(f"v_lshlrev_b32 v2, 2, v1\ns_mov_b32 exec_hi, 0\nbuffer_store_dword v255, v2, {srd(SWG)}, s80 offen")
        self.a("s_endpgm")

    FS = 64
    def flag_clear(self):
        a = self.a
        Lk = self.lab("fc")
        a("s_getreg_b32 s3, hwreg(HW_REG_XCC_ID, 0, 4)\ns_mul_i32 s88, s3, s3\ns_lshl_b32 s88, s88, 10\ns_add_u32 s88, s88, s3\ns_add_u32 s88, s88, 0x800000")
        a(f"s_cmp_lg_u32 s22, 0\ns_cbranch_scc1 {Lk}")
        a(f"v_lshrrev_b32 v2, 3, v1\nv_lshlrev_b32 v2, 11, v2\nv_and_b32 v3, 7, v1\nv_lshl_add_u32 v2, v3, 2, v2")
        a(f"v_mov_b32 v3, 0\ns_mul_i32 s61, s57, {self.FS}\ns_add_u32 s61, s61, {FL_BASE}")
        a(f"s_mov_b32 exec_hi, 0xffff\nbuffer_store_dword v3, v2, {srd(SWS)}, s61 offen sc1\ns_mov_b64 exec, -1")
        a("s_lshl_b32 s61, s56, 5\nv_mov_b32 v3, s88")
        a("s_waitcnt vmcnt(0)")
        a(f"s_mov_b64 exec, 1\nbuffer_atomic_add v3, off, {srd(SDBG)}, s61\ns_mov_b64 exec, -1")
        a(f"{Lk}:")
    def count_check(self):
        a = self.a
        Lk = self.lab("cp"); Lp = self.lab("cpl")
        a("s_mov_b64 exec, 255\ns_mov_b32 s60, 0x100000\ns_mov_b32 s61, 0x10000000")
        a(f"{Lp}:")
        a(f"s_waitcnt vmcnt(0)\nv_cmp_gt_u32 vcc, s61, v205\ns_cbranch_vccz {Lk}")
        a(f"buffer_load_dword v205, v204, {srd(SDBG)}, 0 offen sc1")
        a(f"s_sub_u32 s60, s60, 1\ns_cbranch_scc0 {Lp}")
        a(f"{Lk}:")
        a("s_mov_b64 exec, -1")
        a("s_waitcnt vmcnt(0)\nv_readlane_b32 s3, v205, s56\ns_lshl_b32 s88, s88, 5\ns_cmp_eq_u32 s3, s88\ns_cselect_b64 s[86:87], -1, 0")
        if not self.o["fast"]: a("s_mov_b64 s[86:87], 0")
        if self.o["pen"]:
            Lz = self.lab("pen")
            a(f"s_cmp_lg_u32 s86, 0\ns_cbranch_scc1 {Lz}")
            for _ in range(6): a("s_sleep 127")
            a(f"{Lz}:")
    def hst(self, txt, local=True):
        if not local:
            self.a(txt + " sc1"); return
        L1 = self.lab("slow"); L2 = self.lab("back")
        self.a(f"s_cbranch_vccz {L1}\n{txt}{['', ' nt', ' sc0', ' sc0 nt'][self.o['hfl']]}\n{L2}:")
        self.ool.append(f"{L1}:\ns_nop 7\n{txt} sc1\ns_branch {L2}")
    def signal(self, ph, wreg, local=True):
        a = self.a
        a(f"s_mul_i32 s61, s57, {self.FS}\ns_lshl_b32 s3, {wreg}, 2\ns_add_u32 s61, s61, s3\ns_add_u32 s61, s61, {FL_BASE + ph*64*self.FS}\nv_mov_b32 v3, 1")
        a("s_waitcnt vmcnt(0)")
        a("s_mov_b64 exec, 1")
        self.hst(f"buffer_store_dword v3, off, {srd(SWS)}, s61", local)
        a("s_mov_b64 exec, -1")
    def wait_flags(self, ph, two, extra=None):
        a = self.a
        a(f"s_mul_i32 s61, s61, {self.FS}\ns_add_u32 s61, s61, {FL_BASE + ph*64*self.FS}")
        Lp = self.lab("poll"); Lq = self.lab("pollx")
        if two: a(f"v_lshrrev_b32 v2, 1, v1\nv_mul_u32_u24 v2, {self.FS}, v2\nv_and_b32 v3, 1, v1\nv_lshl_add_u32 v2, v3, 4, v2")
        else: a(f"v_mul_u32_u24 v2, {self.FS}, v1")
        if extra: a(extra)
        a("s_bfm_b64 exec, s60, 0\ns_mov_b32 s60, 0x100000")
        a(f"{Lp}:")
        a(f"buffer_load_dwordx4 v[4:7], v2, {srd(SWS)}, s61 offen sc1")
        a(f"s_sub_u32 s60, s60, 1\ns_cbranch_scc1 {Lq}")
        a("s_waitcnt vmcnt(0)")
        a("v_and_b32 v4, v4, v5\nv_and_b32 v6, v6, v7\nv_and_b32 v4, v4, v6")
        a(f"v_cmp_ne_u32 vcc, 1, v4\ns_cbranch_vccnz {Lp}")
        a(f"{Lq}:")
        a("s_waitcnt vmcnt(0)\ns_mov_b64 exec, -1")
        self.vreset()
    def adv(self, sreg, stride, n):
        self.a(f"s_add_u32 s{sreg}, s{sreg}, {stride}\ns_cmp_eq_u32 s{sreg}, {stride*n}\ns_cselect_b32 s{sreg}, 0, s{sreg}")
    def mk3(self, r):
        self.a(f"v_add_u32 v{r+1}, 0x10000, v{r}\nv_add_u32 v{r+2}, 0x20000, v{r}")
    def ad(self, r, off):
        return f"v{r + (off >> 16)} offset:{off & 0xffff}"

    P1_SLOT = 40960; P1_W = 10240; P1_WS = 15360; P1_ST = 0; P1_QKV = 1024; P1_QS = 488
    def p1x(self, s): return (s % 4) * self.P1_SLOT
    def p1w(self, u): return ((u // 2) % 4) * self.P1_SLOT + self.P1_W + (u % 2) * self.P1_WS
    def p1c(self):
        a = self.a
        KK = 220; MC = 240; MP = 244; MP1 = 248; PM = 92; STT = 180
        self.warm()
        a(f"v_lshrrev_b32 v2, 3, v1\nv_and_b32 v2, 3, v2\nv_mul_u32_u24 v2, {self.P1_SLOT}, v2\nv_and_b32 v3, 7, v1\nv_lshl_add_u32 v2, v3, 4, v2")
        for r in range(4): a(f"v_mov_b32 v{20+r}, 0x3f803f80")
        a("ds_write_b128 v2, v[20:23]")
        self.srds([SWS, SDBG, SX, SWO, SW1, SW2, SOUT])
        self.flag_clear()
        if self.o["tlb"]:
            Lt = self.lab("tlb")
            a(f"s_cmp_lg_u32 s22, 2\ns_cbranch_scc1 {Lt}\nv_lshlrev_b32 v2, 16, v1")
            if self.o["tlb"] & 64:
                a("s_lshl_b32 s3, s57, 16\nv_lshl_add_u32 v2, v1, 21, s3\ns_mov_b64 exec, 3")
                a(f"s_mul_i32 s60, s56, {256*1280}\ns_sub_u32 s61, s57, 26\ns_lshl_b32 s61, s61, 16\ns_add_u32 s60, s60, s61\ns_cmp_ge_u32 s57, 26\ns_cselect_b32 s60, s60, {OOB}\nv_mov_b32 v3, s60")
                a(f"s_sub_u32 s61, s57, 13\ns_lshl_b32 s61, s61, 16\nv_mov_b32 v4, s61")
            for b, r in ((1, SWO), (2, SWS), (4, SW1), (8, SW2), (16, SOUT), (32, SDBG)):
                if self.o["tlb"] & b: a(f"buffer_load_dword v96, v{({16: 3, 1: 4}.get(b, 2) if self.o['tlb'] & 64 else 2)}, {srd(r)}, 0 offen")
            a("s_mov_b64 exec, -1")
            a(f"{Lt}:")
        a("v_lshrrev_b32 v10, 2, v1\nv_mul_u32_u24 v10, 480, v10\ns_mul_i32 s3, s23, 40\nv_add_u32 v10, s3, v10\nv_and_b32 v3, 3, v1")
        a("v_add_u32 v13, 1, v3\nv_mul_u32_u24 v13, 160, v13\nv_cmp_gt_u32 vcc, 2, v3\nv_cndmask_b32 v13, 0, v13, vcc\nv_add3_u32 v13, v13, v10, 32")
        a("v_lshl_add_u32 v10, v3, 3, v10")
        a("v_and_b32 v3, 15, v1\nv_lshrrev_b32 v2, 1, v3\nv_lshrrev_b32 v4, 4, v1\nv_xor_b32 v4, v4, v2\nv_lshlrev_b32 v4, 4, v4\nv_lshl_add_u32 v4, v3, 7, v4")
        if self.o["rot1"] == 3: a("s_and_b32 s3, s57, 8\ns_lshl_b32 s3, s3, 3\nv_xor_b32 v4, s3, v4")
        a("v_xor_b32 v7, 64, v4")
        self.mk3(4); self.mk3(7); self.mk3(10); self.mk3(13)
        a("v_lshrrev_b32 v2, 4, v1\nv_mov_b32 v20, 0xf149f2ca\nv_and_b32 v21, 1, v3")
        for r in range(4):
            a(f"v_lshl_add_u32 v22, v2, 2, {r}\nv_cmp_le_u32 vcc, v22, v3\nv_cndmask_b32 v{MC+r}, v20, 0, vcc\nv_cndmask_b32 v{MP+r}, 0, v20, vcc")
            a(f"v_cmp_eq_u32 vcc, {r & 1}, v21\nv_cndmask_b32 v{MC+r}, v20, v{MC+r}, vcc\nv_cndmask_b32 v{MP+r}, v20, v{MP+r}, vcc")
        a("s_cmp_eq_u32 s59, 0\ns_cselect_b64 vcc, -1, 0")
        for r in range(4): a(f"v_cndmask_b32 v{MP1+r}, v{MP+r}, v20, vcc")
        a("v_lshlrev_b32 v23, 4, v21\nv_mov_b32 v24, 0xffff\nv_lshlrev_b32 v23, v23, v24")
        for i in range(2):
            a(f"v_lshl_add_u32 v22, v2, 2, {2*i}\nv_add_u32 v22, v22, v21\nv_cmp_le_u32 vcc, v22, v3")
            a(f"v_cndmask_b32 v{PM+2+i}, 0, v23, vcc\nv_cndmask_b32 v{PM+i}, v23, 0, vcc")
        for t in range(5): a(f"v_mov_b32 v{KK+4*t+2}, 0\nv_mov_b32 v{KK+4*t+3}, 0")
        a(f"s_mul_i32 s3, s23, 2560\ns_add_u32 s3, s3, {self.P1_QKV}")
        a("v_lshl_add_u32 v17, v3, 5, s3\nv_lshl_add_u32 v16, v2, 3, v17")
        a("v_cmp_eq_u32 vcc, 0, v2\nv_cndmask_b32 v22, 24, 16, vcc\nv_add_u32 v17, v17, v22")
        a("v_lshrrev_b32 v18, 2, v1\nv_lshl_add_u32 v18, v18, 5, s3\nv_add_u32 v18, 8, v18")
        a("s_and_b32 s3, s59, 3\ns_lshl_b32 s3, s3, 10")
        a(f"v_lshrrev_b32 v22, 1, v2\nv_lshlrev_b32 v19, 12, v22\nv_and_b32 v22, 1, v2\nv_lshl_add_u32 v19, v22, 3, v19\nv_lshl_add_u32 v19, v3, 4, v19\nv_add_u32 v19, s3, v19")
        a("v_lshl_add_u32 v98, v1, 4, s3")
        a("v_lshlrev_b32 v99, 2, v3\nv_lshlrev_b32 v252, 4, v2")
        a(f"s_mul_i32 s60, s58, 10\ns_lshl_b32 s3, s23, 1\ns_add_u32 s89, s60, s3\ns_lshl_b32 s89, s89, 12")
        a(f"s_lshr_b32 s3, s23, 1\ns_add_u32 s90, s60, s3\ns_add_u32 s90, s90, 8\ns_lshl_b32 s90, s90, 12")
        if self.o["pt"] & 1:
            a("v_and_b32 v22, 7, v1\nv_lshlrev_b32 v22, 7, v22\nv_bfe_u32 v23, v1, 3, 1\nv_lshl_add_u32 v22, v23, 12, v22\ns_and_b32 s3, s59, 3\ns_lshl_b32 s3, s3, 10\nv_add_u32 v22, s3, v22")
            a("v_mov_b32 v97, v22")
        a(f"s_and_b32 s3, s23, 1\ns_lshl_b32 s3, s3, 3\ns_add_u32 s90, s90, s3")
        if self.o["op"]:
            a("v_lshrrev_b32 v22, 3, v1\nv_lshlrev_b32 v22, 12, v22\nv_and_b32 v23, 7, v1\nv_lshl_add_u32 v22, v23, 7, v22")
            a("s_lshr_b32 s3, s58, 1\ns_lshl_b32 s3, s3, 2\ns_add_u32 s3, s3, s23\ns_mul_i32 s3, s3, 20480\ns_and_b32 s60, s59, 3\ns_lshl_b32 s60, s60, 10\ns_add_u32 s3, s3, s60")
            a("v_add_u32 v97, s3, v22")
            a("s_lshr_b32 s3, s58, 1\ns_lshl_b32 s3, s3, 2\ns_and_b32 s60, s59, 3\ns_add_u32 s3, s3, s60\ns_lshl_b32 s3, s3, 2\ns_add_u32 s3, s3, s23")
            wa = self.o["wa"]
            a(f"s_add_u32 s60, s58, 1\ns_bitcmp1_b32 s60, 1\ns_cselect_b32 s60, {wa}, {100 - wa}\ns_cselect_b32 s61, 0, {64*wa}\ns_mul_i32 s3, s3, s60\ns_add_u32 s3, s3, s61\ns_lshl_b32 s3, s3, 7")
            a(f"v_lshl_add_u32 v206, v1, 7, s3\nv_mov_b32 v22, {OOB}\nv_cmp_gt_u32 vcc, s60, v1\nv_cndmask_b32 v206, v22, v206, vcc")
        def fast(txt, c=0):
            Lf = self.lab("fast")
            a(f"s_add_u32 s3, s58, 1\ns_bitcmp1_b32 s3, 1\ns_cbranch_scc{c} {Lf}\n{txt}\n{Lf}:")
        def otouch():
            if self.o["op"]: fast(f"s_mov_b32 exec_hi, 0xff\n{self.touch(96, 97, '0')}\ns_mov_b32 exec_hi, -1", self.o["op"] - 1)
            elif self.o["pt"] & 1: a(f"s_mov_b64 exec, 0xffff\n{self.touch(96, 97, 's89')}\ns_mov_b64 exec, 0xff\n{self.touch(96, 97, 's90')}\ns_mov_b64 exec, -1")
        if self.o["ots"] < 0: otouch()
        def gtouch():
            self.p3_ids()
            a(f"s_lshl_b32 s61, s73, 2\ns_add_u32 s61, s61, s23\ns_lshl_b32 s61, s61, 14\ns_lshl_b32 s3, s72, 4\ns_add_u32 s61, s61, s3\ns_add_u32 s61, s61, {G_BASE}")
            a(f"s_cmp_ge_u32 s57, 28\ns_cselect_b32 s61, {OOB}, s61")
            a(f"v_lshrrev_b32 v202, 4, v1\nv_lshlrev_b32 v202, 12, v202\nv_and_b32 v203, 15, v1\nv_lshl_add_u32 v202, v203, 7, v202\nv_add_u32 v202, s61, v202")
            a(f"buffer_load_dword v96, v202, {srd(SWS)}, 0 offen")
        def htouch():
            self.p24_ids()
            a("v_and_b32 v200, 15, v1\nv_lshlrev_b32 v201, 3, v200\nv_cmp_gt_u32 vcc, s69, v201\nv_lshlrev_b32 v200, 7, v200\nv_lshrrev_b32 v201, 4, v1\nv_lshl_add_u32 v200, v201, 12, v200")
            a(f"s_lshl_b32 s61, s67, 2\ns_add_u32 s61, s61, s23\ns_lshl_b32 s61, s61, 13\ns_lshl_b32 s3, s63, 4\ns_add_u32 s61, s61, s3\ns_add_u32 s61, s61, {H_BASE}")
            a(f"s_cmp_lt_u32 s57, 30\ns_cselect_b32 s61, s61, {OOB}\nv_add_u32 v200, s61, v200")
            a(f"s_mov_b32 exec_lo, vcc_lo\ns_mov_b32 exec_hi, 0\nbuffer_load_dword v96, v200, {srd(SWS)}, 0 offen\ns_mov_b64 exec, -1")
        if self.o["pt"] & 512 and self.o["gtu"] < 0: gtouch()
        if self.o["pt"] & 64:
            a("s_and_b32 s3, s59, 3\ns_lshl_b32 s3, s3, 10\ns_add_u32 s60, s89, s3\ns_and_b32 s61, s23, 1\ns_mul_i32 s61, s61, 504\ns_add_u32 s61, s61, s90\ns_add_u32 s61, s61, s3")
            for k in range(16): a(f"s_buffer_load_dword s96, {srd(SWS)}, s60 offset:{(k//8)*4096 + (k%8)*128}")
            for k in range(4): a(f"s_buffer_load_dword s96, {srd(SWS)}, s61 offset:{k*128}")
        ACC = 100; FB = [20, 56]
        a("s_waitcnt lgkmcnt(0)")
        self.ts(1)
        def reads(u):
            fb = FB[u % 2]; r = []
            for t in range(5):
                r.append(f"ds_read_b128 v[{fb+16+4*t}:{fb+19+4*t}], {self.ad(4 + 3*(u % 2), self.p1x(u//2) + 2048*t)}")
            for j in (3, 0, 2, 1):
                for rd in range(2):
                    r.append(f"ds_read_b64_tr_b16 v[{fb+4*j+2*rd}:{fb+4*j+2*rd+1}], {self.ad(13 if j == 3 else 10, self.p1w(u) + [160, 320, 0, 0][j] + 7680*rd)}")
            return r
        def mfmas(u):
            fb = FB[u % 2]; r = []
            for j in (3, 0, 2, 1):
                for t in range(5):
                    c = ACC + (j*5+t)*4
                    cs = "0" if u == 0 else f"v[{c}:{c+3}]"
                    x, y = f"v[{fb+4*j}:{fb+4*j+3}]", f"v[{fb+16+4*t}:{fb+19+4*t}]"
                    if j == 1: x, y = y, x
                    r.append(f"v_mfma_f32_16x16x32_bf16 v[{c}:{c+3}], {x}, {y}, {cs}")
            return r
        for u in range(20):
            self.bar()
            if u == 0: self.ts(2)
            if u == 10: self.ts(3)
            if u == self.o["ots"]: otouch()
            if self.o["pt"] & 1024 and u == self.o["hts"]: htouch()
            if self.o["pt"] & 512 and u == self.o["gtu"]: gtouch()
            if u == self.o["wp0"] == self.o["wp1"]: a(f"buffer_load_dword v96, v206, {srd(SWO)}, 0 offen")
            elif u == self.o["wp0"]: fast(f"buffer_load_dword v96, v206, {srd(SWO)}, 0 offen")
            elif u == self.o["wp1"]: fast(f"buffer_load_dword v96, v206, {srd(SWO)}, 0 offen", 1)
            if u == self.o["cp2"]: self.code_pf(202, 96)
            if u == self.o["ccs"]:
                a(f"v_lshlrev_b32 v204, 5, v1\nbuffer_load_dword v205, v204, {srd(SDBG)}, 0 offen sc1")
            rd = reads(u); mf = mfmas(u-1) if u else []
            for i in range(max(len(rd), len(mf))):
                if i < len(rd): a(rd[i])
                if i < len(mf): a(mf[i])
            if u == self.o["ccc"]: self.count_check()
            a("s_waitcnt lgkmcnt(0)")
        STR = 20; CSR = 32; ONE = 52; QQ = 56; VT = 72; TT = 82
        mf = mfmas(19)
        self.bar()
        self.ts(4)
        rd = [f"ds_read2_b32 v[{STR+2*t}:{STR+2*t+1}], v99 offset0:{16*t} offset1:{80+16*t}" for t in range(5)]
        for t in range(5): rd += [f"ds_read_b128 v[{STT+8*t}:{STT+8*t+3}], v252 offset:{64*t}", f"ds_read_b128 v[{STT+8*t+4}:{STT+8*t+7}], v252 offset:{320+64*t}"]
        for i in range(15): a(rd[i]); a(mf[i])
        def ln(j, ts):
            r = []
            for q in range(4): r.append(f"v_mov_b32_dpp v{CSR+4*j+q}, v{ACC+j*20+q} row_newbcast:0 row_mask:0xf bank_mask:0xf")
            for t in ts:
                c = ACC + (j*5+t)*4
                for p in (0, 2):
                    r.append(f"v_pk_fma_f32 v[{c+p}:{c+p+1}], v[{CSR+4*j+p}:{CSR+4*j+p+1}], v[{STR+2*t}:{STR+2*t+1}], v[{c+p}:{c+p+1}] op_sel:[0,1,0] op_sel_hi:[1,1,1] neg_lo:[0,1,0] neg_hi:[0,1,0]")
            for t in ts:
                c = ACC + (j*5+t)*4
                for p in (0, 2):
                    r.append(f"v_pk_mul_f32 v[{c+p}:{c+p+1}], v[{c+p}:{c+p+1}], v[{STR+2*t}:{STR+2*t+1}] op_sel_hi:[1,0]")
            return r
        def cvt(d, c): a(f"v_cvt_pk_bf16_f32 v{d}, v{c}, v{c+1}\nv_cvt_pk_bf16_f32 v{d+1}, v{c+2}, v{c+3}")
        a("s_waitcnt lgkmcnt(10)")
        x = ln(3, range(5))
        for i, m in enumerate(mf[15:]):
            a(m)
            for y in x[3*i:3*i+3]: a(y)
        for y in x[15:]: a(y)
        a("s_mov_b32 exec_hi, 0xffff")
        for t in range(5): cvt(KK+4*t+2, ACC + (15+t)*4)
        a("s_mov_b32 exec_hi, -1")
        for t in range(5): a(f"ds_write_b64 v16, v[{KK+4*t+2}:{KK+4*t+3}] offset:{512*t}")
        for y in ln(0, range(5)): a(y)
        for t in range(1, 5): a(f"ds_read_b64 v[{QQ+4*t-2}:{QQ+4*t-1}], v17 offset:{512*t}")
        for t in range(5): a(f"ds_read_b64_tr_b16 v[{TT+2*t}:{TT+2*t+1}], v18 offset:{512*t}")
        for t in range(5): cvt(KK+4*t, ACC + t*4)
        for y in ln(2, range(1, 5)): a(y)
        for t in range(1, 5): cvt(QQ+4*t-4, ACC + (10+t)*4)
        a(f"v_mov_b32 v{CSR+4}, v{ACC+20}\nv_mov_b32 v{CSR+5}, v{ACC+20}")
        a("s_waitcnt lgkmcnt(0)")
        self.ts(5)
        SC = lambda t: 100 + 4*(t-1)
        SP = lambda t: 160 + 4*(t-1)
        mf = []
        for t in range(1, 5):
            q = f"v[{QQ+4*t-4}:{QQ+4*t-1}]"; m = MP1 if t == 1 else MP
            mf.append(f"v_mfma_f32_16x16x32_bf16 v[{SC(t)}:{SC(t)+3}], v[{KK+4*t}:{KK+4*t+3}], {q}, v[{MC}:{MC+3}]")
            mf.append(f"v_mfma_f32_16x16x32_bf16 v[{SP(t)}:{SP(t)+3}], v[{KK+4*t-4}:{KK+4*t-1}], {q}, v[{m}:{m+3}]")
        x = [f"v_permlane16_swap_b32 v{CSR+4}, v{CSR+5}", f"v_mov_b32 v{ONE}, 0x3f803f80", f"v_mov_b32 v{CSR+5}, v{CSR+4}", f"v_mov_b32 v{ONE+1}, 0x3f803f80",
             f"v_mov_b32 v{ONE+2}, 0x3f803f80", f"v_permlane32_swap_b32 v{CSR+4}, v{CSR+5}", f"v_mov_b32 v{ONE+3}, 0x3f803f80"]
        for t in range(5):
            c = ACC + (5+t)*4
            for p in (0, 2):
                x.append(f"v_pk_fma_f32 v[{c+p}:{c+p+1}], v[{CSR+4}:{CSR+5}], v[{STT+8*t+4+p}:{STT+8*t+5+p}], v[{c+p}:{c+p+1}] op_sel_hi:[0,1,1] neg_lo:[0,1,0] neg_hi:[0,1,0]")
        for t in range(5):
            c = ACC + (5+t)*4
            for p in (0, 2):
                x.append(f"v_pk_mul_f32 v[{c+p}:{c+p+1}], v[{c+p}:{c+p+1}], v[{STT+8*t+p}:{STT+8*t+p+1}]")
        for i, m in enumerate(mf):
            a(m)
            for y in x[3*i:3*i+3]: a(y)
        for y in x[24:]: a(y)
        for t in range(1, 5):
            for i in range(2):
                e = 20 + 2*(t-1) + i
                a(f"v_max3_f32 v{e}, v{SC(t)+2*i}, v{SC(t)+2*i+1}, v{SP(t)+2*i}\nv_max_f32 v{e}, v{e}, v{SP(t)+2*i+1}")
        for t in range(4): a(f"v_max_f32 v{28+t}, v{20+2*t}, v{21+2*t}")
        V = [(VT+2*t, ACC + (5+t)*4) for t in range(5)]
        SCL = 20 ** -0.5 * 1.4426950408889634
        a(f"s_mov_b32 s3, {SCL!r}")
        cvt(*V[0])
        a("v_permlane32_swap_b32 v28, v29\nv_permlane32_swap_b32 v30, v31\nv_max_f32 v28, v28, v29\nv_max_f32 v30, v30, v31")
        cvt(*V[1])
        a("v_permlane16_swap_b32 v28, v30\nv_max_f32 v28, v28, v30\nv_mul_f32 v28, s3, v28\nv_mov_b32 v30, v28")
        cvt(*V[2])
        a("v_permlane16_swap_b32 v28, v30\nv_mov_b32 v29, v28\nv_mov_b32 v31, v30")
        cvt(*V[3])
        a("v_permlane32_swap_b32 v28, v29\nv_permlane32_swap_b32 v30, v31")
        cvt(*V[4])
        for t in range(4):
            for i in range(2): a(f"v_fma_f32 v{20+2*t+i}, v{20+2*t+i}, s3, -v{28+t}")
        for e in range(8): a(f"v_exp_f32 v{20+e}, v{20+e}")
        PB = 32; OO = 100
        a("s_mov_b64 vcc, s[86:87]")
        def pv(t):
            b = PB + 4*t
            for i in range(2): a(f"v_cvt_pk_bf16_f32 v{20+2*t+i}, v{20+2*t+i}, v{20+2*t+i}")
            for k in range(4): a(f"v_and_b32 v{b+k}, v{20+2*t+k%2}, v{PM+k}")
        def pvm(t):
            b = PB + 4*t; o = OO + 12*t
            a(f"v_mfma_f32_16x16x32_bf16 v[{o+8}:{o+11}], v[{ONE}:{ONE+3}], v[{b}:{b+3}], 0")
            a(f"v_mfma_f32_16x16x32_bf16 v[{o}:{o+3}], v[{VT+2*t}:{VT+2*t+3}], v[{b}:{b+3}], 0")
            a(f"v_mfma_f32_16x16x32_bf16 v[{o+4}:{o+7}], v[{TT+2*t}:{TT+2*t+3}], v[{b}:{b+3}], 0")
        def fin(t):
            o = OO + 12*t
            a(f"v_rcp_f32 v{o+8}, v{o+8}")
            for p in (0, 2, 4, 6): a(f"v_pk_mul_f32 v[{o+p}:{o+p+1}], v[{o+p}:{o+p+1}], v[{o+8}:{o+9}] op_sel_hi:[1,0]")
            cvt(o, o)
            self.hst(f"buffer_store_dwordx2 v[{o}:{o+1}], v19, {srd(SWS)}, s89 offen offset:{256*t}")
            if t == 1: a("s_mov_b32 exec_lo, 0xffff0000")
            if t == 2: a("s_mov_b32 exec_lo, 0")
            if t == 3: a("s_mov_b32 exec_lo, 0\ns_mov_b32 exec_hi, 0xffff0000")
            cvt(150, o+4)
            if t: a("s_mov_b64 exec, -1")
        pv(0); pv(1); pvm(0); pv(2); pvm(1); pv(3); pvm(2); fin(0); pvm(3); fin(1); fin(2); fin(3)
        self.hst(f"buffer_store_dwordx2 v[150:151], v98, {srd(SWS)}, s90 offen")
        self.ts(6)
        self.signal(0, "s23")
        self.ts(18)
        a("s_cmp_ge_u32 s57, 30\ns_cbranch_scc1 Lcsum")
    def warm(self): pass
    def code_pf(self, va, vd):
        a = self.a; L1 = self.lab("cp"); L2 = self.lab("cpx")
        a(f"s_cmp_lg_u32 s22, 1\ns_cbranch_scc1 {L2}\ns_getpc_b64 s[96:97]\n{L1}:\ns_sub_u32 s96, s96, {L1}-{self.name}\ns_subb_u32 s97, s97, 0")
        a(f"s_mov_b32 s98, Lend-{self.name}\ns_mov_b32 s99, 0x00020000")
        if self.o["cp"] == 1: a(f"s_mul_i32 s3, s57, 12\nv_add_u32 v{va}, s3, v1\nv_lshlrev_b32 v{va}, 7, v{va}\ns_mov_b64 exec, 0xfff")
        else: a(f"s_and_b32 s3, s57, 7\ns_mul_i32 s3, s3, 48\nv_add_u32 v{va}, s3, v1\nv_lshlrev_b32 v{va}, 7, v{va}\ns_mov_b32 exec_hi, 0xffff")
        a(f"buffer_load_dword v{vd}, v{va}, s[96:99], 0 offen\ns_mov_b64 exec, -1\n{L2}:")
    def touch(self, dst, addr, soff):
        if self.o["pt"] & 8: return f"buffer_store_dword v1, v{addr}, {srd(SWS)}, {soff} offen"
        return f"buffer_load_dword v{dst}, v{addr}, {srd(SWS)}, {soff} offen"
    def prefetch(self, i0, early=False):
        a = self.a
        E, A, B = self.o["pth"], self.o["pf"], self.o["pb"]
        assert (A - E) % 2 == 0 and (B - A) % 2 == 0
        a(f"s_sub_u32 s60, s57, {i0}\ns_lshl_b32 s60, s60, 2\ns_add_u32 s60, s60, s23\ns_lshl_b32 s60, s60, 13")
        if early: rounds = range(E)
        else:
            rounds = list(range(E, A, 2)) + list(range(B, self.o['pe'], 2)) if i0 == 30 else range(A, B, 2)
            a("s_lshr_b32 s3, s22, 2\ns_lshl_b32 s3, s3, 16\ns_add_u32 s60, s60, s3")
        a("v_lshl_add_u32 v4, v1, 7, s60")
        rounds = list(rounds); n = len(rounds)
        rot = self.o["pg"] and n in (4, 8) and max(rounds) < 32
        if rot:
            tb = sum((rounds[k % n] // 2) << (4 * k) for k in range(8)); assert all(r % 2 == 0 for r in rounds)
            a("s_lshl_b32 s61, s56, 2")
        for k, r in enumerate(rounds):
            if rot:
                a(f"s_lshr_b32 s3, {tb}, s61\ns_and_b32 s3, s3, 15\ns_lshl_b32 s3, s3, 17\ns_add_u32 s61, s61, 4\ns_and_b32 s61, s61, 31")
                a(f"v_add_u32 v6, s3, v4\nbuffer_load_dword v7, v6, {srd(SW2)}, 0 offen")
            else: a(f"v_add_u32 v6, {r << 16}, v4\nbuffer_load_dword v7, v6, {srd(SW2)}, 0 offen")
            a(f"s_waitcnt vmcnt({0 if early else 1})")
        a("s_waitcnt vmcnt(0)")
    def csum_addr(self, r):
        a = self.a
        a("s_sub_u32 s60, s57, 30\ns_lshl_b32 s60, s60, 3\ns_add_u32 s60, s60, s56")
        a(f"v_lshrrev_b32 v2, 4, v1\nv_and_b32 v3, 15, v1\nv_mul_u32_u24 v{r}, 3456, v2\nv_lshl_add_u32 v{r}, v3, 4, v{r}")
        a(f"s_mul_i32 s91, s22, {80*3456}\ns_lshl_b32 s3, s60, 8\ns_add_u32 s91, s91, s3")
        a(f"s_cmp_ge_u32 s60, 14\ns_cselect_b32 s3, {OOB}, 0\nv_or_b32 v{r}, s3, v{r}")
    def csum_ld(self, n, r, emit=True):
        x = f"buffer_load_dwordx4 v[{60+4*n}:{63+4*n}], v{r}, {srd(SW1)}, s91 offen\ns_add_u32 s91, s91, {4*3456}"
        if emit: self.a(x)
        return x
    def csum(self):
        a = self.a
        a("Lcsum:")
        self.csum_addr(4)
        for n in range(20): self.csum_ld(n, 4)
        a("v_mov_b32 v5, 0\nds_write_b32 v5, v5 offset:20480\ns_waitcnt lgkmcnt(0)\ns_barrier")
        a("Lcsum2:")
        a("v_lshrrev_b32 v2, 4, v1\nv_and_b32 v3, 15, v1")
        for e in range(8): a(f"v_mov_b32 v{10+e}, 0")
        a("v_mov_b32 v8, 0x00003f80\nv_mov_b32 v9, 0x3f800000")
        for n in range(20):
            a(f"s_waitcnt vmcnt({19-n})")
            for d in range(4):
                a(f"v_dot2c_f32_bf16 v{10+2*d}, v{60+4*n+d}, v8\nv_dot2c_f32_bf16 v{11+2*d}, v{60+4*n+d}, v9")
        for e in range(4): a(f"v_permlane32_swap_b32 v{10+e}, v{14+e}")
        for e in range(4): a(f"v_add_f32 v{10+e}, v{10+e}, v{14+e}")
        for e in range(2): a(f"v_permlane16_swap_b32 v{10+e}, v{12+e}")
        for e in range(2): a(f"v_add_f32 v{10+e}, v{10+e}, v{12+e}")
        a("v_lshlrev_b32 v3, 5, v3\nv_lshl_add_u32 v3, v2, 3, v3\ns_lshl_b32 s3, s22, 9\nv_add_u32 v3, s3, v3")
        a("ds_write_b64 v3, v[10:11] offset:16384\ns_waitcnt lgkmcnt(0)")
        a("s_cmp_ge_u32 s22, 4\ns_cbranch_scc1 Lcspf")
        a("v_mov_b32 v4, 1\nds_add_u32 v5, v4 offset:20480\ns_waitcnt lgkmcnt(0)")
        a("s_cmp_lg_u32 s22, 0\ns_cbranch_scc1 Lcsx\ns_cmp_ge_u32 s60, 14\ns_cbranch_scc1 Lcsx")
        a("s_mov_b32 s61, 0x100000\nLcsw:\nds_read_b32 v4, v5 offset:20480\ns_waitcnt lgkmcnt(0)\nv_readfirstlane_b32 s3, v4")
        a("s_sub_u32 s61, s61, 1\ns_cbranch_scc1 Lcsv\ns_cmp_lg_u32 s3, 256\ns_cbranch_scc1 Lcsw\nLcsv:")
        a("v_lshlrev_b32 v3, 3, v1")
        for w in range(8): a(f"ds_read_b64 v[{20+2*w}:{21+2*w}], v3 offset:{16384 + 512*w}")
        a("s_waitcnt lgkmcnt(0)")
        for w in range(1, 8): a(f"v_pk_add_f32 v[20:21], v[20:21], v[{20+2*w}:{21+2*w}]")
        self.srds([SWG])
        a(f"s_lshl_b32 s61, s60, 9\ns_add_u32 s61, s61, {CSUM}")
        for g in range(8):
            a(f"buffer_store_dwordx2 v[20:21], v3, {srd(SWG)}, s61 offen sc1\ns_add_u32 s61, s61, {GS}")
        a(f"s_mul_i32 s61, s60, {self.FS}\ns_add_u32 s61, s61, {FL_BASE + (64 + 32)*self.FS}\nv_mov_b32 v4, 1")
        a("v_lshrrev_b32 v3, 2, v1\nv_lshlrev_b32 v3, 21, v3\nv_and_b32 v5, 3, v1\nv_lshl_add_u32 v3, v5, 2, v3")
        a("s_waitcnt vmcnt(0)")
        a(f"s_mov_b32 exec_hi, 0\nbuffer_store_dword v4, v3, {srd(SWG)}, s61 offen sc1\ns_mov_b64 exec, -1")
        a("s_waitcnt vmcnt(0)")
        self.ts(24)
        a("s_branch Lcsx\nLcspf:\ns_barrier")
        if self.o["pf"]: self.prefetch(30, True)
        a("Lcsx:")
        if self.o["pf"]:
            a("s_barrier")
            self.prefetch(30)
            self.ts(25)
        if self.o["wb"]:
            a("s_cmp_lg_u32 s22, 0\ns_cbranch_scc1 Lcsy\ns_cmp_lg_u32 s57, 31\ns_cbranch_scc1 Lcsy")
            if self.o["wb"] & 2:
                a("s_mov_b32 s61, 0\ns_mov_b32 s60, 30")
                self.wait_flags(1, False)
                a("buffer_wbl2 sc1\ns_waitcnt vmcnt(0)")
            a("s_mov_b32 s61, 0\ns_mov_b32 s60, 28")
            self.wait_flags(2, False)
            self.ts(24)
            a("buffer_wbl2 sc1\ns_waitcnt vmcnt(0)")
            self.ts(25)
            a("Lcsy:")
        self.tprev = 20
        self.fin()
    W1R = [152, 168, 184, 200, 216, 232]
    def bg_init(self):
        self.bg = [(s, n) for s in range(self.o["nv"]) for n in range(4)]
    def bg_issue(self, cnt):
        a = self.a
        while cnt > 0 and self.bg:
            s, n = self.bg.pop(0); cnt -= 1
            r = self.W1R[s] + 4*n
            a(f"s_add_u32 s61, s76, {4*n*3456}")
            a(f"buffer_load_dwordx4 v[{r}:{r+3}], v16, {srd(SW1)}, s61 offen")
            if n == 3: self.adv(76, 64*3456, 10)
            if n == 3 and s in (2, 5): self.w1_jump(4 if s == 2 else 3)
            self.vissue(("w1", s))
    def w1_jump(self, k):
        if self.o["w1r"]: self.a(f"s_mul_i32 s3, s72, {k*64*3456//128}\ns_add_u32 s76, s76, s3\ns_sub_u32 s3, s76, {640*3456}\ns_cselect_b32 s76, s76, s3")
    def w1_flush(self, s):
        self.vwait([("w1", s)])
        r = self.W1R[s]
        if self.o["w1r"]:
            if s == 0: self.a("s_mul_i32 s3, s72, 384\nv_add_u32 v15, 49152, v14\nv_subrev_u32 v15, s3, v15\nv_add_u32 v14, s3, v14")
            for n in range(4): self.a(f"ds_write_b128 v{14 + s // 3}, v[{r+4*n}:{r+4*n+3}] offset:{self.p3w(s % 3) + n*1024}")
            return
        for n in range(4): self.a(f"ds_write_b128 v{14 + (self.p3w(s) >> 16)}, v[{r+4*n}:{r+4*n+3}] offset:{(self.p3w(s) & 0xffff) + n*1024}")
    def w1_dma(self, s):
        a = self.a
        for n in range(4):
            a(f"s_add_u32 m0, s64, {self.p3w(s) + n*1024}")
            a(f"s_add_u32 s61, s76, {4*n*3456}")
            a(f"buffer_load_dwordx4 v16, {srd(SW1)}, s61 offen lds")
            self.vissue(("w1", s))
        self.adv(76, 64*3456, 10)
    def w2_dma(self, u):
        a = self.a
        for ks in range(2):
            a(f"s_add_u32 m0, s79, {self.p4w(u) + ks*4096}")
            a(f"s_add_u32 s61, s83, {32*ks*1280}")
            a(f"buffer_load_dwordx4 v17, {srd(SW2)}, s61 offen lds")
            self.vissue(("w2", u))
        self.adv(83, 64*1280, 27)
    def w2r(self, u): return 52 + 8*(u if u < 9 else u - 3)
    def w2_reg(self, u):
        a = self.a
        for ks in range(2):
            r = self.w2r(u) + 4*ks
            a(f"s_add_u32 s61, s83, {32*ks*1280}")
            a(f"buffer_load_dwordx4 v[{r}:{r+3}], v17, {srd(SW2)}, s61 offen")
            self.vissue(("w2", u))
        self.adv(83, 64*1280, 27)
    def w2_flush(self, u):
        for ks in range(2):
            r = self.w2r(u) + 4*ks; o = self.p4w(u) + ks*4096
            self.a(f"ds_write_b128 v{[19, 9][o >> 16]}, v[{r}:{r+3}] offset:{o & 0xffff}")
    def p1l(self):
        a = self.a
        LA = self.o["la1"]
        self.vreset()
        a("s_lshl_b32 s60, s59, 6\ns_sub_u32 s60, s60, 16")
        a("s_mul_i32 s3, s23, 20\nv_lshrrev_b32 v14, 3, v1\nv_add_u32 v14, s3, v14\nv_and_b32 v13, 7, v1")
        for n in range(3):
            a(f"v_add_u32 v2, {8*n}, v14\nv_lshrrev_b32 v3, 1, v2\nv_and_b32 v3, 7, v3\nv_xor_b32 v3, v3, v13")
            a(f"v_add_u32 v2, s60, v2\nv_max_i32 v2, 0, v2\nv_mul_u32_u24 v2, 1280, v2\nv_lshl_add_u32 v{15+n}, v3, 4, v2")
        a("v_cmp_le_u32 vcc, 30, v1\nv_cndmask_b32 v2, 0, 1, vcc")
        a("v_mul_u32_u24 v3, 30, v2\nv_sub_u32 v3, v1, v3")
        a("v_mul_u32_u24 v4, 26, v3\nv_lshrrev_b32 v4, 8, v4")
        a("v_mul_u32_u24 v5, 10, v4\nv_sub_u32 v5, v3, v5")
        a("v_mul_u32_u24 v18, 3840, v2\nv_mul_u32_u24 v4, 1280, v4\nv_add_u32 v18, v18, v4\nv_lshl_add_u32 v18, v5, 4, v18")
        a("s_and_b32 s3, s23, 1\ns_lshl_b32 s3, s3, 4\ns_lshr_b32 s61, s23, 1\ns_lshl_b32 s61, s61, 2\ns_add_u32 s3, s3, s61")
        a("s_mul_i32 s3, s3, 3840\ns_mul_i32 s61, s58, 160\ns_add_u32 s3, s3, s61\nv_add_u32 v18, s3, v18")
        a(f"s_mul_i32 s64, s23, {4*960}\ns_mul_i32 s65, s23, 2560")
        a("s_cmp_eq_u32 s23, 0\ns_cselect_b32 s78, 0xffffff00, -1")
        if self.o["rot1"] == 3:
            if self.o["r1d"] == 1: a("s_and_b32 s3, s57, 3\ns_lshl_b32 s3, s3, 1\ns_bfe_u32 s61, s57, 0x10002\ns_add_u32 s3, s3, s61")
            elif self.o["r1d"] == 0: a("s_mov_b32 s3, 0")
            elif self.o["r1d"] == 2: a("s_bfe_u32 s3, s57, 0x10002\ns_mul_i32 s3, s3, 5")
            elif self.o["r1d"] == 3: a("s_and_b32 s3, s57, 1\ns_mul_i32 s3, s3, 5\ns_bfe_u32 s61, s57, 0x10002\ns_lshl_b32 s61, s61, 1\ns_add_u32 s3, s3, s61")
            else:
                a(f"s_and_b32 s3, s57, 3\ns_bfe_u32 s61, s57, 0x10003\ns_lshl_b32 s61, s61, 2\ns_add_u32 s3, s3, s61\ns_lshl_b32 s3, s3, 2\ns_lshr_b32 s3, {self.o['r1t']}, s3\ns_and_b32 s3, s3, 15")
                a(f"s_bfe_u32 s61, s57, 0x10002\ns_mul_i32 s61, s61, {self.o['r1e']}\ns_add_u32 s3, s3, s61")
                assert self.o["r1a"] == 0
            a(f"s_lshr_b32 s61, s57, 4\ns_mul_i32 s61, s61, {self.o['r1b']}\ns_add_u32 s3, s3, s61\ns_bfe_u32 s62, s57, 0x10003\ns_mul_i32 s61, s62, {self.o['r1a']}\ns_add_u32 s3, s3, s61")
            a("s_sub_u32 s61, s3, 10\ns_cmp_ge_u32 s3, 10\ns_cselect_b32 s3, s61, s3")
            if self.o["r1g"]:
                a(f"s_lshl_b32 s61, s56, 2\ns_lshr_b32 s61, {self.o['r1g']}, s61\ns_and_b32 s61, s61, 15\ns_add_u32 s3, s3, s61")
                a("s_sub_u32 s61, s3, 10\ns_cmp_ge_u32 s3, 10\ns_cselect_b32 s3, s61, s3")
            a(f"s_lshl_b32 s75, s3, 7\ns_lshl_b32 s3, s3, 1\ns_add_u32 s3, s3, s62\ns_mul_i32 s76, s3, {32*3840}")
            a(f"s_cmp_eq_u32 s62, 0\ns_cselect_b32 s96, 1, -1\ns_mul_i32 s96, s96, 128\ns_cselect_b32 s97, 1280, s96\ns_cselect_b32 s98, 0, {9*128}")
            a(f"s_mul_i32 s99, s96, 960\ns_cselect_b32 s100, {20*32*3840}, s99\ns_cselect_b32 s101, 0, {19*32*3840}")
        elif self.o["rot1"]:
            a("s_and_b32 s3, s57, 7\ns_lshr_b32 s61, s57, 3")
            a("s_mul_i32 s3, s3, 5\ns_lshr_b32 s3, s3, 2")
            if self.o["rot1"] == 1:
                a("s_mul_i32 s61, s61, 5\ns_lshr_b32 s61, s61, 1\ns_add_u32 s3, s3, s61")
                a("s_sub_u32 s61, s3, 10\ns_cmp_ge_u32 s3, 10\ns_cselect_b32 s3, s61, s3")
            a(f"s_lshl_b32 s75, s3, 7\ns_mul_i32 s76, s3, {64*3840}")
        else:
            a("s_mov_b32 s75, 0\ns_mov_b32 s76, 0")
        self.srds([SX, SWQ])
        self.ts(1)
        def xiss(s):
            for n in range(3):
                a(f"s_add_u32 m0, s65, {self.p1x(s) + n*1024}")
                if n == 0: a("s_mov_b32 exec_lo, s78")
                if n == 1: a("s_mov_b32 exec_lo, -1")
                if n == 2: a("s_mov_b32 exec_hi, 0")
                a(f"buffer_load_dwordx4 v{15+n}, {srd(SX)}, s75 offen lds")
                self.vissue(("x", s))
            a("s_mov_b32 exec_hi, -1")
            if self.o["rot1"] == 3: a("s_add_u32 s75, s75, s96\ns_cmp_eq_u32 s75, s97\ns_cselect_b32 s75, s98, s75")
            else: self.adv(75, 128, 10)
        def wiss(u):
            a("s_mov_b32 exec_hi, 0x0fffffff")
            for jj in range(4):
                a(f"s_add_u32 m0, s64, {self.p1w(u) + jj*960}")
                a(f"s_add_u32 s61, s76, {[0, 2, 8, 10][jj] * 3840}")
                a(f"buffer_load_dwordx4 v18, {srd(SWQ)}, s61 offen lds")
                self.vissue(("w", u))
            a("s_mov_b32 exec_hi, -1")
            if self.o["rot1"] == 3: a("s_add_u32 s76, s76, s99\ns_cmp_eq_u32 s76, s100\ns_cselect_b32 s76, s101, s76")
            else: self.adv(76, 32*3840, 20)
        def iss(u):
            if u % 2 == 0: xiss(u // 2)
            wiss(u)
        nis = self.o["i0"]
        for u in range(nis):
            iss(u)
            if u == 0: self.ts(2)
        self.ts(3)
        self.srds([SWS, SWO, SW1, SW2])
        for r in range(6): a(f"v_mov_b32 v{20+r}, 0")
        a("v_lshlrev_b32 v26, 4, v1\nv_add_u32 v26, s65, v26\nv_mov_b32 v12, 0x3f803f80")
        self.mk3(26)
        self.p24_ids()
        self.p2_wo_setup()
        self.ts(4)
        if self.dbg: self.vwait([("x", 0)]); self.ts(5)
        self.vwait([("w", 0)])
        self.ts(6)
        nwo = 0
        for u in range(20):
            self.bar()
            if u == 19:
                for m in ("quad_perm:[1,0,3,2]", "quad_perm:[2,3,0,1]", "row_half_mirror"):
                    for r in range(6): a(f"v_add_f32_dpp v{20+r}, v{20+r}, v{20+r} {m} row_mask:0xf bank_mask:0xf")
                for n in range(3):
                    m_, q_ = 33 + 2*n, 21 + 2*n
                    a(f"v_mul_f32 v{m_}, {1.0/640!r}, v{20+2*n}\nv_mul_f32 v{q_}, {1.0/640!r}, v{q_}")
                    a(f"v_fma_f32 v{q_}, -v{m_}, v{m_}, v{q_}\nv_max_f32 v{q_}, 0, v{q_}\nv_add_f32 v{q_}, 1e-5, v{q_}\nv_rsq_f32 v{m_-1}, v{q_}")
                a("v_lshlrev_b32 v2, 2, v14")
            if u == 19:
                a("ds_write2_b32 v2, v32, v33 offset1:80\nds_write2_b32 v2, v34, v35 offset0:8 offset1:88")
                a("s_mov_b32 exec_hi, 0\nds_write2_b32 v2, v36, v37 offset0:16 offset1:96\ns_mov_b32 exec_hi, -1")
            for _ in range(2):
                if nis <= min(19, u + (LA if u < self.o["lasw"] else self.o["la2"])): iss(nis); nis += 1
            if self.o["nE"] and u == 17: self.p3_w_setup(); self.bg_init()
            if self.o["nE"] and u >= 17 and self.o["eo"]: self.bg_issue(self.o["nE"])
            if u >= self.o["wo0"]: self.p2_wo_issue(nwo); nwo += 1
            if self.o["nE"] and u >= 17 and not self.o["eo"]: self.bg_issue(self.o["nE"])
            if u % 2 == 0:
                for n in range(3): a(f"ds_read_b128 v[{32+4*n}:{35+4*n}], {self.ad(26, self.p1x(u//2) + n*1024)}")
                a("s_waitcnt lgkmcnt(0)")
                for d in range(4):
                    for n in range(3):
                        a(f"v_dot2c_f32_bf16 v{20+2*n}, v{32+4*n+d}, v12\nv_dot2c_f32_bf16 v{21+2*n}, v{32+4*n+d}, v{32+4*n+d}")
            if u == 19: a("s_waitcnt lgkmcnt(0)")
            if u + 1 <= 19: self.vwait([("w", u + 1)])
        self.bar()
        if self.o["wol"]: self.p3_w_setup(); self.bg_init(); self.bg_issue(self.o["nA"])
        for k in range(nwo, 5): self.p2_wo_issue(k)
        a("s_cmp_ge_u32 s57, 30\ns_cbranch_scc1 Lcsum2")
        if self.o["pt"] & 2:
            a("v_and_b32 v2, 15, v1\nv_lshlrev_b32 v3, 3, v2\nv_cmp_gt_u32 vcc, s69, v3\nv_lshlrev_b32 v2, 7, v2\nv_lshrrev_b32 v3, 4, v1\nv_lshl_add_u32 v2, v3, 12, v2")
            a(f"v_mov_b32 v3, {OOB}\nv_cndmask_b32 v2, v3, v2, vcc")
            a(f"s_lshl_b32 s61, s67, 2\ns_add_u32 s61, s61, s23\ns_lshl_b32 s61, s61, 13\ns_lshl_b32 s3, s63, 4\ns_add_u32 s61, s61, s3\ns_add_u32 s61, s61, {H_BASE}")
            a(f"s_mov_b32 exec_hi, 0\n{self.touch(60, 2, 's61')}\ns_mov_b32 exec_hi, -1")
            self.vissue("pt")
        if not self.o["nE"] and not self.o["wol"]: self.p3_w_setup(); self.bg_init()
        if not self.o["wol"]: self.bg_issue(self.o["nA"])
        self.p4_w_setup()
        self.ts(18)

    def p24_ids(self):
        a = self.a
        a("s_mul_i32 s66, s57, 26\ns_lshr_b32 s66, s66, 8\ns_mul_i32 s3, s66, 10\ns_sub_u32 s67, s57, s3")
        a("s_lshl_b32 s68, s56, 8\ns_mul_i32 s63, s66, 88\ns_add_u32 s68, s68, s63")
        a("s_cmp_eq_u32 s66, 2\ns_cselect_b32 s69, 0, 8\ns_add_u32 s69, s69, 80")
    def w64_addr(self, dst, Drows):
        a = self.a
        a("v_lshrrev_b32 v2, 3, v1\nv_and_b32 v3, 3, v2\nv_lshrrev_b32 v4, 2, v2")
        a(f"v_mul_u32_u24 v4, {Drows}, v4\nv_add_u32 v3, v3, v4\nv_mul_u32_u24 v{dst}, 1280, v3")
        a("v_lshrrev_b32 v2, 4, v1\nv_lshlrev_b32 v2, 1, v2\nv_and_b32 v3, 7, v1\nv_xor_b32 v3, v3, v2")
        a(f"v_lshl_add_u32 v{dst}, v3, 4, v{dst}")
        a(f"s_lshl_b32 s3, s67, 7\nv_add_u32 v{dst}, s3, v{dst}")
    def panel96_addr(self, dst):
        a = self.a
        for n in range(3):
            a(f"v_add_u32 v2, {64*n}, v1\nv_cmp_le_u32 vcc, 96, v2\nv_cndmask_b32 v3, 0, 1, vcc")
            a("v_mul_u32_u24 v4, 96, v3\nv_sub_u32 v2, v2, v4")
            a("s_lshl_b32 s3, s23, 1\nv_add_u32 v3, s3, v3")
            a(f"v_mul_u32_u24 v3, {CS}, v3\nv_add_u32 v4, s63, v2\nv_lshl_add_u32 v3, v4, 4, v3")
            a(f"v_cmp_gt_u32 vcc, s69, v2\nv_mov_b32 v4, {OOB}\nv_cndmask_b32 v{dst+n}, v4, v3, vcc")
    def panel96_issue(self, areg, gbase, nst, ldsbase, tag):
        a = self.a
        a(f"s_add_u32 s61, s75, {gbase}")
        for n in range(3):
            a(f"s_add_u32 m0, s65, {ldsbase + n*1024}")
            a(f"buffer_load_dwordx4 v{areg+n}, {srd(SWS)}, s61 offen {['', 'sc1', 'nt', 'sc0 sc1', 'sc1 nt'][self.o['ldsc']]} lds")
            self.vissue(tag)
        self.adv(75, 8*CS, nst)
    def c24_addr(self):
        a = self.a
        a("s_lshr_b32 s70, s23, 1\ns_and_b32 s71, s23, 1")
        a("v_lshrrev_b32 v11, 3, v1\nv_and_b32 v11, 3, v11\ns_lshl_b32 s3, s71, 1\nv_xor_b32 v11, s3, v11")
        a("v_lshrrev_b32 v2, 2, v1\nv_lshlrev_b32 v2, 7, v2\nv_and_b32 v3, 3, v1\nv_lshl_add_u32 v2, v3, 3, v2")
        a("v_xor_b32 v3, 1, v11\nv_lshl_add_u32 v5, v3, 5, v2\nv_lshl_add_u32 v2, v11, 5, v2")
        self.mk3(2); self.mk3(5)
        a("v_lshrrev_b32 v8, 4, v1\nv_mul_u32_u24 v8, 1536, v8\nv_and_b32 v11, 15, v1\nv_lshl_add_u32 v8, v11, 4, v8")
        a("s_mul_i32 s3, s70, 768\nv_add_u32 v8, s3, v8")
        self.mk3(8)
    def c24_loop(self, nst, aoff, boff, ACC, tsb):
        a = self.a
        def reads(u):
            s, ks = divmod(u, 2); f = 20 + 20*(u % 4); r = []
            for j in range(2):
                for rd in range(2):
                    r.append(f"ds_read_b64_tr_b16 v[{f+4*j+2*rd}:{f+4*j+2*rd+1}], {self.ad(2+3*j, aoff(s) + ks*4096 + rd*2048)}")
            for t in range(3):
                r.append(f"ds_read_b128 v[{f+8+4*t}:{f+11+4*t}], {self.ad(8, boff(s) + ks*4*1536 + t*256)}")
            return [r[0], r[4], r[1], r[5], r[2], r[3], r[6]]
        def mfmas(u):
            f = 20 + 20*(u % 4); r = []
            for j in range(2):
                for t in range(3):
                    c = ACC + (t*2+j)*4
                    cs = "0" if u == 0 and not self.o["ri"] else f"v[{c}:{c+3}]"
                    r.append(f"v_mfma_f32_16x16x32_bf16 v[{c}:{c+3}], v[{f+4*j}:{f+4*j+3}], v[{f+8+4*t}:{f+11+4*t}], {cs}")
            if self.o["ri"] and u == 2*nst - 1: r = [r[0], r[1], r[3], r[2], r[4], r[5]]
            return r
        n = 2*nst
        self.bar()
        self.ts(tsb)
        for x in reads(0) + reads(1): a(x)
        for u in range(n):
            nu = u + 2
            if nu < n and nu % 2 == 0: self.bar()
            if u == nst: self.ts(tsb+1)
            a(f"s_waitcnt lgkmcnt({7 if u + 1 < n else 0})")
            if u == n - 1:
                self.bar(); self.ts(tsb+2)
            rd = reads(nu) if nu < n else []
            mf = mfmas(u)
            for i, m in enumerate(mf):
                a(m)
                if i < len(rd): a(rd[i])
            for x in rd[len(mf):]: a(x)
    def c24_rowaddr(self):
        a = self.a
        a("v_and_b32 v12, 15, v1\ns_mul_i32 s3, s70, 48\nv_add_u32 v12, s3, v12")
        a("v_lshrrev_b32 v13, 4, v1\nv_and_b32 v14, 1, v13\nv_lshlrev_b32 v14, 1, v14\nv_lshrrev_b32 v11, 1, v13\nv_add_u32 v14, v14, v11")
        a("s_lshl_b32 s3, s71, 2\nv_add_u32 v14, s3, v14")
    def c24_addr_rm(self, dst):
        a = self.a
        for t in range(3):
            a(f"v_add_u32 v11, {16*t}, v12\nv_cmp_gt_u32 vcc, s69, v11\nv_add_u32 v11, s68, v11\nv_mul_u32_u24 v11, 1280, v11")
            a(f"v_lshl_add_u32 v11, v14, 4, v11\ns_lshl_b32 s3, s67, 7\nv_add_u32 v11, s3, v11")
            a(f"v_mov_b32 v{dst+t}, {OOB}\nv_cndmask_b32 v{dst+t}, v{dst+t}, v11, vcc")
    def c24_addr_panel(self, dst):
        a = self.a
        for t in range(3):
            a(f"s_lshl_b32 s3, s67, 3\nv_add_u32 v{dst+t}, s3, v14\nv_mul_u32_u24 v{dst+t}, {CS}, v{dst+t}")
            a(f"v_add_u32 v11, {16*t}, v12\nv_cmp_gt_u32 vcc, s69, v11\nv_add_u32 v11, s63, v11")
            a(f"v_lshl_add_u32 v11, v11, 4, v{dst+t}")
            a(f"v_mov_b32 v{dst+t}, {OOB}\nv_cndmask_b32 v{dst+t}, v{dst+t}, v11, vcc")
    def c24_init(self, ACC, RES):
        a = self.a
        if not self.o["ri"]: return
        a("s_waitcnt vmcnt(0)")
        for t in range(3):
            A = ACC + t*8
            for d in range(4): a(f"v_lshlrev_b32 v{A+2*d}, 16, v{RES+4*t+d}\nv_and_b32 v{A+2*d+1}, 0xffff0000, v{RES+4*t+d}")
            for r in range(4): a(f"v_permlane16_swap_b32 v{A+r}, v{A+4+r}")
    def c24_sum(self, ACC, RES, OUT, T, store):
        a = self.a
        for t in range(3):
            A = ACC + t*8; B = A + 4
            if self.o["ri"]:
                for r in range(4): a(f"v_permlane16_swap_b32 v{A+r}, v{B+r}")
                for d in range(4): a(f"v_cvt_pk_bf16_f32 v{OUT+4*t+d}, v{A+2*d}, v{A+2*d+1}")
                store(t)
                continue
            for d in range(4):
                a(f"v_lshlrev_b32 v{T+2*d}, 16, v{RES+4*t+d}\nv_and_b32 v{T+2*d+1}, 0xffff0000, v{RES+4*t+d}")
            for r in range(4): a(f"v_permlane16_swap_b32 v{A+r}, v{B+r}")
            for d in range(4):
                a(f"v_pk_add_f32 v[{T+2*d}:{T+2*d+1}], v[{T+2*d}:{T+2*d+1}], v[{A+2*d}:{A+2*d+1}]")
            for d in range(4):
                a(f"v_cvt_pk_bf16_f32 v{OUT+4*t+d}, v{T+2*d}, v{T+2*d+1}")
            store(t)

    P2_WO = 81920; P2_RING = 0; P2_NS = 6
    HREG = 240
    def p2_wo_setup(self):
        a = self.a
        self.w64_addr(44, 8); self.w64_addr(45, 40)
        self.csum_addr(46)
        a(f"s_mul_i32 s89, s23, {160*1280}\ns_mul_i32 s79, s23, 5")
        if self.o["rot2"]:
            a("s_lshl_b32 s3, s67, 1\ns_add_u32 s79, s79, 20\ns_sub_u32 s79, s79, s3\ns_sub_u32 s3, s79, 20\ns_cmp_ge_u32 s79, 20\ns_cselect_b32 s79, s3, s79")
        a("s_lshl_b32 s79, s79, 12")
    def p2_wo_issue(self, kk):
        a = self.a
        L1 = self.lab("csl"); L2 = self.lab("csb")
        a(f"s_cmp_ge_u32 s57, 30\ns_cbranch_scc1 {L1}")
        self.ool.append(f"{L1}:\n" + "\n".join(self.csum_ld(4*kk + n, 46, False) for n in range(4)) + f"\ns_branch {L2}")
        def blk(kk, sb):
            r = []
            for io in range(4):
                q = 4*kk + 2*(io % 2); rd = io // 2; hg = q // 10; c = q % 10
                if c < 8: row = 80*hg + 20*(c//2) + 4*rd; reg = 44
                else: row = 80*hg + 20*rd + 16; reg = 45
                r.append(f"s_add_u32 m0, {sb}, {self.P2_WO + io*1024}\ns_add_u32 s61, s89, {row*1280}\nbuffer_load_dwordx4 v{reg}, {srd(SWO)}, s61 offen lds")
            return "\n".join(r)
        for io in range(4): self.vissue("wo")
        if self.o["wor"]:
            OR = [[0, 1, 2, 4, 3], [2, 3, 4, 0, 1], [4, 0, 2, 1, 3]]
            pos = lambda k: f"s_add_u32 s90, s79, {k*4096}\ns_sub_u32 s3, s90, 81920\ns_cselect_b32 s90, s90, s3\n"
            for b in (1, 2):
                Lb = self.lab("wob")
                a(f"s_cmp_eq_u32 s66, {b}\ns_cbranch_scc1 {Lb}")
                self.ool.append(f"{Lb}:\n" + pos(OR[b][kk]) + blk(OR[b][kk], "s90") + f"\ns_branch {L2}")
            a(pos(OR[0][kk]) + blk(OR[0][kk], "s90"))
        else:
            a(blk(kk, "s79"))
            self.adv(79, 4096, 20)
        a(f"{L2}:")
    def p2c(self):
        a = self.a
        self.p24_ids(); self.c24_addr(); self.c24_rowaddr()
        XR = 220
        self.c24_addr_rm(16)
        for t in range(3):
            a(f"buffer_load_dwordx4 v[{XR+4*t}:{XR+4*t+3}], v{16+t}, {srd(SX)}, 0 offen")
        if self.o["cp3"]: self.code_pf(202, 203)
        self.c24_addr_panel(16)
        if self.o["pt"] & 16:
            a(f"s_mov_b32 s61, {H_BASE}")
            for t in range(3): a(f"buffer_load_dword v19, v{16+t}, {srd(SWS)}, s61 offen")
        if self.o["pt"] & 128:
            a(f"s_sub_u32 s3, s69, 48\ns_mul_i32 s3, s3, s70\ns_add_u32 s3, s3, s63\ns_lshl_b32 s3, s3, 4\ns_lshl_b32 s61, s67, 1\ns_add_u32 s61, s61, s71\ns_lshl_b32 s61, s61, 14\ns_add_u32 s61, s61, s3")
            for k in range(24): a(f"s_buffer_load_dword s96, {srd(SWS)}, s61 offset:{H_BASE + (k//6)*4096 + (k%6)*128}")
        a("v_and_b32 v232, 1, v13\nv_lshl_add_u32 v232, v232, 4, v12\nv_add_u32 v233, 32, v12\nv_lshrrev_b32 v11, 1, v13\nv_lshlrev_b32 v11, 2, v11")
        a(f"v_mov_b32 v15, {OOB}")
        for r in (232, 233):
            a(f"v_cmp_gt_u32 vcc, s69, v{r}\nv_add_u32 v{r}, s63, v{r}\nv_lshl_add_u32 v{r}, v{r}, 3, v11\nv_cndmask_b32 v{r}, v15, v{r}, vcc")
        a(f"s_lshl_b32 s60, s67, 1\ns_add_u32 s60, s60, s71\ns_lshl_b32 s60, s60, 11\ns_add_u32 s60, s60, {ST_BASE}")
        ACC = 100
        if self.o["pt"] & 128: a("s_waitcnt lgkmcnt(0)"); self.ts(23)
        self.c24_init(ACC, XR)
        self.c24_loop(10, lambda s: self.P2_WO + s*8192, lambda s: self.P2_RING + ((s + 1) % self.P2_NS)*12288, ACC, 7)
        a("s_waitcnt vmcnt(0)")
        H = self.HREG
        a(f"s_mov_b32 s61, {H_BASE}")
        a("s_mov_b64 vcc, s[86:87]")
        self.c24_sum(ACC, XR, H, 32, lambda t: self.hst(f"buffer_store_dwordx4 v[{H+4*t}:{H+4*t+3}], v{16+t}, {srd(SWS)}, s61 offen"))
        self.ts(19)
        a("v_mov_b32 v30, 0x3f803f80")
        for t in range(6): a(f"v_mov_b32 v{20+t}, 0")
        for d in range(4):
            for t in range(3):
                a(f"v_dot2c_f32_bf16 v{20+2*t}, v{H+4*t+d}, v30\nv_dot2c_f32_bf16 v{21+2*t}, v{H+4*t+d}, v{H+4*t+d}")
        self.signal(1, "s23")
        self.ts(20)
        for t in range(3): a(f"v_permlane32_swap_b32 v{20+2*t}, v{21+2*t}")
        for t in range(3): a(f"v_add_f32 v{20+2*t}, v{20+2*t}, v{21+2*t}")
        a("v_mov_b32 v25, v24")
        a("v_permlane16_swap_b32 v20, v22\nv_permlane16_swap_b32 v24, v25")
        a("v_add_f32 v20, v20, v22\nv_add_f32 v24, v24, v25")
        self.hst(f"buffer_store_dword v20, v232, {srd(SWS)}, s60 offen")
        self.hst(f"buffer_store_dword v24, v233, {srd(SWS)}, s60 offen")
        a("s_waitcnt vmcnt(0)\ns_mov_b64 exec, 1")
        self.hst(f"buffer_store_dword v3, off, {srd(SWS)}, s61 offset:16")
        a("s_mov_b64 exec, -1")
    def p2l(self):
        a = self.a
        self.panel96_addr(11)
        a("s_mul_i32 s65, s23, 3072")
        a(f"s_mul_i32 s75, s67, {8*CS}" if self.o["rot2"] else "s_mov_b32 s75, 0")
        a("v_lshlrev_b32 v14, 4, v1\nv_add_u32 v14, s64, v14\nv_add_u32 v15, 0x10000, v14\ns_lshl_b32 s79, s23, 10\nv_lshl_add_u32 v19, v1, 4, s79\nv_add_u32 v9, 0x10000, v19")
        a("s_lshl_b32 s61, s66, 3\ns_mov_b32 s60, 16")
        self.wait_flags(0, False)
        self.ts(7)
        NS = self.P2_NS
        iss = lambda s: self.panel96_issue(11, O_BASE, 10, self.P2_RING + ((s + 1) % NS)*12288, ("o", s))
        no = self.o["o0"]
        for s in range(no): iss(s)
        self.vwait([("o", 0)])
        for s in range(10):
            self.bar()
            for _ in range(self.o["per"]):
                if no <= min(9, max(s - 2, -1) + NS): iss(no); no += 1
            assert self.o["o0"] <= 5
            if s >= self.o["c0"]: self.bg_issue(self.o["nC"])
            if s + 1 <= 9: self.vwait([("o", s + 1)])
        self.bar()
        a("s_cmp_ge_u32 s57, 28\ns_cbranch_scc1 Lskip3l")

    def p3w(self, s): return A16(s % 6)
    def p3h(self, s): return A16(6 + s % 4)
    P3_ST = A16(4)
    def p3_ids(self):
        a = self.a
        a("s_cmp_ge_u32 s57, 14\ns_cselect_b32 s3, 1, 0\ns_cselect_b32 s73, 14, 0\ns_sub_u32 s73, s57, s73")
        a("s_lshl_b32 s72, s3, 7")
    def p3_w_setup(self):
        a = self.a
        self.p3_ids()
        a("v_lshrrev_b32 v2, 4, v1\nv_lshlrev_b32 v3, 2, v2\nv_and_b32 v4, 15, v1\nv_xor_b32 v4, v4, v3")
        a("v_mul_u32_u24 v16, 3456, v2\nv_lshl_add_u32 v16, v4, 4, v16")
        a(f"s_lshl_b32 s3, s73, 8\ns_mul_i32 s61, s23, {16*3456}\ns_add_u32 s3, s3, s61")
        a(f"s_cmp_ge_u32 s57, 28\ns_cselect_b32 s3, {OOB}, s3\nv_add_u32 v16, s3, v16")
        a("s_lshl_b32 s64, s23, 12")
        if self.o["rot3"]:
            a(f"s_mul_i32 s77, s73, 183\ns_lshr_b32 s77, s77, 8\ns_cmp_ge_u32 s57, 14\ns_cselect_b32 s3, {self.o['r3o']}, 0\ns_add_u32 s77, s77, s3")
            a("s_sub_u32 s3, s77, 10\ns_cmp_ge_u32 s77, 10\ns_cselect_b32 s77, s3, s77")
            if self.o["r3g"]:
                a(f"s_lshl_b32 s3, s56, 2\ns_lshr_b32 s3, {self.o['r3g']}, s3\ns_and_b32 s3, s3, 15\ns_add_u32 s77, s77, s3")
                a("s_sub_u32 s3, s77, 10\ns_cmp_ge_u32 s77, 10\ns_cselect_b32 s77, s3, s77")
        else: a("s_mov_b32 s77, 0")
        a(f"s_mul_i32 s76, s77, {64*3456}")
        self.w1_jump(3)
    def p3c(self):
        a = self.a
        Lsig = self.lab("P3sig")
        a("s_cmp_ge_u32 s57, 28\ns_cbranch_scc1 Lskip3b")
        L0 = self.L; self.L = []
        a("Lskip3b:\ns_barrier")
        if self.o["pb"] > self.o["pf"]: self.prefetch(28)
        a("s_branch Lskip3c")
        self.ool.append("\n".join(self.L)); self.L = L0
        self.p3_ids()
        a("v_lshrrev_b32 v11, 2, v1\nv_and_b32 v11, 3, v11")
        a("v_lshrrev_b32 v2, 5, v1\nv_lshl_add_u32 v2, v2, 3, v11\nv_lshlrev_b32 v2, 8, v2")
        a("v_lshrrev_b32 v3, 4, v1\nv_and_b32 v3, 1, v3\nv_lshl_add_u32 v2, v3, 5, v2\nv_and_b32 v3, 3, v1\nv_lshl_add_u32 v2, v3, 3, v2")
        a("s_lshl_b32 s3, s71, 1\nv_xor_b32 v11, s3, v11")
        a("v_xor_b32 v3, 1, v11\nv_lshl_add_u32 v5, v3, 6, v2\nv_lshl_add_u32 v2, v11, 6, v2")
        self.mk3(2); self.mk3(5)
        a("v_lshrrev_b32 v8, 5, v1\nv_lshlrev_b32 v8, 11, v8\nv_and_b32 v11, 31, v1\nv_lshl_add_u32 v8, v11, 4, v8")
        a("s_lshl_b32 s3, s70, 10\nv_add_u32 v8, s3, v8")
        self.mk3(8)
        a("v_lshrrev_b32 v15, 5, v1\nv_lshlrev_b32 v12, 4, v15")
        a(f"s_lshl_b32 s3, s71, 8\ns_add_u32 s3, s3, {self.P3_ST + 1024}\nv_add_u32 v12, s3, v12")
        a(f"v_mul_u32_u24 v14, {CS}, v15\nv_lshl_add_u32 v14, v11, 4, v14")
        a("s_lshl_b32 s77, s73, 1\ns_add_u32 s77, s77, s71")
        a(f"s_mul_i32 s60, s77, {8*CS}\ns_lshl_b32 s3, s70, 6\ns_add_u32 s3, s3, s72\ns_lshl_b32 s3, s3, 4\ns_add_u32 s60, s60, s3\ns_add_u32 s60, s60, {G_BASE}")
        if self.o["pt"] & 32:
            a(f"v_lshrrev_b32 v18, 3, v1\nv_lshlrev_b32 v18, 12, v18\nv_and_b32 v16, 7, v1\nv_lshl_add_u32 v18, v16, 7, v18")
        if self.o["pt"] & 256:
            for k in range(self.o["gc"]): a(f"s_buffer_load_dword s96, {srd(SWS)}, s60 offset:{(k//8)*4096 + (k%8)*128}")
            a("s_waitcnt lgkmcnt(0)"); self.ts(24)
        a("v_lshlrev_b32 v13, 3, v11")
        a(f"s_lshl_b32 s3, s70, 9\ns_add_u32 s3, s3, {self.P3_ST}\nv_add_u32 v13, s3, v13")
        a("v_mov_b32 v16, -1.4426950408889634")
        ACC = 100; FB = [20, 36]; CSR = 52; STR = 84
        SCW = self.o["scw"]; SR = 180
        if SCW:
            a(f"s_cmp_ge_u32 s57, 14\ns_cselect_b32 s61, 10, 0\ns_add_u32 s62, s73, 32\ns_sub_u32 s62, s62, s61\ns_mul_i32 s62, s62, {self.FS}\ns_sub_u32 s62, s62, 16")
            a(f"s_mul_i32 s89, s61, {self.FS}\ns_add_u32 s89, s89, {FL_BASE + 64*self.FS}\nv_mul_u32_u24 v172, {self.FS}, v1\nv_writelane_b32 v172, s62, 20")
            a("v_lshlrev_b32 v173, 11, v15\nv_lshl_add_u32 v173, v11, 3, v173\ns_lshl_b32 s3, s23, 5\ns_add_u32 s3, s3, s72\ns_lshl_b32 s3, s3, 3\nv_add_u32 v173, s3, v173")
            a(f"s_lshl_b32 s3, s23, 8\ns_add_u32 s3, s3, {self.P3_ST}\nv_lshl_add_u32 v174, v11, 3, s3\nv_lshlrev_b32 v175, 4, v1")
            a(f"s_lshl_b32 s3, s23, 7\ns_add_u32 m0, s3, {self.P3_ST + 1024}\ns_lshl_b32 s91, s73, 9\ns_add_u32 s91, s91, s3\ns_add_u32 s91, s91, {CSUM}")
        def stat(u):
            r = []
            fl = f"buffer_load_dwordx4 v[176:179], v172, {srd(SWS)}, s89 offen offset:16 sc1"
            if u == self.o["sfu"]: r.append(f"s_mov_b64 exec, 0x1fffff\n{fl}\ns_mov_b64 exec, -1")
            if u == self.o["scu"]:
                L1 = self.lab("sfchk"); L2 = self.lab("sfok"); L3 = self.lab("sfre")
                r.append(f"s_mov_b64 exec, 0x1fffff\ns_mov_b32 s90, 0x100000\ns_waitcnt vmcnt(0)\n{L1}:\nv_and_b32 v176, v176, v177\nv_and_b32 v178, v178, v179\nv_and_b32 v176, v176, v178\nv_cmp_ne_u32 vcc, 1, v176\ns_cbranch_vccnz {L3}\n{L2}:\ns_mov_b64 exec, 255\nbuffer_load_dwordx4 v175, {srd(SWS)}, s91 offen sc1 lds\ns_mov_b64 exec, -1")
                self.ool.append(f"{L3}:\n{fl}\ns_waitcnt vmcnt(0)\ns_sub_u32 s90, s90, 1\ns_cbranch_scc0 {L1}\ns_branch {L2}")
            k = u - self.o["scu"]
            if 0 <= k < 3:
                for n in ((0, 1), (2, 3, 4, 5), (6, 7, 8, 9))[k]:
                    r.append(f"s_mov_b32 s61, {ST_BASE + n*4096}\nbuffer_load_dwordx2 v[{SR+2*n}:{SR+1+2*n}], v173, {srd(SWS)}, s61 offen sc1")
            ad = lambda P: "\n".join(f"v_add_f32 v{SR+2*x+h}, v{SR+2*x+h}, v{SR+2*y+h}" for x, y in P for h in range(2))
            if u == self.o["sru"] - 1:
                r += ["s_waitcnt vmcnt(0)\n" + ad(((0, 5), (1, 6), (2, 7))), ad(((3, 8), (4, 9), (0, 1))), ad(((2, 3), (0, 4))), ad(((0, 2),)) + f"\nv_mov_b32 v176, v{SR}\nv_mov_b32 v177, v{SR+1}"]
            if u == self.o["sru"]:
                r += [f"v_permlane32_swap_b32 v{SR}, v176\nv_permlane32_swap_b32 v{SR+1}, v177\nv_add_f32 v{SR}, v{SR}, v176\nv_add_f32 v{SR+1}, v{SR+1}, v177",
                      f"v_mul_f32 v177, {1.0/640!r}, v{SR}\nv_mul_f32 v{SR+1}, {1.0/640!r}, v{SR+1}\nv_fma_f32 v{SR+1}, -v177, v177, v{SR+1}\nv_max_f32 v{SR+1}, 0, v{SR+1}",
                      f"v_add_f32 v{SR+1}, 1e-5, v{SR+1}\nv_rsq_f32 v176, v{SR+1}\nds_write_b64 v174, v[176:177]"]
            return r
        def reads(u):
            s, ks = divmod(u, 4); f = FB[u % 2]; r = []
            for t in range(2):
                r.append(f"ds_read_b128 v[{f+8+4*t}:{f+11+4*t}], {self.ad(8, self.p3h(s) + ks*4096 + t*512)}")
            for j in range(2):
                for rd in range(2):
                    r.append(f"ds_read_b64_tr_b16 v[{f+4*j+2*rd}:{f+4*j+2*rd+1}], {self.ad(2+3*j, self.p3w(s) + ks*4096 + rd*1024)}")
            return [r[0], r[2], r[3], r[1], r[4], r[5]]
        def mfmas(u):
            f = FB[u % 2]; r = []
            for j in range(2):
                for t in range(2):
                    c = ACC + (j*2+t)*16
                    cs = "0" if u == 0 else f"v[{c}:{c+15}]"
                    r.append(f"v_mfma_f32_32x32x16_bf16 v[{c}:{c+15}], v[{f+4*j}:{f+4*j+3}], v[{f+8+4*t}:{f+11+4*t}], {cs}")
            return r
        for u in range(40):
            rd = reads(u); mf = mfmas(u-1) if u else []
            if u % 4 == 0:
                if mf: a(mf.pop(0))
                self.bar()
            if u == 0: self.ts(10)
            if self.o["pt"] & 32 and u == self.o["g3u"]: a(f"buffer_load_dword v19, v18, {srd(SWS)}, s60 offen")
            if u == (33 if (self.o["sru"] <= 31 if SCW else self.o["srs"] <= 7) else 37):
                for t in range(2): a(f"ds_read_b64 v[{STR+4*t}:{STR+4*t+1}], v13 offset:{256*t}")
            if u in (34, 35, 37, 38):
                k = {34: 0, 35: 1, 37: 2, 38: 3}[u]
                for j in range(2): rd.append(f"ds_read_b128 v[{CSR+16*j+4*k}:{CSR+16*j+4*k+3}], v12 offset:{128*j + 32*k}")
            i = 0
            ex = stat(u) if SCW else []
            for m in mf:
                if u % 4 == 0:
                    for x in rd[i:i+3]: a(x)
                    i += 3
                    a(m)
                else:
                    a(m)
                    for x in rd[i:i+3]: a(x)
                    i += 3
                if ex and (i > 3 or len(ex) >= 4): a(ex.pop(0))
            for x in rd[i:]: a(x)
            for x in ex: a(x)
            a("s_waitcnt lgkmcnt(0)")
        mf = mfmas(39)
        a(mf.pop(0))
        self.bar()
        self.ts(11)
        for m in mf: a(m)
        a("s_waitcnt lgkmcnt(0)\ns_mov_b64 vcc, s[86:87]")
        a(f"s_cmp_ge_u32 s77, 27\ns_cbranch_scc1 {Lsig}")
        for t in range(2):
            a(f"v_mul_f32 v{STR+4*t+2}, -1.4426950408889634, v{STR+4*t}")
        if self.o["ep3"]:
            PT = self.o["ep3"] == 2
            GR = [(j, t, qq) for j in range(2) for t in range(2) for qq in (0, 2)]
            TB = lambda g: 164 + 8*(g % 3)
            PB = lambda g: 188 + 4*(g % 2)
            OB = lambda g: 196 + 4*(g % 2)
            XB = lambda g: ACC + (GR[g][0]*2 + GR[g][1])*16 + 4*GR[g][2]
            def sA(g):
                j, t, qq = GR[g]; A_ = STR + 4*t; r = []
                for p in range(4):
                    x = XB(g) + 2*p; k = CSR + 16*j + 4*qq + 2*p
                    r.append(f"v_pk_fma_f32 v[{x}:{x+1}], v[{k}:{k+1}], v[{A_}:{A_+1}], v[{x}:{x+1}] op_sel:[0,1,0] op_sel_hi:[1,1,1] neg_lo:[0,1,0] neg_hi:[0,1,0]")
                for p in range(4):
                    x = XB(g) + 2*p
                    r.append(f"v_pk_mul_f32 v[{x}:{x+1}], v[{x}:{x+1}], v[{A_+2}:{A_+3}] op_sel_hi:[1,0]")
                if PT: r += [f"v_min_f32 v{XB(g)+p}, v17, v{XB(g)+p}" for p in range(8)]
                return r
            sE = lambda g: [f"v_exp_f32 v{TB(g)+p}, v{XB(g)+p}" for p in range(8)]
            def sB(g):
                T = TB(g)
                r = [f"v_pk_fma_f32 v[{T+2*p}:{T+2*p+1}], v[{T+2*p}:{T+2*p+1}], v[16:17], v[16:17] op_sel_hi:[1,0,0]" for p in range(4)]
                if PT: r += [f"v_mul_f32 v{PB(g)+p}, v{T+2*p}, v{T+2*p+1}" for p in range(4)]
                return r
            sR = lambda g: [f"v_rcp_f32 v{PB(g)+p}, v{PB(g)+p}" for p in range(4)] if PT else [f"v_rcp_f32 v{TB(g)+p}, v{TB(g)+p}" for p in range(8)]
            def sC(g):
                j, t, qq = GR[g]; T = TB(g); o = OB(g); r = []
                if PT:
                    for p in range(4):
                        P = PB(g) + (p & ~1)
                        r.append(f"v_pk_mul_f32 v[{T+2*p}:{T+2*p+1}], v[{T+2*p}:{T+2*p+1}], v[{P}:{P+1}] op_sel:[1,{p & 1}] op_sel_hi:[0,{p & 1}]")
                for p in range(4):
                    x = XB(g) + 2*p
                    r.append(f"v_pk_mul_f32 v[{x}:{x+1}], v[{x}:{x+1}], v[{T+2*p}:{T+2*p+1}]")
                for p in range(4): r.append(f"v_cvt_pk_bf16_f32 v{o+p}, v{XB(g)+2*p}, v{XB(g)+2*p+1}")
                r += [f"v_permlane32_swap_b32 v{o}, v{o+2}", f"v_permlane32_swap_b32 v{o+1}, v{o+3}"]
                r.append((f"s_add_u32 s61, s60, {(4*j + qq)*CS + 512*t}", f"buffer_store_dwordx4 v[{o}:{o+3}], v14, {srd(SWS)}, s61 offen"))
                return r
            def em(x):
                if isinstance(x, tuple): a(x[0]); self.hst(x[1])
                else: a(x)
            V = lambda f, g: f(g) if 0 <= g < 8 else []
            if PT: a("v_mov_b32 v17, 0x42700000")
            for x in sA(0): a(x)
            for g in range(-1, 9):
                tr = V(sE, g + 1) + V(sR, g); nt = V(sB, g) + V(sC, g - 1) + V(sA, g + 2)
                nb = len(V(sB, g)); ne = len(V(sE, g + 1)); k = 0
                for i, x in enumerate(tr):
                    if i >= ne:
                        while k < nb: em(nt[k]); k += 1
                    a(x)
                    m = -(-(len(nt) - k) // (len(tr) - i))
                    for _ in range(min(m, self.o["epn"])):
                        em(nt[k]); k += 1
                for x in nt[k:]: em(x)
        T = 20
        for j in range(2 if not self.o["ep3"] else 0):
            for t in range(2):
                c = ACC + (j*2+t)*16
                A_ = STR + 4*t
                for qq in range(0, 4, 2):
                    o = T + 16 + 4*((qq//2) % 2)
                    for p in range(4):
                        x = c + 4*qq + 2*p; k = CSR + 16*j + 4*qq + 2*p
                        a(f"v_pk_fma_f32 v[{x}:{x+1}], v[{k}:{k+1}], v[{A_}:{A_+1}], v[{x}:{x+1}] op_sel:[0,1,0] op_sel_hi:[1,1,1] neg_lo:[0,1,0] neg_hi:[0,1,0]")
                    for p in range(4):
                        x = c + 4*qq + 2*p
                        a(f"v_pk_mul_f32 v[{x}:{x+1}], v[{x}:{x+1}], v[{A_+2}:{A_+3}] op_sel_hi:[1,0]")
                    for p in range(8): a(f"v_exp_f32 v{T+p}, v{c + 4*qq + p}")
                    for p in range(4):
                        a(f"v_pk_fma_f32 v[{T+2*p}:{T+2*p+1}], v[{T+2*p}:{T+2*p+1}], v[16:17], v[16:17] op_sel_hi:[1,0,0]")
                    for p in range(8): a(f"v_rcp_f32 v{T+p}, v{T+p}")
                    for p in range(4):
                        x = c + 4*qq + 2*p
                        a(f"v_pk_mul_f32 v[{x}:{x+1}], v[{x}:{x+1}], v[{T+2*p}:{T+2*p+1}]")
                    for p in range(4):
                        x = c + 4*qq + 2*p
                        a(f"v_cvt_pk_bf16_f32 v{o+p}, v{x}, v{x+1}")
                    a(f"v_permlane32_swap_b32 v{o}, v{o+2}\nv_permlane32_swap_b32 v{o+1}, v{o+3}")
                    a(f"s_add_u32 s61, s60, {(4*j + qq)*CS + 512*t}")
                    self.hst(f"buffer_store_dwordx4 v[{o}:{o+3}], v14, {srd(SWS)}, s61 offen")
        a(f"{Lsig}:")
        self.ts(21)
        self.signal(2, "s23")
        self.ts(22)
        a("Lskip3c:")
    def p3l(self):
        a = self.a
        NV = self.o["nv"]
        self.bg_issue(99)
        for s in range(NV, 6): self.w1_dma(s)
        for s in range(NV): self.w1_flush(s)
        a(f"s_mul_i32 s3, s23, {2*CS}\ns_lshl_b32 s61, s72, 4\ns_add_u32 s3, s3, s61\nv_lshl_add_u32 v18, v1, 4, s3")
        a(f"s_mul_i32 s75, s77, {8*CS}")
        a("v_and_b32 v2, 31, v1\nv_lshrrev_b32 v3, 5, v1\nv_lshlrev_b32 v3, 11, v3\nv_lshl_add_u32 v10, v2, 3, v3")
        a("s_lshl_b32 s3, s23, 5\ns_add_u32 s3, s3, s72\ns_lshl_b32 s3, s3, 3\nv_add_u32 v10, s3, v10")
        def hiss(s):
            for n in range(4):
                a(f"s_add_u32 m0, s64, {self.p3h(s) + n*1024}")
                a(f"s_add_u32 s61, s75, {H_BASE + (n//2)*CS + (n % 2)*1024}")
                a(f"buffer_load_dwordx4 v18, {srd(SWS)}, s61 offen {['', 'sc1', 'nt', 'sc0 sc1', 'sc1 nt'][self.o['ldsc']]} lds")
                self.vissue(("h", s))
            self.adv(75, 8*CS, 10)
        a("s_cmp_ge_u32 s57, 14\ns_cselect_b32 s61, 10, 0\ns_mov_b32 s60, 20")
        a(f"s_add_u32 s62, s73, 32\ns_sub_u32 s62, s62, s61\ns_mul_i32 s62, s62, {self.FS}\ns_sub_u32 s62, s62, 16")
        self.ts(26)
        self.wait_flags(1, False, "v_writelane_b32 v2, s62, 20")
        self.ts(10)
        SR = 20
        a("s_mov_b32 s62, s61")
        H0 = self.o["h0"]
        for s in range(H0): hiss(s)
        self.ts(30)
        self.vwait([("h", 0)])
        a("s_waitcnt lgkmcnt(0)")
        self.ts(31)
        nh = H0; nw = 0
        NW = self.NW
        sched = {7: self.o["w7"], 8: self.o["w8"], 9: self.o["w9"]}
        assert sched[7] <= 5 and sched[7] + sched[8] <= 7 and sum(sched.values()) <= 9
        W2V = self.o["w2v"]
        if W2V:
            assert NW == 12
            c0, c1 = self.o["cs0"], self.o["cs1"]
            rs = {s: [] for s in range(11)}
            for u in range(9): rs[c0 + u*(c1 - c0 + 1)//9].append(u)
            fl = {8: [0, 1, 2, 3, 4], 9: [5, 6], 10: [7, 8]}
        for s in range(10):
            self.bar()
            if s == 7 and self.o["srs"] <= 6: a("ds_write_b64 v2, v[48:49]")
            if W2V:
                for u in fl.get(s, []): self.w2_flush(u)
            for _ in range(self.o["per"]):
                if nh <= min(9, s + 3): hiss(nh); nh += 1
            SF = self.o["sfs"] if not self.o["scw"] else 99
            if s == SF:
                a(f"s_mov_b64 exec, 0x1fffff\nbuffer_load_dwordx4 v[4:7], v2, {srd(SWS)}, s62 offen offset:16 sc1\ns_mov_b64 exec, -1")
                self.vissue("sf")
            SC = SF + self.o["sfc"]
            if s == SC:
                self.vwait("sf")
                L1 = self.lab("sfchk"); L2 = self.lab("sfok"); L3 = self.lab("sfre")
                a(f"s_mov_b64 exec, 0x1fffff\ns_mov_b32 s60, 0x100000\n{L1}:")
                a(f"v_and_b32 v4, v4, v5\nv_and_b32 v6, v6, v7\nv_and_b32 v4, v4, v6\nv_cmp_ne_u32 vcc, 1, v4\ns_cbranch_vccnz {L3}\n{L2}:\ns_mov_b64 exec, -1")
                self.ool.append(f"{L3}:\nbuffer_load_dwordx4 v[4:7], v2, {srd(SWS)}, s62 offen offset:16 sc1\ns_waitcnt vmcnt(0)\ns_sub_u32 s60, s60, 1\ns_cbranch_scc0 {L1}\ns_branch {L2}")
            if s in (SC, SC + 1):
                for n in (range(5*(s - SC), 5*(s - SC + 1)) if not self.o["sta"] else range(10) if s == SC else []):
                    a(f"s_mov_b32 s61, {ST_BASE + n*4096}")
                    a(f"buffer_load_dwordx2 v[{SR+2*n}:{SR+1+2*n}], v10, {srd(SWS)}, s61 offen sc1")
                    self.vissue("st")
            if s == max(5, SC):
                a(f"s_lshl_b32 s3, s23, 7\ns_add_u32 m0, s3, {self.P3_ST + 1024}\ns_lshl_b32 s61, s73, 9\ns_add_u32 s61, s61, s3\ns_add_u32 s61, s61, {CSUM}")
                a(f"v_lshlrev_b32 v3, 4, v1\ns_mov_b64 exec, 255\nbuffer_load_dwordx4 v3, {srd(SWS)}, s61 offen sc1 lds\ns_mov_b64 exec, -1")
                self.vissue("cs")
            if s == self.o["gts"] and self.o["pt"] & 4:
                a(f"v_lshrrev_b32 v8, 4, v1\nv_lshlrev_b32 v8, 12, v8\nv_and_b32 v3, 15, v1\nv_lshl_add_u32 v8, v3, 7, v8")
                a(f"s_lshl_b32 s61, s73, 2\ns_add_u32 s61, s61, s23\ns_lshl_b32 s61, s61, 14\ns_lshl_b32 s3, s72, 4\ns_add_u32 s61, s61, s3\ns_add_u32 s61, s61, {G_BASE}")
                a(self.touch(60, 8, 's61'))
                self.vissue("pt")
            if 1 <= s <= 4: self.w1_dma(s + 5)
            if W2V:
                for u in rs[s]: self.w2_reg(u)
                if s == 8:
                    a("s_mov_b32 s74, s83"); nw = 12
                    for _ in range(3): self.adv(83, 64*1280, 27)
                if s >= 8:
                    for _ in range(self.o[f"hs{s}"]): self.w2_reg(nw); nw += 1
                self.vwait([("w2", u) for u in fl.get(s + 1, [])])
            else:
                for _ in range(sched.get(s, 0)): self.w2_dma(nw); nw += 1
                tw = self.o["tw"]
                for k, st in enumerate((self.o["tst"], self.o["ts2"])):
                    if tw > 4*k and s == st:
                        n0 = min(tw, 4); b0 = 270 - 28*tw + (28*n0 if k else 0); nn = tw - 4 if k else n0
                        a(f"s_mul_i32 s3, s57, {nn}\ns_add_u32 s3, s3, s23\ns_add_u32 s3, s3, {b0}\ns_lshl_b32 s3, s3, 13\ns_cmp_lt_u32 s23, {nn}\ns_cselect_b32 s3, s3, {OOB}")
                        a(f"v_lshl_add_u32 v8, v1, 7, s3\nbuffer_load_dword v60, v8, {srd(SW2)}, 0 offen")
                        self.vissue("tw")
            if s == self.o["srs"] and not self.o["scw"]:
                self.vwait("st")
                if self.o["npk"]:
                    for x, y in ((0, 5), (1, 6), (2, 7), (3, 8), (4, 9), (0, 1), (2, 3), (0, 4), (0, 2)):
                        for h in range(2): a(f"v_add_f32 v{SR+2*x+h}, v{SR+2*x+h}, v{SR+2*y+h}")
                else:
                    for n in range(1, 10): a(f"v_pk_add_f32 v[{SR}:{SR+1}], v[{SR}:{SR+1}], v[{SR+2*n}:{SR+1+2*n}]")
                a(f"v_mov_b32 v48, v{SR}\nv_mov_b32 v49, v{SR+1}")
                a(f"v_permlane32_swap_b32 v{SR}, v48\nv_permlane32_swap_b32 v{SR+1}, v49")
                a(f"v_add_f32 v{SR}, v{SR}, v48\nv_add_f32 v{SR+1}, v{SR+1}, v49")
                a(f"v_mul_f32 v49, {1.0/640!r}, v{SR}\nv_mul_f32 v{SR+1}, {1.0/640!r}, v{SR+1}")
                a(f"v_fma_f32 v{SR+1}, -v49, v49, v{SR+1}\nv_max_f32 v{SR+1}, 0, v{SR+1}\nv_add_f32 v{SR+1}, 1e-5, v{SR+1}\nv_rsq_f32 v48, v{SR+1}")
                a(f"v_and_b32 v2, 31, v1\nv_lshlrev_b32 v2, 3, v2\ns_lshl_b32 s3, s23, 8\ns_add_u32 s3, s3, {self.P3_ST}\nv_add_u32 v2, s3, v2")
                if s >= 7: a("ds_write_b64 v2, v[48:49]\ns_waitcnt lgkmcnt(0)")
            if s == 7: a("s_waitcnt lgkmcnt(0)"); self.vwait(["cs", "pt"])
            if s + 1 <= 9: self.vwait([("h", s + 1), ("w1", s + 1)])
        self.bar()
        if W2V:
            for u in fl[10]: self.w2_flush(u)
            a("s_mov_b32 s62, s83\ns_mov_b32 s83, s74")
            for u in range(9, 12): self.w2_dma(u)
            a("s_mov_b32 s83, s62")
            for u in range(nw, 27): self.w2_reg(u)
            a("s_waitcnt lgkmcnt(0)")
        else:
            for u in range(nw, NW): self.w2_dma(u)
        a("s_branch Lp4l")
        a("Lskip3l:\ns_barrier")
        if self.o["dl"]: self.prefetch(28)
        for u in range(NW): self.w2_dma(u)
        if W2V:
            for u in range(NW, 27): self.w2_reg(u)
        if self.o["pb"] > self.o["pf"] and not self.o["dl"]: self.prefetch(28)
        a("Lp4l:")
        self.vreset()

    def p4w(self, u):
        M = [9, 10, 11, 0, 1, 2, 3, 4, 5, 12, 13, 6, 7, 8] if self.NW == 14 else [9, 10, 11, 0, 1, 2, 3, 4, 5, 6, 7, 8]
        return M[u % self.NW] * 8192
    def p4g(self, s): return LDS - self.GN*12288 + (s % self.GN)*12288
    def p4_w_setup(self):
        a = self.a
        self.w64_addr(17, 8)
        a("s_and_b32 s3, s23, 1\ns_lshl_b32 s3, s3, 4\ns_lshr_b32 s61, s23, 1\ns_lshl_b32 s61, s61, 2\ns_add_u32 s3, s3, s61\ns_mul_i32 s3, s3, 1280")
        a(f"s_cmp_ge_u32 s57, 30\ns_cselect_b32 s3, {OOB}, s3\nv_add_u32 v17, s3, v17")
        if self.o["rot4"] == 2:
            a("s_sub_u32 s3, s67, 5\ns_cmp_ge_u32 s67, 5\ns_cselect_b32 s82, s3, s67")
        elif self.o["rot4"] == 3:
            a("s_mul_i32 s82, s67, 27*205\ns_lshr_b32 s82, s82, 11")
        elif self.o["rot4"]:
            a("s_mul_i32 s82, s67, 27*205\ns_lshr_b32 s82, s82, 11\ns_mul_i32 s3, s66, 9\ns_add_u32 s82, s82, s3")
            a("s_sub_u32 s3, s82, 27\ns_cmp_ge_u32 s82, 27\ns_cselect_b32 s82, s3, s82")
        else: a("s_mov_b32 s82, 0")
        a(f"s_mul_i32 s83, s82, {64*1280}")
    def p4c(self):
        a = self.a
        self.c24_addr(); self.c24_rowaddr()
        H = self.HREG
        self.c24_addr_rm(16)
        ACC = 100
        self.c24_init(ACC, H)
        self.c24_loop(27, self.p4w, self.p4g, ACC, 12)
        self.c24_sum(ACC, H, 40, 20, lambda t: a(f"buffer_store_dwordx4 v[{40+4*t}:{43+4*t}], v{16+t}, {srd(SOUT)}, 0 offen" + ["", " sc1", " nt", " sc0 sc1"][self.o["osc"]]))
        self.fin()
    def p4l(self):
        a = self.a
        a(f"s_mul_i32 s75, s82, {8*CS}")
        a("s_cmp_eq_u32 s66, 2\ns_cselect_b32 s61, 14, 0")
        a("s_cmp_eq_u32 s66, 1\ns_cselect_b32 s60, 28, 14")
        if self.o["pt"] & 2048:
            a("v_and_b32 v8, 15, v1\nv_lshlrev_b32 v10, 3, v8\nv_cmp_gt_u32 vcc, s69, v10\nv_lshlrev_b32 v8, 7, v8\nv_bfe_u32 v10, v1, 4, 1\nv_lshl_add_u32 v8, v10, 12, v8")
            a(f"v_lshrrev_b32 v10, 5, v1\nv_mul_u32_u24 v10, {80*CS}, v10\nv_add_u32 v8, v8, v10")
            a(f"s_add_u32 s3, s67, 10\ns_lshl_b32 s3, s3, 2\ns_add_u32 s3, s3, s23\ns_lshl_b32 s3, s3, 13\ns_lshl_b32 s62, s63, 4\ns_add_u32 s3, s3, s62\nv_add_u32 v8, s3, v8")
            a(f"s_cmp_lt_u32 s67, 7\ns_cselect_b32 vcc_hi, vcc_hi, 0\nv_mov_b32 v10, {OOB}\nv_cndmask_b32 v8, v10, v8, vcc")
        self.ts(27)
        self.wait_flags(2, False)
        self.ts(12)
        GN = self.GN; NW = self.NW
        gis = lambda s: self.panel96_issue(11, G_BASE, 27, self.p4g(s), ("g", s))
        G0 = min(self.o["g0"], GN)
        for s in range(G0): gis(s)
        ng = G0; nw = NW
        def gt():
            a(f"buffer_load_dword v10, v8, {srd(SWS)}, 0 offen sc1"); self.vissue("gt")
        if self.o["pt"] & 2048 and self.o["gtp"] < 0: gt()
        self.ts(28)
        self.vwait([("g", 0)])
        self.ts(29)
        for s in range(27):
            self.bar()
            if self.o["w2v"]:
                nw = 27
                if 2 <= s <= 16: self.w2_flush(s + 10)
            for _ in range(self.o["per"]):
                if ng <= min(26, max(s - 2, -1) + GN): gis(ng); ng += 1
            if self.o["pt"] & 2048 and self.o["gtp"] == s: gt()
            if self.o["w2v"] and 2 <= s <= 16: a("s_waitcnt lgkmcnt(0)")
            if nw <= min(26, s - 2 + NW) and s >= self.o["ws0"] and (s - self.o["ws0"]) % 2 < self.o["wper"]: self.w2_dma(nw); nw += 1
            while nw <= min(26, s + 4): self.w2_dma(nw); nw += 1
            if s + 1 <= 26: self.vwait([("g", s + 1), ("w2", s + 1)])
        self.bar()
        self.fin()

    def build(self):
        a = self.a
        self.prologue()
        if self.o["cp"]: self.code_pf(2, 96)
        if self.o["iw"]:
            a("s_cmp_ge_u32 s22, 4\ns_cbranch_scc1 Lload")
            for w in range(3): a(f"s_cmp_eq_u32 s22, {w}\ns_cbranch_scc1 Lwarm{w}")
            a("s_branch Lwarm3\nLload:")
        else: a("s_cmp_ge_u32 s22, 4\ns_cbranch_scc0 Lcomp")
        if self.o["lprio"]: a(f"s_setprio {self.o['lprio']}")
        self.p1l(); self.p2l(); self.p3l(); self.p4l()
        a("Lcomp:")
        if self.o["prio"]: a(f"s_setprio {self.o['prio']}")
        self.tprev = None; self.tn = 0
        self.p1c(); self.p2c(); self.p3c(); self.p4c()
        self.csum()
        for x in self.ool: a(x)
        a("Lend:\ns_endpgm")
    def text(self):
        L, n = hazard.fix(self.L)
        nm = self.name
        if self.o["iw"]: L = self.stubs(L)
        return "\n".join([f".globl {nm}"] + ([".p2align 12"] if self.o["iw"] else []) + [".p2align 8", f".type {nm},@function", f"{nm}:"] + L) + "\n"
    def stubs(self, L):
        import subprocess, re
        src = '.amdgcn_target "amdgcn-amd-amdhsa--gfx950"\n.text\n.p2align 12\n' + self.name + ':\n' + "\n".join(L) + "\n" + "".join(f"Lwarm{w}:\n" for w in range(4)) + "s_endpgm\n"
        open("st.s", "w").write(src)
        subprocess.run(["clang", "-x", "assembler", "-target", "amdgcn-amd-amdhsa", "-mcpu=gfx950", "-c", "st.s", "-o", "st.o"], check=True)
        d = subprocess.run(["llvm-objdump", "-d", "st.o"], capture_output=True, text=True).stdout
        ad = [int(m.group(1), 16) for m in re.finditer(r"// ([0-9A-F]{12}):", d)]
        idx = [i for i, l in enumerate(L) if not l.endswith(":")]
        assert len(ad) == len(idx) + 1, (len(ad), len(idx))
        B = self.o["iw"]; pos = []; nxt = B; sh = 0
        for k, i in enumerate(idx):
            if ad[k] + sh + 4 >= nxt:
                pos.append(i); sh += 8; nxt += B
        lc = L.index("Lcomp:")
        n = len(pos); c = [j for j in range(n) if pos[j] > lc]; l = [j for j in range(n) if pos[j] <= lc]
        if self.o["iwo"] == 0:
            order = []
            l2 = l[:-1]; c = l[-1:] + c
            while c or l2:
                if c: order.append(c.pop(0))
                if l2: order.append(l2.pop(0))
        else: order = list(range(n))
        ch = [order[w::4] for w in range(4)]
        tgt = {}; first = {}
        for w in range(4):
            first[ch[w][0]] = w
            for q, j in enumerate(ch[w]): tgt[j] = f"Lst{ch[w][q+1]}" if q + 1 < len(ch[w]) else "Lcomp"
        out = []; pm = {i: j for j, i in enumerate(pos)}
        for i, ln in enumerate(L):
            if i in pm:
                j = pm[i]
                out.append(f"    s_branch Lsk{j}")
                if j in first: out.append(f"Lwarm{first[j]}:")
                out += [f"Lst{j}:", f"    s_branch {tgt[j]}", f"Lsk{j}:"]
            out.append(ln)
        print("stubs", n, ch)
        return out
    def desc(self):
        return "\n".join([".p2align 6", f".amdhsa_kernel {self.name}",
            "  .amdhsa_next_free_vgpr 256", "  .amdhsa_next_free_sgpr 102", "  .amdhsa_accum_offset 256",
            "  .amdhsa_group_segment_fixed_size 0", "  .amdhsa_kernarg_size 72", "  .amdhsa_user_sgpr_count 2",
            "  .amdhsa_user_sgpr_kernarg_segment_ptr 1", "  .amdhsa_system_sgpr_workgroup_id_x 1",
            "  .amdhsa_float_denorm_mode_32 3",
            ".end_amdhsa_kernel"]) + "\n"

def header():
    ref = open(f"cdna_kernels/{NAME}.s.ref").read().split("\n")
    return [l for l in ref if l.startswith(";") and "@launch" not in l]
def build(dbg=False, opt=None):
    g = G(NAME + "_kernel", dbg, opt); g.build()
    out = header()
    out.append(f"; @launch grid=(256,1,1) block=(512,1,1) lds={LDS}")
    out += ['.amdgcn_target "amdgcn-amd-amdhsa--gfx950"', ".text", g.text(), '.section .rodata,"a"', g.desc()]
    return "\n".join(out)
if __name__ == "__main__":
    path = sys.argv[1]; dbg = False; opt = {}
    for x in sys.argv[2:]:
        if x == "dbg": dbg = True
        else:
            k, v = x.split("="); assert k in OPT, k; opt[k] = int(v, 0)
    txt = build(dbg, opt)
    open(path, "w").write(txt)
    import subprocess
    r = subprocess.run(["clang", "-x", "assembler", "-target", "amdgcn-amd-amdhsa", "-mcpu=gfx950", "-c", path, "-o", "chk.o"], capture_output=True, text=True)
    print(r.stderr[:3000] if r.returncode else "assembled ok", len(txt))
```
